```python
import torch

def _softmax(x, axis=-1):
    return torch.softmax(x, dim=axis)
def _gelu(x):
    return torch.nn.functional.gelu(x, approximate="tanh")
def _silu(x):
    return torch.nn.functional.silu(x)
def _sigmoid(x):
    return torch.sigmoid(x)
def _layernorm(x, axis=-1, eps=1e-5):
    m = x.mean(dim=axis, keepdim=True)
    v = x.var(dim=axis, keepdim=True, unbiased=False)
    return (x - m) / torch.sqrt(v + eps)
def _scatter_add(tgt, idx, src, axis=0):
    return tgt.clone().index_add_(axis, idx, src)
def _segment_sum(src, seg, n):
    out = torch.zeros((n,) + src.shape[1:], dtype=src.dtype)
    return out.index_add_(0, seg, src)
def _pad(x, pw):
    flat = tuple(v for pair in reversed(pw) for v in pair)
    return torch.nn.functional.pad(x, flat)

kernel_name = 'parallel_sum__gqa_block_cached__geglu_ffn__decode'

def setup_inputs():

    _w = (lambda a: (lambda t: t.to(torch.bfloat16) if t.is_floating_point() else t)(torch.as_tensor(a)))
    def _A_setup():
        B, Sq, D = 1, 1, 1024
        Hq, Hkv, Sk, Dh = 32, 4, 65536, 128
        assert Hq % Hkv == 0, (Hq, Hkv)
        return {
            "x": _w((lambda *s: torch.randn(*s, dtype=torch.bfloat16) * 0.05)(B, Sq, D)),
            "k_cache": _w((lambda *s: torch.randn(*s, dtype=torch.bfloat16) * 3.2)(B, Hkv, Sk, Dh)),
            "v_cache": _w((lambda *s: torch.randn(*s, dtype=torch.bfloat16) * 1.6)(B, Hkv, Sk, Dh)),
            "wq": _w((lambda *s: torch.randn(*s, dtype=torch.bfloat16) * 3.2)(D, Hq * Dh) * (D ** -0.5)),
            "wo": _w((lambda *s: torch.randn(*s, dtype=torch.bfloat16) * 1.6)(Hq * Dh, D) * ((Hq * Dh) ** -0.5)),
        }
    _A_in = _A_setup()

    def _B_setup():
        B, S, D, F = 1, 1, 1024, 3584
        return {
            "x": _w((lambda *s: torch.randn(*s, dtype=torch.bfloat16) * 0.05)(B, S, D)),
            "w_gate": _w((lambda *s: torch.randn(*s, dtype=torch.bfloat16) * 0.05)(D, F)),
            "w_up": _w((lambda *s: torch.randn(*s, dtype=torch.bfloat16) * 0.05)(D, F)),
            "w_down": _w((lambda *s: torch.randn(*s, dtype=torch.bfloat16) * 0.05)(F, D)),
        }
    _B_in = _B_setup()

    return {
        "A_x": _A_in["x"],
        "A_k_cache": _A_in["k_cache"],
        "A_v_cache": _A_in["v_cache"],
        "A_wq": _A_in["wq"],
        "A_wo": _A_in["wo"],
        "B_x": _B_in["x"],
        "B_w_gate": _B_in["w_gate"],
        "B_w_up": _B_in["w_up"],
        "B_w_down": _B_in["w_down"],
    }

def reference(A_x, A_k_cache, A_v_cache, A_wq, A_wo, B_x, B_w_gate, B_w_up, B_w_down):
    def _A_ref(x, k_cache, v_cache, wq, wo):
        B, Sq, D = x.shape
        Hq, Dh = 32, 128
        Hkv = k_cache.shape[1]
        rep = Hq // Hkv
        q = (lambda x, *d: x.permute(*d))((x @ wq).reshape(B, Sq, Hq, Dh), 0, 2, 1, 3)
        k = (lambda x, n, axis: torch.repeat_interleave(x, n, dim=axis))(k_cache, rep, axis=1)
        v = (lambda x, n, axis: torch.repeat_interleave(x, n, dim=axis))(v_cache, rep, axis=1)
        scores = torch.einsum("bhqd,bhkd->bhqk", q, k) * (Dh ** -0.5)
        p = _softmax(scores, axis=-1)
        o = torch.einsum("bhqk,bhkd->bhqd", p, v)
        return (lambda x, *d: x.permute(*d))(o, 0, 2, 1, 3).reshape(B, Sq, Hq * Dh) @ wo

    def _B_ref(x, w_gate, w_up, w_down):
        return (_gelu(x @ w_gate) * (x @ w_up)) @ w_down

    x = A_x
    xn = _layernorm(x, axis=-1)
    return x + _A_ref(xn, A_k_cache, A_v_cache, A_wq, A_wo) + _B_ref(xn, B_w_gate, B_w_up, B_w_down)
```

```python
import re

TRANS = ('v_exp_f32', 'v_rcp_f32', 'v_rsq_f32', 'v_sqrt_f32', 'v_log_f32', 'v_sin_f32', 'v_cos_f32')

def _regs(tok):
    tok = tok.strip()
    tok = tok.lstrip('-')
    m = re.fullmatch(r'abs\((.*)\)', tok)
    if m: tok = m.group(1)
    m = re.fullmatch(r'\|(.*)\|', tok)
    if m: tok = m.group(1)
    m = re.fullmatch(r'([vs])(\d+)', tok)
    if m: return m.group(1), {int(m.group(2))}
    m = re.fullmatch(r'([vs])\[(\d+):(\d+)\]', tok)
    if m: return m.group(1), set(range(int(m.group(2)), int(m.group(3)) + 1))
    if tok == 'vcc': return 's', {106, 107}
    if tok == 'exec': return 's', {126, 127}
    return None, set()

class Ins:
    def __init__(self, text):
        self.text = text
        t = text.split(';')[0].strip()
        parts = t.split(None, 1)
        self.op = parts[0]
        rest = parts[1] if len(parts) > 1 else ''
        ops = []
        depth = 0; cur = ''
        for ch in rest:
            if ch == '[': depth += 1
            if ch == ']': depth -= 1
            if ch == ',' and depth == 0:
                ops.append(cur); cur = ''
            else:
                cur += ch
        ops.append(cur)
        mods = ''
        if ops:
            last = ops[-1].strip().split(None, 1)
            if last:
                ops[-1] = last[0]
                mods = last[1] if len(last) > 1 else ''
        self.ops = [o.strip() for o in ops if o.strip()]
        self.mods = mods
        op = self.op
        self.is_mfma = op.startswith('v_mfma')
        self.is_valu = op.startswith('v_') and not self.is_mfma
        self.is_trans = any(op.startswith(x) for x in TRANS)
        self.is_dpp = op.endswith('_dpp')
        self.is_perm = op.startswith('v_permlane')
        self.is_rdl = op.startswith('v_readfirstlane') or op.startswith('v_readlane')
        self.is_vmem = op.startswith('buffer_') or op.startswith('global_')
        self.is_ds = op.startswith('ds_')
        self.is_salu = op.startswith('s_')
        self.states = 1
        if op == 's_nop':
            self.states = int(self.ops[0], 0) + 1
        self.vw = set(); self.vr = set(); self.sw = set(); self.sr = set()
        self.mfma_c = set(); self.mfma_ab = set()
        self.store_wide = set()
        self.load_dst = set()
        P = [_regs(o) for o in self.ops]
        def addr(k, r, wr):
            if k == 'v': (self.vw if wr else self.vr).update(r)
            elif k == 's': (self.sw if wr else self.sr).update(r)
        if self.is_mfma:
            addr(*P[0], True)
            for i in (1, 2):
                addr(*P[i], False); self.mfma_ab |= P[i][1] if P[i][0] == 'v' else set()
            addr(*P[3], False)
            if P[3][0] == 'v': self.mfma_c = P[3][1]
        elif self.is_perm:
            for p in P[:2]:
                addr(*p, True); addr(*p, False)
        elif self.is_valu:
            ndst = 1
            if op.startswith(('v_add_co', 'v_sub_co', 'v_addc_co', 'v_subb_co', 'v_div_scale', 'v_mad_u64')):
                ndst = 2
            for p in P[:ndst]: addr(*p, True)
            for p in P[ndst:]: addr(*p, False)
            if op.startswith(('v_fmac', 'v_pk_fmac', 'v_dot2c')): addr(*P[0], False)
            if self.is_dpp: addr(*P[0], False)
            if op.startswith('v_cndmask') and len(P) == 3: self.sr |= {106, 107}
            if op.startswith('v_writelane'): addr(*P[0], False)
        elif self.is_vmem:
            if '_load' in op:
                if P[0][0] == 'v': self.load_dst = P[0][1]
                for p in P[1:]: addr(*p, False)
            else:
                for p in P: addr(*p, False)
                if 'dwordx4' in op or 'dwordx3' in op:
                    self.store_wide = P[0][1] if op.startswith('buffer') else P[1][1]
                if 'atomic' in op and 'sc0' in mods: self.load_dst = P[0][1]
        elif self.is_ds:
            if op.startswith(('ds_read', 'ds_bpermute', 'ds_permute', 'ds_swizzle')):
                self.load_dst = P[0][1]
                for p in P[1:]: addr(*p, False)
            else:
                for p in P: addr(*p, False)
        elif self.is_salu:
            if op.startswith(('s_cmp', 's_cbranch', 's_branch', 's_waitcnt', 's_nop', 's_barrier', 's_endpgm', 's_sleep', 's_setprio')):
                for p in P: addr(*p, False)
            else:
                if P: addr(*P[0], True)
                for p in P[1:]: addr(*p, False)

def required(prod, cons):
    n = 0
    pv = prod.is_valu
    if pv and prod.vw:
        if cons.is_dpp and (prod.vw & cons.vr): n = max(n, 2)
        if cons.is_perm and (prod.vw & cons.vr): n = max(n, 2)
        if cons.is_mfma and (prod.vw & cons.vr): n = max(n, 2)
        if cons.is_rdl and (prod.vw & cons.vr): n = max(n, 1)
        if prod.is_trans and cons.is_valu and not cons.is_trans and (prod.vw & cons.vr): n = max(n, 1)
        if prod.is_trans and (cons.is_vmem or cons.is_ds) and (prod.vw & cons.vr): n = max(n, 1)
    if pv and prod.sw:
        if cons.is_valu and (prod.sw & cons.sr): n = max(n, 4 if cons.op.startswith(('v_readlane', 'v_writelane')) else 2)
        if cons.is_vmem and (prod.sw & cons.sr): n = max(n, 5)
        if cons.is_salu and (prod.sw & cons.sr): n = max(n, 2)
    if prod.is_mfma:
        D = prod.vw
        if cons.is_mfma:
            if D & cons.mfma_ab: n = max(n, 8)
            if D & cons.mfma_c:
                if not (cons.mfma_c == D and cons.op == prod.op): n = max(n, 6)
            if (D & cons.vw) and not (cons.mfma_c == D and cons.op == prod.op): n = max(n, 8)
        else:
            if D & (cons.vr | cons.vw | cons.load_dst): n = max(n, 8)
            if cons.is_valu and (prod.mfma_c & cons.vw): n = max(n, 3)
    if prod.store_wide:
        if cons.is_valu and (prod.store_wide & cons.vw): n = max(n, 2)
        if prod.store_wide & (cons.load_dst | cons.vw): n = max(n, 1)
    return n

class Gen:
    def __init__(self):
        self.out = []
        self.hist = []
        self.vm = []
    def raw(self, s):
        self.out.append(s)
    def label(self, l):
        self.out.append(l + ':')
        self.flush_hazards()
    def flush_hazards(self):
        need = 0; dist = 0
        for p in reversed(self.hist):
            w = 8 if p.is_mfma else (5 if (p.is_valu and p.sw) else (2 if (p.is_valu or p.store_wide) else 0))
            need = max(need, w - dist)
            dist += p.states
            if dist >= 8: break
        if need > 0:
            self._emit('s_nop %d' % (need - 1))
        self.hist = []
    def _emit(self, s):
        i = Ins(s)
        self.out.append('    ' + s)
        self.hist.append(i)
        if len(self.hist) > 24: self.hist.pop(0)
    def e(self, s, tag=None):
        i = Ins(s)
        need = 0; dist = 0
        for p in reversed(self.hist):
            r = required(p, i)
            if r - dist > need: need = r - dist
            dist += p.states
            if dist >= 12: break
        if need > 0:
            self._emit('s_nop %d' % (need - 1))
        self._emit(s)
        if i.is_vmem and not i.op.startswith(('buffer_wbl2', 'buffer_inv')):
            self.vm.append(tag)
        if i.op.startswith(('s_cbranch', 's_branch')):
            pass
    def c(self, s):
        self.out.append('    ; ' + s)
    def wait_vm(self, tag):
        last = max(i for i, t in enumerate(self.vm) if t == tag)
        n = len(self.vm) - 1 - last
        assert n <= 63, n
        self.e('s_waitcnt vmcnt(%d)' % n)
    def wait_vm0(self):
        self.e('s_waitcnt vmcnt(0)')
    def wait_lgkm(self, n=0):
        self.e('s_waitcnt lgkmcnt(%d)' % n)
    def text(self):
        return '\n'.join(self.out) + '\n'
```

```python
import sys
sys.path.insert(0, 'gen')
from asmgen import Gen

NAME = 'parallel_sum__gqa_block_cached__geglu_ffn__decode'

Q_OFF = 0
H_OFF = 8192
ML_OFF = 16384
O_OFF = 32768
P2_OFF = 0x110000
WS_BYTES = 268435456

L2E = 0x3fb8aa3b
SCALE = 0x3db504f3

sW, sX8, sJ, sKV, sU, sH, sB = 3, 4, 5, 6, 7, 8, 9
sT0, sT1, sT2, sT3 = 10, 11, 12, 13
SRD = dict(x=40, K=44, V=48, wq=52, wo=56, wg=60, wu=64, wd=68, out=72, dbg=76, ws=80)
PTR = dict(x=16, K=18, V=20, wq=22, wo=24, bx=26, wg=28, wu=30, wd=32, out=34, dbg=36, ws=38)
SIZE = dict(x=2048, K=67108864, V=67108864, wq=8388608, wo=8388608, wg=7340032, wu=7340032,
            wd=7340032, out=2048, dbg=256, ws=WS_BYTES)
sL2E, sSCALE, sHI = 84, 85, 86
sEX = 88
sM0 = 90

def srd(n): return 's[%d:%d]' % (SRD[n], SRD[n] + 3)
def vr(a, n): return 'v[%d:%d]' % (a, a + n - 1)

vLane, vL15, vG, vMask0, vMask1 = 1, 2, 3, 4, 5
vA0, vA1, vA2, vA3 = 6, 7, 8, 9
vT0, vT1, vT2, vT3, vT4, vT5 = 10, 11, 12, 13, 14, 15

def prologue(g, used):
    g.e('s_cmp_ge_u32 s2, 256')
    g.e('s_cbranch_scc1 %s' % g.endlabel)
    g.e('s_load_dwordx16 s[16:31], s[0:1], 0')
    g.e('s_load_dwordx8 s[32:39], s[0:1], 64')
    g.e('s_and_b32 s%d, s2, 7' % sX8)
    g.e('s_lshr_b32 s%d, s2, 3' % sJ)
    g.e('s_lshr_b32 s%d, s%d, 3' % (sKV, sJ))
    g.e('s_and_b32 s%d, s%d, 7' % (sB, sJ))
    g.e('s_lshl_b32 s%d, s%d, 3' % (sU, sX8))
    g.e('s_add_u32 s%d, s%d, s%d' % (sU, sU, sB))
    g.e('s_lshl_b32 s%d, s%d, 3' % (sH, sKV))
    g.e('s_add_u32 s%d, s%d, s%d' % (sH, sH, sX8))
    g.e('v_lshrrev_b32 v%d, 6, v0' % vT0)
    g.e('v_and_b32 v%d, 63, v0' % vLane)
    g.e('v_readfirstlane_b32 s%d, v%d' % (sW, vT0))
    g.e('v_and_b32 v%d, 15, v0' % vL15)
    g.e('v_lshrrev_b32 v%d, 4, v%d' % (vG, vLane))
    g.e('s_mov_b32 s%d, 0x%x' % (sL2E, L2E))
    g.e('s_mov_b32 s%d, 0x%x' % (sSCALE, SCALE))
    g.e('s_mov_b32 s%d, 0xffff0000' % sHI)
    g.e('s_waitcnt lgkmcnt(0)')
    for n in used:
        b = SRD[n]; p = PTR[n]
        g.e('s_mov_b32 s%d, s%d' % (b, p))
        g.e('s_and_b32 s%d, s%d, 0xffff' % (b + 1, p + 1))
        g.e('s_mov_b32 s%d, 0x%x' % (b + 2, SIZE[n]))
        g.e('s_mov_b32 s%d, 0x20000' % (b + 3))

def make_masks(g):
    g.e('v_and_b32 v%d, 3, v%d' % (vT0, vLane))
    g.e('v_and_b32 v%d, 1, v%d' % (vT1, vLane))
    g.e('v_lshlrev_b32 v%d, 4, v%d' % (vT1, vT1))
    g.e('v_mov_b32 v%d, 0xffff' % vT2)
    g.e('v_lshlrev_b32 v%d, v%d, v%d' % (vT2, vT1, vT2))
    g.e('v_cmp_gt_u32 vcc, 2, v%d' % vT0)
    g.e('v_cndmask_b32 v%d, 0, v%d, vcc' % (vMask0, vT2))
    g.e('v_cndmask_b32 v%d, v%d, 0, vcc' % (vMask1, vT2))

def allreduce_rows(g, op, regs, tmp):
    for r in regs:
        g.e('v_mov_b32 v%d, v%d' % (tmp, r))
        g.e('v_permlane16_swap_b32 v%d, v%d' % (r, tmp))
        g.e('%s v%d, v%d, v%d' % (op, r, r, tmp))
        g.e('v_mov_b32 v%d, v%d' % (tmp, r))
        g.e('v_permlane32_swap_b32 v%d, v%d' % (r, tmp))
        g.e('%s v%d, v%d, v%d' % (op, r, r, tmp))

def allreduce_inrow(g, op, regs, rors):
    for ro in rors:
        for r in regs:
            g.e('%s_dpp v%d, v%d, v%d row_ror:%d row_mask:0xf bank_mask:0xf' % (op, r, r, r, ro))

def round_bf16(g, dst, src, tmp=None):
    g.e('v_cvt_pk_bf16_f32 v%d, v%d, v%d' % (dst, src, src))
    g.e('v_and_b32 v%d, s%d, v%d' % (dst, sHI, dst))

XN_LDS = 0
HP_LDS = 4096
def head(g):
    vX = 224
    vXF = 232
    vWQ = 16
    vWG = 192
    vWU = 208
    vACC = 32
    vXN = 56
    g.c('x loads')
    g.e('v_lshlrev_b32 v%d, 5, v%d' % (vA0, vLane))
    g.e('buffer_load_dwordx4 %s, v%d, %s, 0 offen' % (vr(vX, 4), vA0, srd('x')), 'x')
    g.e('buffer_load_dwordx4 %s, v%d, %s, 0 offen offset:16' % (vr(vX + 4, 4), vA0, srd('x')), 'x')
    g.c('wq loads: voff = (128w+4rho)*8192 + kv*2048 + u*32 + c*16')
    g.e('v_lshrrev_b32 v%d, 1, v%d' % (vT0, vLane))
    g.e('v_and_b32 v%d, 1, v%d' % (vT1, vLane))
    g.e('v_lshlrev_b32 v%d, 2, v%d' % (vT0, vT0))
    g.e('s_lshl_b32 s%d, s%d, 7' % (sT0, sW))
    g.e('v_add_u32 v%d, s%d, v%d' % (vT0, sT0, vT0))
    g.e('v_lshlrev_b32 v%d, 4, v%d' % (vT1, vT1))
    g.e('s_lshl_b32 s%d, s%d, 11' % (sT1, sKV))
    g.e('s_lshl_b32 s%d, s%d, 5' % (sT2, sU))
    g.e('s_add_u32 s%d, s%d, s%d' % (sT1, sT1, sT2))
    g.e('v_lshlrev_b32 v%d, 13, v%d' % (vA1, vT0))
    g.e('v_add3_u32 v%d, v%d, v%d, s%d' % (vA1, vA1, vT1, sT1))
    for i in range(4):
        g.e('s_mov_b32 s%d, %d' % (sT3, i * 8192))
        g.e('buffer_load_dwordx4 %s, v%d, %s, s%d offen' % (vr(vWQ + 4 * i, 4), vA1, srd('wq'), sT3), 'wq')
    g.c('gate/up loads: voff = row0*7168 + tau*32 + c*16 ; tau = 28*x8 + j (j<28) else OOB')
    g.e('s_mul_i32 s%d, s%d, 28' % (sT1, sX8))
    g.e('s_add_u32 s%d, s%d, s%d' % (sT1, sT1, sJ))
    g.e('s_lshl_b32 s%d, s%d, 5' % (sT1, sT1))
    g.e('s_cmp_ge_u32 s%d, 28' % sJ)
    g.e('s_cselect_b32 s%d, 0x40000000, s%d' % (sT1, sT1))
    g.e('s_mov_b32 s%d, 7168' % sT2)
    g.e('v_mul_lo_u32 v%d, v%d, s%d' % (vA2, vT0, sT2))
    g.e('v_add3_u32 v%d, v%d, v%d, s%d' % (vA2, vA2, vT1, sT1))
    for i in range(4):
        g.e('s_mov_b32 s%d, %d' % (sT3, i * 7168))
        g.e('buffer_load_dwordx4 %s, v%d, %s, s%d offen' % (vr(vWG + 4 * i, 4), vA2, srd('wg'), sT3), 'wg')
        g.e('buffer_load_dwordx4 %s, v%d, %s, s%d offen' % (vr(vWU + 4 * i, 4), vA2, srd('wu'), sT3), 'wu')
    g.e('s_mov_b32 s%d, s%d' % (14, sT1))
    g.c('xn read address')
    g.e('v_lshlrev_b32 v%d, 2, v%d' % (vA3, vT0))
    g.c('---- layernorm')
    g.wait_vm('x')
    for k in range(8):
        g.e('v_lshlrev_b32 v%d, 16, v%d' % (vXF + 2 * k, vX + k))
        g.e('v_and_b32 v%d, s%d, v%d' % (vXF + 2 * k + 1, sHI, vX + k))
    g.e('v_add_f32 v%d, v%d, v%d' % (vT2, vXF, vXF + 1))
    for k in range(2, 16):
        g.e('v_add_f32 v%d, v%d, v%d' % (vT2, vT2, vXF + k))
    allreduce_inrow(g, 'v_add_f32', [vT2], [8, 4, 2, 1])
    allreduce_rows(g, 'v_add_f32', [vT2], vT3)
    g.e('v_mul_f32 v%d, 0x3a800000, v%d' % (vT2, vT2))
    g.e('v_sub_f32 v%d, v%d, v%d' % (vT3, vXF, vT2))
    g.e('v_mul_f32 v%d, v%d, v%d' % (vT4, vT3, vT3))
    for k in range(1, 16):
        g.e('v_sub_f32 v%d, v%d, v%d' % (vT3, vXF + k, vT2))
        g.e('v_fmac_f32 v%d, v%d, v%d' % (vT4, vT3, vT3))
    allreduce_inrow(g, 'v_add_f32', [vT4], [8, 4, 2, 1])
    allreduce_rows(g, 'v_add_f32', [vT4], vT3)
    g.e('v_mul_f32 v%d, 0x3a800000, v%d' % (vT4, vT4))
    round_bf16(g, vT2, vT2)
    round_bf16(g, vT4, vT4)
    g.e('v_add_f32 v%d, 0x3727c5ac, v%d' % (vT4, vT4))
    round_bf16(g, vT4, vT4)
    g.e('v_sqrt_f32 v%d, v%d' % (vT4, vT4))
    round_bf16(g, vT4, vT4)
    g.e('v_rcp_f32 v%d, v%d' % (vT5, vT4))
    for k in range(0, 16, 2):
        a, b = vXF + k, vXF + k + 1
        g.e('v_sub_f32 v%d, v%d, v%d' % (a, a, vT2))
        g.e('v_sub_f32 v%d, v%d, v%d' % (b, b, vT2))
        g.e('v_cvt_pk_bf16_f32 v%d, v%d, v%d' % (vT3, a, b))
        g.e('v_lshlrev_b32 v%d, 16, v%d' % (a, vT3))
        g.e('v_and_b32 v%d, s%d, v%d' % (b, sHI, vT3))
        for r in (a, b):
            g.e('v_mul_f32 v%d, v%d, v%d' % (vT0, r, vT5))
            g.e('v_fma_f32 v%d, -v%d, v%d, v%d' % (vT1, vT0, vT4, r))
            g.e('v_fma_f32 v%d, v%d, v%d, v%d' % (r, vT1, vT5, vT0))
        g.e('v_cvt_pk_bf16_f32 v%d, v%d, v%d' % (vT3, a, b))
        g.e('v_lshlrev_b32 v%d, 16, v%d' % (a, vT3))
        g.e('v_and_b32 v%d, s%d, v%d' % (b, sHI, vT3))
    g.e('v_lshlrev_b32 v%d, 6, v%d' % (vT0, vLane))
    for k in range(4):
        g.e('ds_write_b128 v%d, %s offset:%d' % (vT0, vr(vXF + 4 * k, 4), XN_LDS + 16 * k))
    g.wait_lgkm(0)
    g.e('ds_read_b128 %s, v%d offset:%d' % (vr(vXN, 4), vA3, XN_LDS))
    g.wait_lgkm(0)
    g.c('---- gemv FMAs')
    for s_i, (vW, tag) in enumerate(((vWQ, 'wq'), (vWG, 'wg'), (vWU, 'wu'))):
        if tag != 'wu':
            g.wait_vm('wq' if tag == 'wq' else 'wu')
        acc = vACC + 8 * s_i
        for i in range(4):
            for k in range(4):
                w = vW + 4 * i + k
                g.e('v_lshlrev_b32 v%d, 16, v%d' % (vT0, w))
                g.e('v_and_b32 v%d, s%d, v%d' % (vT1, sHI, w))
                if i == 0:
                    g.e('v_mul_f32 v%d, v%d, v%d' % (acc + 2 * k, vT0, vXN + i))
                    g.e('v_mul_f32 v%d, v%d, v%d' % (acc + 2 * k + 1, vT1, vXN + i))
                else:
                    g.e('v_fmac_f32 v%d, v%d, v%d' % (acc + 2 * k, vT0, vXN + i))
                    g.e('v_fmac_f32 v%d, v%d, v%d' % (acc + 2 * k + 1, vT1, vXN + i))
    allreduce_inrow(g, 'v_add_f32', list(range(vACC, vACC + 24)), [8, 4, 2])
    g.c('write partials: addr = ((set*32 + 4w + row)*16 + 8c)*4')
    g.e('s_lshl_b32 s%d, s%d, 2' % (sT0, sW))
    g.e('v_add_u32 v%d, s%d, v%d' % (vT0, sT0, vG))
    g.e('v_lshlrev_b32 v%d, 6, v%d' % (vT0, vT0))
    g.e('v_and_b32 v%d, 1, v%d' % (vT1, vLane))
    g.e('v_lshl_add_u32 v%d, v%d, 5, v%d' % (vT0, vT1, vT0))
    g.e('v_cmp_gt_u32 vcc, 2, v%d' % vL15)
    g.e('s_and_saveexec_b64 s[%d:%d], vcc' % (sEX, sEX + 1))
    for s_i in range(3):
        for hf in range(2):
            g.e('ds_write_b128 v%d, %s offset:%d' % (vT0, vr(vACC + 8 * s_i + 4 * hf, 4), HP_LDS + s_i * 2048 + hf * 16))
    g.e('s_mov_b64 exec, s[%d:%d]' % (sEX, sEX + 1))
    g.wait_lgkm(0)
    g.e('s_barrier')
    g.e('s_cmp_lg_u32 s%d, 0' % sW)
    g.e('s_cbranch_scc1 %s' % g.endlabel)
    g.c('---- wave 0: final reduce: lane(col=l&15, pg=l>>4)')
    g.e('v_lshlrev_b32 v%d, 9, v%d' % (vT0, vG))
    g.e('v_lshl_add_u32 v%d, v%d, 2, v%d' % (vT0, vL15, vT0))
    R = 64
    for s_i in range(3):
        for k in range(8):
            g.e('ds_read_b32 v%d, v%d offset:%d' % (R + s_i * 8 + k, vT0, HP_LDS + s_i * 2048 + k * 64))
    g.wait_lgkm(0)
    for s_i in range(3):
        b = R + s_i * 8
        for k in range(1, 8):
            g.e('v_add_f32 v%d, v%d, v%d' % (b, b, b + k))
    allreduce_rows(g, 'v_add_f32', [R, R + 8, R + 16], vT1)
    vq, vg_, vu = R, R + 8, R + 16
    g.e('v_cvt_pk_bf16_f32 v%d, v%d, v%d' % (vq, vq, vq))
    round_bf16(g, vg_, vg_)
    round_bf16(g, vu, vu)
    g.c('gelu(g) = g / (1 + exp(-2*beta*(g + kappa g^3)))')
    g.e('v_mul_f32 v%d, v%d, v%d' % (vT1, vg_, vg_))
    g.e('v_mul_f32 v%d, v%d, v%d' % (vT1, vT1, vg_))
    g.e('v_mul_f32 v%d, 0x3d372713, v%d' % (vT1, vT1))
    g.e('v_add_f32 v%d, v%d, v%d' % (vT1, vT1, vg_))
    g.e('v_mul_f32 v%d, 0x3f4c422a, v%d' % (vT1, vT1))
    g.e('v_mul_f32 v%d, 0xc038aa3b, v%d' % (vT1, vT1))
    g.e('v_exp_f32 v%d, v%d' % (vT1, vT1))
    g.e('v_add_f32 v%d, 1.0, v%d' % (vT1, vT1))
    g.e('v_rcp_f32 v%d, v%d' % (vT1, vT1))
    g.e('v_mul_f32 v%d, v%d, v%d' % (vT1, vT1, vg_))
    round_bf16(g, vT1, vT1)
    g.e('v_mul_f32 v%d, v%d, v%d' % (vT1, vT1, vu))
    g.e('v_cvt_pk_bf16_f32 v%d, v%d, v%d' % (vT1, vT1, vT1))
    g.c('stores (lanes 0..15)')
    g.e('s_lshl_b32 s%d, s%d, 11' % (sT1, sKV))
    g.e('s_lshl_b32 s%d, s%d, 5' % (sT2, sU))
    g.e('s_add_u32 s%d, s%d, s%d' % (sT1, sT1, sT2))
    g.e('v_lshlrev_b32 v%d, 1, v%d' % (vT2, vLane))
    g.e('v_add_u32 v%d, s%d, v%d' % (vT3, sT1, vT2))
    g.e('v_add_u32 v%d, s14, v%d' % (vT4, vT2))
    g.e('v_cmp_gt_u32 vcc, 16, v%d' % vLane)
    g.e('s_and_saveexec_b64 s[%d:%d], vcc' % (sEX, sEX + 1))
    g.e('buffer_store_short v%d, v%d, %s, 0 offen offset:%d' % (vq, vT3, srd('ws'), Q_OFF), 'st')
    g.e('s_mov_b32 s%d, %d' % (sT3, H_OFF))
    g.e('buffer_store_short v%d, v%d, %s, s%d offen' % (vT1, vT4, srd('ws'), sT3), 'st')
    g.e('s_mov_b64 exec, s[%d:%d]' % (sEX, sEX + 1))

OP_LDS = 0
HS = 576
WSTR = 8 * HS
ML_LDS = 8 * WSTR
vQ = 16
vS = 32
vK = 64
vV = 192
vB = 240
vM, vLs, vML = 248, 249, 250

def vtile_reg(T):
    return vV + 16 * T if T < 3 else vK + 16 * (T - 3)

def attn_addrs(g):
    g.c('K addr: kv<<24 + (1024u+128w+l15)*256 + g*16')
    g.e('s_lshl_b32 s%d, s%d, 24' % (sT0, sKV))
    g.e('s_lshl_b32 s%d, s%d, 18' % (sT1, sU))
    g.e('s_add_u32 s%d, s%d, s%d' % (sT0, sT0, sT1))
    g.e('s_lshl_b32 s%d, s%d, 15' % (sT1, sW))
    g.e('s_add_u32 s%d, s%d, s%d' % (sT0, sT0, sT1))
    g.e('v_lshlrev_b32 v%d, 8, v%d' % (vT0, vL15))
    g.e('v_lshl_add_u32 v%d, v%d, 4, v%d' % (vT0, vG, vT0))
    g.e('v_add_u32 v%d, s%d, v%d' % (vA0, sT0, vT0))
    g.e('v_lshlrev_b32 v%d, 10, v%d' % (vT0, vG))
    g.e('v_lshl_add_u32 v%d, v%d, 4, v%d' % (vT0, vL15, vT0))
    g.e('v_add_u32 v%d, s%d, v%d' % (vA1, sT0, vT0))

def load_ktile(g, T, nt=''):
    g.e('s_mov_b32 s%d, %d' % (sT3, T * 4096))
    for j in range(4):
        g.e('buffer_load_dwordx4 %s, v%d, %s, s%d offen offset:%d%s' % (vr(vK + 16 * T + 4 * j, 4), vA0, srd('K'), sT3, 64 * j, nt), 'K%d' % T)

def load_vtile(g, T, nt=''):
    g.e('s_mov_b32 s%d, %d' % (sT3, T * 4096))
    b = vtile_reg(T)
    for r in range(4):
        g.e('buffer_load_dwordx4 %s, v%d, %s, s%d offen offset:%d%s' % (vr(b + 4 * r, 4), vA1, srd('V'), sT3, 256 * r, nt), 'V%d' % T)

def load_q(g, flags=''):
    g.c('Q frag: Q_OFF + (kv*1024 + eta(n)*128 + 8g)*2 + 64j ; eta(n) = (n>>2) + 4*((n>>1)&1)')
    g.e('v_lshrrev_b32 v%d, 2, v%d' % (vT0, vL15))
    g.e('v_bfe_u32 v%d, v%d, 1, 1' % (vT1, vL15))
    g.e('v_lshl_add_u32 v%d, v%d, 2, v%d' % (vT0, vT1, vT0))
    g.e('v_lshlrev_b32 v%d, 8, v%d' % (vT1, vT0))
    g.e('v_lshl_add_u32 v%d, v%d, 4, v%d' % (vT1, vG, vT1))
    g.e('s_lshl_b32 s%d, s%d, 11' % (sT1, sKV))
    g.e('v_add_u32 v%d, s%d, v%d' % (vA2, sT1, vT1))
    for j in range(4):
        g.e('buffer_load_dwordx4 %s, v%d, %s, 0 offen offset:%d%s' % (vr(vQ + 4 * j, 4), vA2, srd('ws'), Q_OFF + 64 * j, flags), 'Q')

def qk_tile(g, T):
    s = vS + 4 * T
    for j in range(4):
        g.e('v_mfma_f32_16x16x32_bf16 %s, %s, %s, %s' % (vr(s, 4), vr(vK + 16 * T + 4 * j, 4), vr(vQ + 4 * j, 4), '0' if j == 0 else vr(s, 4)))

def score_tile(g, T):
    s = vS + 4 * T
    g.e('v_cvt_pk_bf16_f32 v%d, v%d, v%d' % (vT0, s, s + 1))
    g.e('v_cvt_pk_bf16_f32 v%d, v%d, v%d' % (vT1, s + 2, s + 3))
    g.e('v_lshlrev_b32 v%d, 16, v%d' % (s, vT0))
    g.e('v_and_b32 v%d, s%d, v%d' % (s + 1, sHI, vT0))
    g.e('v_lshlrev_b32 v%d, 16, v%d' % (s + 2, vT1))
    g.e('v_and_b32 v%d, s%d, v%d' % (s + 3, sHI, vT1))
    for k in range(4):
        g.e('v_mul_f32 v%d, s%d, v%d' % (s + k, sSCALE, s + k))
    g.e('v_cvt_pk_bf16_f32 v%d, v%d, v%d' % (vT0, s, s + 1))
    g.e('v_cvt_pk_bf16_f32 v%d, v%d, v%d' % (vT1, s + 2, s + 3))
    g.e('v_lshlrev_b32 v%d, 16, v%d' % (s, vT0))
    g.e('v_and_b32 v%d, s%d, v%d' % (s + 1, sHI, vT0))
    g.e('v_lshlrev_b32 v%d, 16, v%d' % (s + 2, vT1))
    g.e('v_and_b32 v%d, s%d, v%d' % (s + 3, sHI, vT1))
    if T == 0:
        g.e('v_max_f32 v%d, v%d, v%d' % (vM, s, s + 1))
    else:
        g.e('v_max3_f32 v%d, v%d, v%d, v%d' % (vM, vM, s, s + 1))
    g.e('v_max3_f32 v%d, v%d, v%d, v%d' % (vM, vM, s + 2, s + 3))

def softmax_all(g):
    allreduce_rows(g, 'v_max_f32', [vM], vT0)
    g.e('v_mul_f32 v%d, s%d, v%d' % (vML, sL2E, vM))
    for i in range(32):
        s = vS + i
        g.e('v_fma_f32 v%d, v%d, s%d, -v%d' % (s, s, sL2E, vML))
    for i in range(32):
        s = vS + i
        g.e('v_exp_f32 v%d, v%d' % (s, s))
    g.e('v_add_f32 v%d, v%d, v%d' % (vLs, vS, vS + 1))
    for i in range(2, 32):
        g.e('v_add_f32 v%d, v%d, v%d' % (vLs, vLs, vS + i))
    for i in range(32):
        s = vS + i
        g.e('v_cvt_pk_bf16_f32 v%d, v%d, v%d' % (s, s, s))
    allreduce_rows(g, 'v_add_f32', [vLs], vT0)

def pv_tile(g, T):
    vb = vtile_reg(T)
    for r in range(4):
        p = vS + 4 * T + r
        bb = vB + 4 * (r & 1)
        for u in range(2):
            q = 2 * u
            g.e('v_and_b32_dpp v%d, v%d, v%d quad_perm:[%d,%d,%d,%d] row_mask:0xf bank_mask:0xf' % (bb + 2 * u, p, vMask0, q, q, q, q))
            g.e('v_and_b32_dpp v%d, v%d, v%d quad_perm:[%d,%d,%d,%d] row_mask:0xf bank_mask:0xf' % (bb + 2 * u + 1, p, vMask1, q, q, q, q))
        for u in range(2):
            for a in range(2):
                acc = vQ + 4 * (2 * u + a)
                first = (T == 0 and r == 0)
                g.e('v_mfma_f32_16x16x16_bf16 %s, %s, %s, %s' % (vr(acc, 4), vr(vb + 4 * r + 2 * a, 2), vr(bb + 2 * u, 2), '0' if first else vr(acc, 4)))

def attn_combine(g, stflags=''):
    g.c('write O partials to LDS: w*WSTR + (4u+hq)*HS + ((2g+a)*4+e0)*16')
    g.e('v_lshrrev_b32 v%d, 2, v%d' % (vT0, vL15))
    g.e('v_and_b32 v%d, 3, v%d' % (vT1, vLane))
    g.e('s_mul_i32 s%d, s%d, %d' % (sT0, sW, WSTR))
    g.e('v_mul_u32_u24 v%d, %d, v%d' % (vT0, HS, vT0))
    g.e('v_lshlrev_b32 v%d, 7, v%d' % (vT2, vG))
    g.e('v_lshl_add_u32 v%d, v%d, 4, v%d' % (vT2, vT1, vT2))
    g.e('v_add3_u32 v%d, v%d, v%d, s%d' % (vT0, vT0, vT2, sT0))
    for u in range(2):
        for a in range(2):
            g.e('ds_write_b128 v%d, %s offset:%d' % (vT0, vr(vQ + 4 * (2 * u + a), 4), OP_LDS + u * 4 * HS + a * 64))
    g.c('m,l: lanes g==0 and (n&1)==0 -> ML_LDS + (w*8+eta)*8')
    g.e('v_lshrrev_b32 v%d, 2, v%d' % (vT0, vL15))
    g.e('v_bfe_u32 v%d, v%d, 1, 1' % (vT1, vL15))
    g.e('v_lshl_add_u32 v%d, v%d, 2, v%d' % (vT0, vT1, vT0))
    g.e('s_lshl_b32 s%d, s%d, 6' % (sT0, sW))
    g.e('v_lshlrev_b32 v%d, 3, v%d' % (vT0, vT0))
    g.e('v_add_u32 v%d, s%d, v%d' % (vT0, sT0, vT0))
    g.e('v_and_b32 v%d, 0x31, v%d' % (vT1, vLane))
    g.e('v_cmp_eq_u32 vcc, 0, v%d' % vT1)
    g.e('s_and_saveexec_b64 s[%d:%d], vcc' % (sEX, sEX + 1))
    g.e('ds_write_b64 v%d, %s offset:%d' % (vT0, vr(vM, 2), ML_LDS))
    g.e('s_mov_b64 exec, s[%d:%d]' % (sEX, sEX + 1))
    g.wait_lgkm(0)
    g.e('s_barrier')
    g.c('wave w combines head w')
    R = 64
    RM = 80
    g.e('s_mul_i32 s%d, s%d, %d' % (sT0, sW, HS))
    g.e('v_lshlrev_b32 v%d, 3, v%d' % (vT0, vLane))
    g.e('v_add_u32 v%d, s%d, v%d' % (vT0, sT0, vT0))
    g.e('s_lshl_b32 s%d, s%d, 3' % (sT1, sW))
    g.e('v_mov_b32 v%d, s%d' % (vT1, sT1))
    for w in range(8):
        g.e('ds_read_b64 %s, v%d offset:%d' % (vr(RM + 2 * w, 2), vT1, ML_LDS + w * 64))
    for w in range(8):
        g.e('ds_read_b64 %s, v%d offset:%d' % (vr(R + 2 * w, 2), vT0, OP_LDS + w * WSTR))
    g.wait_lgkm(8)
    g.e('v_max3_f32 v%d, v%d, v%d, v%d' % (vM, RM, RM + 2, RM + 4))
    g.e('v_max3_f32 v%d, v%d, v%d, v%d' % (vM, vM, RM + 6, RM + 8))
    g.e('v_max3_f32 v%d, v%d, v%d, v%d' % (vM, vM, RM + 10, RM + 12))
    g.e('v_max_f32 v%d, v%d, v%d' % (vM, vM, RM + 14))
    for w in range(8):
        g.e('v_sub_f32 v%d, v%d, v%d' % (RM + 2 * w, RM + 2 * w, vM))
    for w in range(8):
        g.e('v_mul_f32 v%d, s%d, v%d' % (RM + 2 * w, sL2E, RM + 2 * w))
    for w in range(8):
        g.e('v_exp_f32 v%d, v%d' % (RM + 2 * w, RM + 2 * w))
    g.e('v_mul_f32 v%d, v%d, v%d' % (vLs, RM, RM + 1))
    for w in range(1, 8):
        g.e('v_fmac_f32 v%d, v%d, v%d' % (vLs, RM + 2 * w, RM + 2 * w + 1))
    g.wait_lgkm(0)
    g.e('v_mul_f32 v%d, v%d, v%d' % (vT2, RM, R))
    g.e('v_mul_f32 v%d, v%d, v%d' % (vT3, RM, R + 1))
    for w in range(1, 8):
        g.e('v_fmac_f32 v%d, v%d, v%d' % (vT2, RM + 2 * w, R + 2 * w))
        g.e('v_fmac_f32 v%d, v%d, v%d' % (vT3, RM + 2 * w, R + 2 * w + 1))
    g.c('store: O_OFF + ((8kv+w)*64+u)*512 + 8l ; ML_OFF + ((8kv+w)*64+u)*8')
    g.e('s_lshl_b32 s%d, s%d, 3' % (sT0, sKV))
    g.e('s_add_u32 s%d, s%d, s%d' % (sT0, sT0, sW))
    g.e('s_lshl_b32 s%d, s%d, 6' % (sT0, sT0))
    g.e('s_add_u32 s%d, s%d, s%d' % (sT0, sT0, sU))
    g.e('s_lshl_b32 s%d, s%d, 9' % (sT1, sT0))
    g.e('s_add_u32 s%d, s%d, %d' % (sT1, sT1, O_OFF))
    g.e('s_lshl_b32 s%d, s%d, 3' % (sT2, sT0))
    g.e('s_add_u32 s%d, s%d, %d' % (sT2, sT2, ML_OFF))
    g.e('v_lshlrev_b32 v%d, 3, v%d' % (vT0, vLane))
    g.e('buffer_store_dwordx2 %s, v%d, %s, s%d offen%s' % (vr(vT2, 2), vT0, srd('ws'), sT1, stflags), 'st')
    g.e('v_cmp_eq_u32 vcc, 0, v%d' % vLane)
    g.e('s_and_saveexec_b64 s[%d:%d], vcc' % (sEX, sEX + 1))
    g.e('buffer_store_dwordx2 %s, v%d, %s, s%d offen%s' % (vr(vM, 2), vT0, srd('ws'), sT2, stflags), 'st')
    g.e('s_mov_b64 exec, s[%d:%d]' % (sEX, sEX + 1))

def attn(g, nt=''):
    make_masks(g)
    attn_addrs(g)
    load_q(g)
    for T in range(8): load_ktile(g, T, nt)
    for T in range(3): load_vtile(g, T, nt)
    g.wait_vm('Q')
    for T in range(8):
        g.wait_vm('K%d' % T)
        qk_tile(g, T)
        if T > 0: score_tile(g, T - 1)
        if T < 5:
            load_vtile(g, T + 3, nt)
    score_tile(g, 7)
    softmax_all(g)
    for T in range(8):
        g.wait_vm('V%d' % T)
        pv_tile(g, T)
    attn_combine(g)

RED_LDS = 0
OD_LDS = 4096
RED2_LDS = 8192
vWO = 144
vWD = 160
vHD = 176
vPO = 180
vPM = 196
vOD = 200
vAC = 208

def tail_wloads(g, nt=''):
    g.c('wo: row = 128h+16w+4jj+g ; voff = row*2048 + b*256 + c*16')
    g.e('s_lshl_b32 s%d, s%d, 7' % (sT0, sH))
    g.e('s_lshl_b32 s%d, s%d, 4' % (sT1, sW))
    g.e('s_add_u32 s%d, s%d, s%d' % (sT0, sT0, sT1))
    g.e('s_lshl_b32 s%d, s%d, 11' % (sT0, sT0))
    g.e('s_lshl_b32 s%d, s%d, 8' % (sT2, sB))
    g.e('s_add_u32 s%d, s%d, s%d' % (sT0, sT0, sT2))
    g.e('v_lshlrev_b32 v%d, 11, v%d' % (vT0, vG))
    g.e('v_lshl_add_u32 v%d, v%d, 4, v%d' % (vT0, vL15, vT0))
    g.e('v_add_u32 v%d, s%d, v%d' % (vA2, sT0, vT0))
    for jj in range(4):
        g.e('s_mov_b32 s%d, %d' % (sT3, jj * 8192))
        g.e('buffer_load_dwordx4 %s, v%d, %s, s%d offen%s' % (vr(vWO + 4 * jj, 4), vA2, srd('wo'), sT3, nt), 'wo')
    g.c('wd: row = 112h+16w+4jj+g (w<7)')
    g.e('s_mul_i32 s%d, s%d, 112' % (sT0, sH))
    g.e('s_add_u32 s%d, s%d, s%d' % (sT0, sT0, sT1))
    g.e('s_mov_b32 s15, s%d' % sT0)
    g.e('s_lshl_b32 s%d, s%d, 11' % (sT0, sT0))
    g.e('s_add_u32 s%d, s%d, s%d' % (sT0, sT0, sT2))
    g.e('s_cmp_eq_u32 s%d, 7' % sW)
    g.e('s_cselect_b32 s%d, 0x40000000, s%d' % (sT0, sT0))
    g.e('v_add_u32 v%d, s%d, v%d' % (vA3, sT0, vT0))
    for jj in range(4):
        g.e('s_mov_b32 s%d, %d' % (sT3, jj * 8192))
        g.e('buffer_load_dwordx4 %s, v%d, %s, s%d offen%s' % (vr(vWD + 4 * jj, 4), vA3, srd('wd'), sT3, nt), 'wd')

def tail_hload(g, flags=''):
    g.c('h gather: H_OFF + (112h+16w+g)*2 + 8jj')
    g.e('s_lshl_b32 s%d, s15, 1' % sT0)
    g.e('s_add_u32 s%d, s%d, %d' % (sT0, sT0, H_OFF))
    g.e('s_cmp_eq_u32 s%d, 7' % sW)
    g.e('s_cselect_b32 s%d, 0x40000000, s%d' % (sT0, sT0))
    g.e('v_lshlrev_b32 v%d, 1, v%d' % (vT0, vG))
    g.e('v_add_u32 v%d, s%d, v%d' % (vT0, sT0, vT0))
    for jj in range(4):
        g.e('buffer_load_ushort v%d, v%d, %s, 0 offen offset:%d%s' % (vHD + jj, vT0, srd('ws'), 8 * jj, flags), 'h')

def tail_pload(g, flags=''):
    g.c('ml: ML_OFF + (h*64+lane)*8 ; O: O_OFF + (h*64+8w+(l>>5))*512 + (l&31)*16 + i*1024')
    g.e('s_lshl_b32 s%d, s%d, 9' % (sT0, sH))
    g.e('s_add_u32 s%d, s%d, %d' % (sT0, sT0, ML_OFF))
    g.e('v_lshlrev_b32 v%d, 3, v%d' % (vT0, vLane))
    g.e('buffer_load_dwordx2 %s, v%d, %s, s%d offen%s' % (vr(vPM, 2), vT0, srd('ws'), sT0, flags), 'pm')
    g.e('s_lshl_b32 s%d, s%d, 15' % (sT0, sH))
    g.e('s_lshl_b32 s%d, s%d, 12' % (sT1, sW))
    g.e('s_add_u32 s%d, s%d, s%d' % (sT0, sT0, sT1))
    g.e('s_add_u32 s%d, s%d, %d' % (sT0, sT0, O_OFF))
    g.e('v_lshlrev_b32 v%d, 4, v%d' % (vT1, vLane))
    for i in range(4):
        g.e('buffer_load_dwordx4 %s, v%d, %s, s%d offen offset:%d%s' % (vr(vPO + 4 * i, 4), vT1, srd('ws'), sT0, 1024 * i, flags), 'po')

def tail1_compute(g, stflags=''):
    vWt = vT4; vLsum = vT5
    g.e('v_mov_b32 v%d, v%d' % (vT2, vPM))
    allreduce_inrow(g, 'v_max_f32', [vT2], [8, 4, 2, 1])
    allreduce_rows(g, 'v_max_f32', [vT2], vT3)
    g.e('v_sub_f32 v%d, v%d, v%d' % (vWt, vPM, vT2))
    g.e('v_mul_f32 v%d, s%d, v%d' % (vWt, sL2E, vWt))
    g.e('v_exp_f32 v%d, v%d' % (vWt, vWt))
    g.e('v_mul_f32 v%d, v%d, v%d' % (vLsum, vWt, vPM + 1))
    allreduce_inrow(g, 'v_add_f32', [vLsum], [8, 4, 2, 1])
    allreduce_rows(g, 'v_add_f32', [vLsum], vT3)
    g.c('weights for my splits: idx = (8w + 2i + (l>>5))*4')
    g.e('v_lshrrev_b32 v%d, 5, v%d' % (vT0, vLane))
    g.e('s_lshl_b32 s%d, s%d, 3' % (sT0, sW))
    g.e('v_add_lshl_u32 v%d, v%d, s%d, 2' % (vT0, vT0, sT0))
    W4 = vOD
    for i in range(4):
        if i: g.e('v_add_u32 v%d, 8, v%d' % (vT0, vT0))
        g.e('ds_bpermute_b32 v%d, v%d, v%d' % (W4 + i, vT0, vWt))
    g.wait_lgkm(0)
    g.wait_vm('po')
    A = vAC
    for k in range(4):
        g.e('v_mul_f32 v%d, v%d, v%d' % (A + k, W4, vPO + k))
    for i in range(1, 4):
        for k in range(4):
            g.e('v_fmac_f32 v%d, v%d, v%d' % (A + k, W4 + i, vPO + 4 * i + k))
    for k in range(4):
        g.e('v_mov_b32 v%d, v%d' % (vT0, A + k))
        g.e('v_permlane32_swap_b32 v%d, v%d' % (A + k, vT0))
        g.e('v_add_f32 v%d, v%d, v%d' % (A + k, A + k, vT0))
    g.e('s_lshl_b32 s%d, s%d, 9' % (sT0, sW))
    g.e('v_lshlrev_b32 v%d, 4, v%d' % (vT0, vLane))
    g.e('v_add_u32 v%d, s%d, v%d' % (vT0, sT0, vT0))
    g.e('v_cmp_gt_u32 vcc, 32, v%d' % vLane)
    g.e('s_and_saveexec_b64 s[%d:%d], vcc' % (sEX, sEX + 1))
    g.e('ds_write_b128 v%d, %s offset:%d' % (vT0, vr(A, 4), RED_LDS))
    g.e('s_mov_b64 exec, s[%d:%d]' % (sEX, sEX + 1))
    g.wait_lgkm(0)
    g.e('s_barrier')
    lab = g.newlabel('t1skip')
    g.e('s_cmp_ge_u32 s%d, 2' % sW)
    g.e('s_cbranch_scc1 %s' % lab)
    g.c('threads 0..127: p = tid')
    g.e('v_lshlrev_b32 v%d, 2, v0' % vT0)
    for w in range(8):
        g.e('ds_read_b32 v%d, v%d offset:%d' % (A + w, vT0, RED_LDS + 512 * w))
    g.e('v_rcp_f32 v%d, v%d' % (vT1, vLsum))
    g.c('d = 32(p>>5) + 8(p&3) + 4((p>>4)&1) + ((p>>2)&3); pos = 16(d>>4) + 4(d&3) + ((d>>2)&3)')
    g.e('v_and_b32 v%d, 0x6c, v0' % vT2)
    g.e('v_bfe_u32 v%d, v0, 1, 1' % vT3)
    g.e('v_lshl_or_b32 v%d, v%d, 4, v%d' % (vT2, vT3, vT2))
    g.e('v_and_b32 v%d, 1, v0' % vT3)
    g.e('v_lshl_or_b32 v%d, v%d, 1, v%d' % (vT2, vT3, vT2))
    g.e('v_bfe_u32 v%d, v0, 4, 1' % vT3)
    g.e('v_or_b32 v%d, v%d, v%d' % (vT2, vT2, vT3))
    g.e('v_lshlrev_b32 v%d, 2, v%d' % (vT2, vT2))
    g.wait_lgkm(0)
    for w in range(1, 8):
        g.e('v_add_f32 v%d, v%d, v%d' % (A, A, A + w))
    g.e('v_mul_f32 v%d, v%d, v%d' % (vT0, A, vT1))
    g.e('v_fma_f32 v%d, -v%d, v%d, v%d' % (vT3, vT0, vLsum, A))
    g.e('v_fma_f32 v%d, v%d, v%d, v%d' % (vT0, vT3, vT1, vT0))
    g.e('v_cvt_pk_bf16_f32 v%d, v%d, v%d' % (vT0, vT0, vT0))
    g.e('ds_write_b32 v%d, v%d offset:%d' % (vT2, vT0, OD_LDS))
    g.wait_lgkm(0)
    g.label(lab)
    g.e('s_barrier')
    g.e('s_lshl_b32 s%d, s%d, 6' % (sT0, sW))
    g.e('v_lshlrev_b32 v%d, 4, v%d' % (vT0, vG))
    g.e('v_add_u32 v%d, s%d, v%d' % (vT0, sT0, vT0))
    g.e('ds_read_b128 %s, v%d offset:%d' % (vr(vOD, 4), vT0, OD_LDS))
    g.wait_vm('h')
    for jj in range(4):
        g.e('v_lshl_or_b32 v%d, v%d, 16, v%d' % (vHD + jj, vHD + jj, vHD + jj))
    g.wait_vm('wd')
    g.wait_lgkm(0)
    for ab, (vec, W) in enumerate(((vOD, vWO), (vHD, vWD))):
        for jj in range(4):
            bb = vB + 2 * (jj & 1)
            g.e('v_and_b32 v%d, v%d, v%d' % (bb, vec + jj, vMask0))
            g.e('v_and_b32 v%d, v%d, v%d' % (bb + 1, vec + jj, vMask1))
            for a in range(2):
                acc = vAC + 8 * ab + 4 * a
                g.e('v_mfma_f32_16x16x16_bf16 %s, %s, %s, %s' % (vr(acc, 4), vr(W + 4 * jj + 2 * a, 2), vr(bb, 2), '0' if jj == 0 else vr(acc, 4)))
    g.c('write red2: (w*2+ab)*512 + ((2g+a)*4+e0)*16, lanes n<4')
    g.e('s_lshl_b32 s%d, s%d, 10' % (sT0, sW))
    g.e('v_lshlrev_b32 v%d, 7, v%d' % (vT0, vG))
    g.e('v_lshl_add_u32 v%d, v%d, 4, v%d' % (vT0, vL15, vT0))
    g.e('v_add_u32 v%d, s%d, v%d' % (vT0, sT0, vT0))
    g.e('v_cmp_gt_u32 vcc, 4, v%d' % vL15)
    g.e('s_and_saveexec_b64 s[%d:%d], vcc' % (sEX, sEX + 1))
    for ab in range(2):
        for a in range(2):
            g.e('ds_write_b128 v%d, %s offset:%d' % (vT0, vr(vAC + 8 * ab + 4 * a, 4), RED2_LDS + ab * 512 + a * 64))
    g.e('s_mov_b64 exec, s[%d:%d]' % (sEX, sEX + 1))
    g.wait_lgkm(0)
    g.e('s_barrier')
    lab2 = g.newlabel('t1skip2')
    g.e('s_cmp_ge_u32 s%d, 4' % sW)
    g.e('s_cbranch_scc1 %s' % lab2)
    g.c('threads 0..255: ab = t>>7, p = t&127')
    g.e('v_lshlrev_b32 v%d, 2, v0' % vT0)
    for w in range(8):
        g.e('ds_read_b32 v%d, v%d offset:%d' % (vPO + w, vT0, RED2_LDS + 1024 * w))
    g.e('v_and_b32 v%d, 0xe0, v0' % vT2)
    g.e('v_and_b32 v%d, 3, v0' % vT3)
    g.e('v_lshl_or_b32 v%d, v%d, 3, v%d' % (vT2, vT3, vT2))
    g.e('v_bfe_u32 v%d, v0, 4, 1' % vT3)
    g.e('v_lshl_or_b32 v%d, v%d, 2, v%d' % (vT2, vT3, vT2))
    g.e('v_bfe_u32 v%d, v0, 2, 2' % vT3)
    g.e('v_or_b32 v%d, v%d, v%d' % (vT2, vT2, vT3))
    g.e('v_lshlrev_b32 v%d, 2, v%d' % (vT2, vT2))
    g.e('s_lshl_b32 s%d, s%d, 5' % (sT0, sB))
    g.e('s_add_u32 s%d, s%d, s%d' % (sT0, sT0, sH))
    g.e('s_lshl_b32 s%d, s%d, 10' % (sT0, sT0))
    g.e('s_add_u32 s%d, s%d, 0x%x' % (sT0, sT0, P2_OFF))
    g.wait_lgkm(0)
    for w in range(1, 8):
        g.e('v_add_f32 v%d, v%d, v%d' % (vPO, vPO, vPO + w))
    g.e('buffer_store_dword v%d, v%d, %s, s%d offen%s' % (vPO, vT2, srd('ws'), sT0, stflags), 'st')
    g.label(lab2)

def tail1(g):
    make_masks(g)
    tail_pload(g)
    tail_wloads(g)
    tail_hload(g)
    g.wait_vm('pm')
    tail1_compute(g)

def tail2_load(g, flags=''):
    g.c('lane(h2=l&31, ab=l>>5): P2_OFF + (((b*32+h2)*2+ab)*128 + 4h)*4')
    g.e('v_and_b32 v%d, 31, v%d' % (vT0, vLane))
    g.e('v_lshrrev_b32 v%d, 5, v%d' % (vT1, vLane))
    g.e('v_lshlrev_b32 v%d, 10, v%d' % (vT0, vT0))
    g.e('v_lshl_add_u32 v%d, v%d, 9, v%d' % (vA0, vT1, vT0))
    g.e('s_lshl_b32 s%d, s%d, 15' % (sT0, sB))
    g.e('s_lshl_b32 s%d, s%d, 4' % (sT1, sH))
    g.e('s_add_u32 s%d, s%d, s%d' % (sT0, sT0, sT1))
    g.e('s_add_u32 s%d, s%d, 0x%x' % (sT0, sT0, P2_OFF))
    g.e('buffer_load_dwordx4 %s, v%d, %s, s%d offen%s' % (vr(64, 4), vA0, srd('ws'), sT0, flags), 'p2')

def tail2_xload(g):
    g.e('s_lshl_b32 s%d, s%d, 8' % (sT1, sB))
    g.e('s_lshl_b32 s%d, s%d, 3' % (sT2, sH))
    g.e('s_add_u32 s%d, s%d, s%d' % (sT1, sT1, sT2))
    g.e('v_mov_b32 v%d, s%d' % (vA1, sT1))
    g.e('buffer_load_dwordx2 %s, v%d, %s, 0 offen' % (vr(72, 2), vA1, srd('x')), 'x2')

def tail2_compute(g):
    R = 64
    regs = [R, R + 1, R + 2, R + 3]
    allreduce_inrow(g, 'v_add_f32', regs, [8, 4, 2, 1])
    for r in regs:
        g.e('v_mov_b32 v%d, v%d' % (vT0, r))
        g.e('v_permlane16_swap_b32 v%d, v%d' % (r, vT0))
        g.e('v_add_f32 v%d, v%d, v%d' % (r, r, vT0))
    for k, r in enumerate(regs):
        g.e('v_mov_b32 v%d, v%d' % (R + 4 + k, r))
        g.e('v_permlane32_swap_b32 v%d, v%d' % (r, R + 4 + k))
    g.wait_vm('x2')
    X = 76
    g.e('v_lshlrev_b32 v%d, 16, v72' % X)
    g.e('v_and_b32 v%d, s%d, v72' % (X + 1, sHI))
    g.e('v_lshlrev_b32 v%d, 16, v73' % (X + 2))
    g.e('v_and_b32 v%d, s%d, v73' % (X + 3, sHI))
    for k in range(4):
        round_bf16(g, R + k, R + k)
        round_bf16(g, R + 4 + k, R + 4 + k)
        g.e('v_add_f32 v%d, v%d, v%d' % (R + k, R + k, X + k))
        round_bf16(g, R + k, R + k)
        g.e('v_add_f32 v%d, v%d, v%d' % (R + k, R + k, R + 4 + k))
    g.e('v_cvt_pk_bf16_f32 v%d, v%d, v%d' % (X, R, R + 1))
    g.e('v_cvt_pk_bf16_f32 v%d, v%d, v%d' % (X + 1, R + 2, R + 3))
    g.e('v_cmp_eq_u32 vcc, 0, v%d' % vLane)
    g.e('s_and_saveexec_b64 s[%d:%d], vcc' % (sEX, sEX + 1))
    g.e('buffer_store_dwordx2 %s, v%d, %s, 0 offen' % (vr(X, 2), vA1, srd('out')), 'st')
    g.e('s_mov_b64 exec, s[%d:%d]' % (sEX, sEX + 1))

def tail2(g):
    tail2_load(g)
    tail2_xload(g)
    g.wait_vm('p2')
    tail2_compute(g)

_lab = [0]
def kernel(name, body, used, nvgpr=256):
    g = Gen()
    g.endlabel = 'L_end_' + name
    def newlabel(p):
        _lab[0] += 1
        return 'L_%s_%d' % (p, _lab[0])
    g.newlabel = newlabel
    g.raw('.globl %s' % name)
    g.raw('.p2align 8')
    g.raw('.type %s,@function' % name)
    g.raw('%s:' % name)
    prologue(g, used)
    body(g)
    g.label(g.endlabel)
    g.e('s_endpgm')
    kd = '''.amdhsa_kernel %s
  .amdhsa_next_free_vgpr %d
  .amdhsa_next_free_sgpr 102
  .amdhsa_accum_offset %d
  .amdhsa_group_segment_fixed_size 0
  .amdhsa_kernarg_size 96
  .amdhsa_user_sgpr_count 2
  .amdhsa_user_sgpr_kernarg_segment_ptr 1
  .amdhsa_system_sgpr_workgroup_id_x 1
  .amdhsa_float_denorm_mode_32 3
  .amdhsa_float_denorm_mode_16_64 3
.end_amdhsa_kernel
''' % (name, nvgpr, nvgpr)
    return g.text(), kd

HEADER = open('cdna_kernels/%s.s.ref' % NAME).read().split('; Override launch')[0]

def main():
    ks = [
        ('head_kernel', head, ['x', 'wq', 'wg', 'wu', 'ws'], 512, 12288),
        ('attn_kernel', attn, ['K', 'V', 'ws'], 512, 40960),
        ('tail1_kernel', tail1, ['wo', 'wd', 'ws'], 512, 20480),
        ('tail2_kernel', tail2, ['x', 'out', 'ws'], 64, 0),
    ]
    out = HEADER
    for n, _, _, blk, lds in ks:
        out += '; @launch kernel=%s grid=(256,1,1) block=(%d,1,1) lds=%d\n' % (n, blk, lds)
    out += '.amdgcn_target "amdgcn-amd-amdhsa--gfx950"\n.text\n'
    kds = ''
    for n, body, used, blk, lds in ks:
        t, kd = kernel(n, body, used)
        out += t
        kds += '.p2align 6\n' + kd
    out += '.section .rodata,"a"\n' + kds
    path = sys.argv[1] if len(sys.argv) > 1 else 'cdna_kernels/%s.s' % NAME
    open(path, 'w').write(out)
    print('wrote', path, len(out))

if __name__ == '__main__':
    main()
```

```python
import sys
sys.path.insert(0, 'gen')
from asmgen import Gen

NAME = 'parallel_sum__gqa_block_cached__geglu_ffn__decode'

Q_OFF = 0
H_OFF = 8192
ML_OFF = 16384
O_OFF = 32768
P2_OFF = 0x110000
WS_BYTES = 268435456

L2E = 0x3fb8aa3b
SCALE = 0x3db504f3

sW, sX8, sJ, sKV, sU, sH, sB = 3, 4, 5, 6, 7, 8, 9
sT0, sT1, sT2, sT3 = 10, 11, 12, 13
SRD = dict(x=40, K=44, V=48, wq=52, wo=56, wg=60, wu=64, wd=68, out=72, dbg=76, ws=80)
PTR = dict(x=16, K=18, V=20, wq=22, wo=24, bx=26, wg=28, wu=30, wd=32, out=34, dbg=36, ws=38)
SIZE = dict(x=2048, K=67108864, V=67108864, wq=8388608, wo=8388608, wg=7340032, wu=7340032,
            wd=7340032, out=2048, dbg=256, ws=WS_BYTES)
sL2E, sSCALE, sHI = 84, 85, 86
sEX = 88
sM0 = 90

def srd(n): return 's[%d:%d]' % (SRD[n], SRD[n] + 3)
def vr(a, n): return 'v[%d:%d]' % (a, a + n - 1)

vLane, vL15, vG, vMask0, vMask1 = 1, 2, 3, 4, 5
vA0, vA1, vA2, vA3 = 6, 7, 8, 9
vT0, vT1, vT2, vT3, vT4, vT5 = 10, 11, 12, 13, 14, 15

def prologue(g, used):
    g.e('s_cmp_ge_u32 s2, 256')
    g.e('s_cbranch_scc1 %s' % g.endlabel)
    g.e('s_load_dwordx16 s[16:31], s[0:1], 0')
    g.e('s_load_dwordx8 s[32:39], s[0:1], 64')
    g.e('s_and_b32 s%d, s2, 7' % sX8)
    g.e('s_lshr_b32 s%d, s2, 3' % sJ)
    g.e('s_lshr_b32 s%d, s%d, 3' % (sKV, sJ))
    g.e('s_and_b32 s%d, s%d, 7' % (sB, sJ))
    g.e('s_lshl_b32 s%d, s%d, 3' % (sU, sX8))
    g.e('s_add_u32 s%d, s%d, s%d' % (sU, sU, sB))
    g.e('s_lshl_b32 s%d, s%d, 3' % (sH, sKV))
    g.e('s_add_u32 s%d, s%d, s%d' % (sH, sH, sX8))
    g.e('v_lshrrev_b32 v%d, 6, v0' % vT0)
    g.e('v_and_b32 v%d, 63, v0' % vLane)
    g.e('v_readfirstlane_b32 s%d, v%d' % (sW, vT0))
    g.e('v_and_b32 v%d, 15, v0' % vL15)
    g.e('v_lshrrev_b32 v%d, 4, v%d' % (vG, vLane))
    g.e('s_mov_b32 s%d, 0x%x' % (sL2E, L2E))
    g.e('s_mov_b32 s%d, 0x%x' % (sSCALE, SCALE))
    g.e('s_mov_b32 s%d, 0xffff0000' % sHI)
    g.e('s_waitcnt lgkmcnt(0)')
    for n in used:
        b = SRD[n]; p = PTR[n]
        g.e('s_mov_b32 s%d, s%d' % (b, p))
        g.e('s_and_b32 s%d, s%d, 0xffff' % (b + 1, p + 1))
        g.e('s_mov_b32 s%d, 0x%x' % (b + 2, SIZE[n]))
        g.e('s_mov_b32 s%d, 0x20000' % (b + 3))

def make_masks(g):
    g.e('v_and_b32 v%d, 3, v%d' % (vT0, vLane))
    g.e('v_and_b32 v%d, 1, v%d' % (vT1, vLane))
    g.e('v_lshlrev_b32 v%d, 4, v%d' % (vT1, vT1))
    g.e('v_mov_b32 v%d, 0xffff' % vT2)
    g.e('v_lshlrev_b32 v%d, v%d, v%d' % (vT2, vT1, vT2))
    g.e('v_cmp_gt_u32 vcc, 2, v%d' % vT0)
    g.e('v_cndmask_b32 v%d, 0, v%d, vcc' % (vMask0, vT2))
    g.e('v_cndmask_b32 v%d, v%d, 0, vcc' % (vMask1, vT2))

def allreduce_rows(g, op, regs, tmp):
    for r in regs:
        g.e('v_mov_b32 v%d, v%d' % (tmp, r))
        g.e('v_permlane16_swap_b32 v%d, v%d' % (r, tmp))
        g.e('%s v%d, v%d, v%d' % (op, r, r, tmp))
        g.e('v_mov_b32 v%d, v%d' % (tmp, r))
        g.e('v_permlane32_swap_b32 v%d, v%d' % (r, tmp))
        g.e('%s v%d, v%d, v%d' % (op, r, r, tmp))

def allreduce_inrow(g, op, regs, rors):
    for ro in rors:
        for r in regs:
            g.e('%s_dpp v%d, v%d, v%d row_ror:%d row_mask:0xf bank_mask:0xf' % (op, r, r, r, ro))

def round_bf16(g, dst, src, tmp=None):
    g.e('v_cvt_pk_bf16_f32 v%d, v%d, v%d' % (dst, src, src))
    g.e('v_and_b32 v%d, s%d, v%d' % (dst, sHI, dst))

XN_LDS = 0
HP_LDS = 4096
def head(g):
    vX = 224
    vXF = 232
    vWQ = 16
    vWG = 192
    vWU = 208
    vACC = 32
    vXN = 56
    g.c('x loads')
    g.e('v_lshlrev_b32 v%d, 5, v%d' % (vA0, vLane))
    g.e('buffer_load_dwordx4 %s, v%d, %s, 0 offen' % (vr(vX, 4), vA0, srd('x')), 'x')
    g.e('buffer_load_dwordx4 %s, v%d, %s, 0 offen offset:16' % (vr(vX + 4, 4), vA0, srd('x')), 'x')
    g.c('wq loads: voff = (128w+4rho)*8192 + kv*2048 + u*32 + c*16')
    g.e('v_lshrrev_b32 v%d, 1, v%d' % (vT0, vLane))
    g.e('v_and_b32 v%d, 1, v%d' % (vT1, vLane))
    g.e('v_lshlrev_b32 v%d, 2, v%d' % (vT0, vT0))
    g.e('s_lshl_b32 s%d, s%d, 7' % (sT0, sW))
    g.e('v_add_u32 v%d, s%d, v%d' % (vT0, sT0, vT0))
    g.e('v_lshlrev_b32 v%d, 4, v%d' % (vT1, vT1))
    g.e('s_lshl_b32 s%d, s%d, 11' % (sT1, sKV))
    g.e('s_lshl_b32 s%d, s%d, 5' % (sT2, sU))
    g.e('s_add_u32 s%d, s%d, s%d' % (sT1, sT1, sT2))
    g.e('v_lshlrev_b32 v%d, 13, v%d' % (vA1, vT0))
    g.e('v_add3_u32 v%d, v%d, v%d, s%d' % (vA1, vA1, vT1, sT1))
    for i in range(4):
        g.e('s_mov_b32 s%d, %d' % (sT3, i * 8192))
        g.e('buffer_load_dwordx4 %s, v%d, %s, s%d offen' % (vr(vWQ + 4 * i, 4), vA1, srd('wq'), sT3), 'wq')
    g.c('gate/up loads: voff = row0*7168 + tau*32 + c*16 ; tau = 28*x8 + j (j<28) else OOB')
    g.e('s_mul_i32 s%d, s%d, 28' % (sT1, sX8))
    g.e('s_add_u32 s%d, s%d, s%d' % (sT1, sT1, sJ))
    g.e('s_lshl_b32 s%d, s%d, 5' % (sT1, sT1))
    g.e('s_cmp_ge_u32 s%d, 28' % sJ)
    g.e('s_cselect_b32 s%d, 0x40000000, s%d' % (sT1, sT1))
    g.e('s_mov_b32 s%d, 7168' % sT2)
    g.e('v_mul_lo_u32 v%d, v%d, s%d' % (vA2, vT0, sT2))
    g.e('v_add3_u32 v%d, v%d, v%d, s%d' % (vA2, vA2, vT1, sT1))
    for i in range(4):
        g.e('s_mov_b32 s%d, %d' % (sT3, i * 7168))
        g.e('buffer_load_dwordx4 %s, v%d, %s, s%d offen' % (vr(vWG + 4 * i, 4), vA2, srd('wg'), sT3), 'wg')
        g.e('buffer_load_dwordx4 %s, v%d, %s, s%d offen' % (vr(vWU + 4 * i, 4), vA2, srd('wu'), sT3), 'wu')
    g.e('s_mov_b32 s%d, s%d' % (14, sT1))
    g.c('xn read address')
    g.e('v_lshlrev_b32 v%d, 2, v%d' % (vA3, vT0))
    g.c('---- layernorm')
    g.wait_vm('x')
    for k in range(8):
        g.e('v_lshlrev_b32 v%d, 16, v%d' % (vXF + 2 * k, vX + k))
        g.e('v_and_b32 v%d, s%d, v%d' % (vXF + 2 * k + 1, sHI, vX + k))
    g.e('v_add_f32 v%d, v%d, v%d' % (vT2, vXF, vXF + 1))
    for k in range(2, 16):
        g.e('v_add_f32 v%d, v%d, v%d' % (vT2, vT2, vXF + k))
    allreduce_inrow(g, 'v_add_f32', [vT2], [8, 4, 2, 1])
    allreduce_rows(g, 'v_add_f32', [vT2], vT3)
    g.e('v_mul_f32 v%d, 0x3a800000, v%d' % (vT2, vT2))
    g.e('v_sub_f32 v%d, v%d, v%d' % (vT3, vXF, vT2))
    g.e('v_mul_f32 v%d, v%d, v%d' % (vT4, vT3, vT3))
    for k in range(1, 16):
        g.e('v_sub_f32 v%d, v%d, v%d' % (vT3, vXF + k, vT2))
        g.e('v_fmac_f32 v%d, v%d, v%d' % (vT4, vT3, vT3))
    allreduce_inrow(g, 'v_add_f32', [vT4], [8, 4, 2, 1])
    allreduce_rows(g, 'v_add_f32', [vT4], vT3)
    g.e('v_mul_f32 v%d, 0x3a800000, v%d' % (vT4, vT4))
    round_bf16(g, vT2, vT2)
    round_bf16(g, vT4, vT4)
    g.e('v_add_f32 v%d, 0x3727c5ac, v%d' % (vT4, vT4))
    round_bf16(g, vT4, vT4)
    g.e('v_sqrt_f32 v%d, v%d' % (vT4, vT4))
    round_bf16(g, vT4, vT4)
    g.e('v_rcp_f32 v%d, v%d' % (vT5, vT4))
    for k in range(0, 16, 2):
        a, b = vXF + k, vXF + k + 1
        g.e('v_sub_f32 v%d, v%d, v%d' % (a, a, vT2))
        g.e('v_sub_f32 v%d, v%d, v%d' % (b, b, vT2))
        g.e('v_cvt_pk_bf16_f32 v%d, v%d, v%d' % (vT3, a, b))
        g.e('v_lshlrev_b32 v%d, 16, v%d' % (a, vT3))
        g.e('v_and_b32 v%d, s%d, v%d' % (b, sHI, vT3))
        for r in (a, b):
            g.e('v_mul_f32 v%d, v%d, v%d' % (vT0, r, vT5))
            g.e('v_fma_f32 v%d, -v%d, v%d, v%d' % (vT1, vT0, vT4, r))
            g.e('v_fma_f32 v%d, v%d, v%d, v%d' % (r, vT1, vT5, vT0))
        g.e('v_cvt_pk_bf16_f32 v%d, v%d, v%d' % (vT3, a, b))
        g.e('v_lshlrev_b32 v%d, 16, v%d' % (a, vT3))
        g.e('v_and_b32 v%d, s%d, v%d' % (b, sHI, vT3))
    g.e('v_lshlrev_b32 v%d, 6, v%d' % (vT0, vLane))
    for k in range(4):
        g.e('ds_write_b128 v%d, %s offset:%d' % (vT0, vr(vXF + 4 * k, 4), XN_LDS + 16 * k))
    g.wait_lgkm(0)
    g.e('ds_read_b128 %s, v%d offset:%d' % (vr(vXN, 4), vA3, XN_LDS))
    g.wait_lgkm(0)
    g.c('---- gemv FMAs')
    for s_i, (vW, tag) in enumerate(((vWQ, 'wq'), (vWG, 'wg'), (vWU, 'wu'))):
        if tag != 'wu':
            g.wait_vm('wq' if tag == 'wq' else 'wu')
        acc = vACC + 8 * s_i
        for i in range(4):
            for k in range(4):
                w = vW + 4 * i + k
                g.e('v_lshlrev_b32 v%d, 16, v%d' % (vT0, w))
                g.e('v_and_b32 v%d, s%d, v%d' % (vT1, sHI, w))
                if i == 0:
                    g.e('v_mul_f32 v%d, v%d, v%d' % (acc + 2 * k, vT0, vXN + i))
                    g.e('v_mul_f32 v%d, v%d, v%d' % (acc + 2 * k + 1, vT1, vXN + i))
                else:
                    g.e('v_fmac_f32 v%d, v%d, v%d' % (acc + 2 * k, vT0, vXN + i))
                    g.e('v_fmac_f32 v%d, v%d, v%d' % (acc + 2 * k + 1, vT1, vXN + i))
    allreduce_inrow(g, 'v_add_f32', list(range(vACC, vACC + 24)), [8, 4, 2])
    g.c('write partials: addr = ((set*32 + 4w + row)*16 + 8c)*4')
    g.e('s_lshl_b32 s%d, s%d, 2' % (sT0, sW))
    g.e('v_add_u32 v%d, s%d, v%d' % (vT0, sT0, vG))
    g.e('v_lshlrev_b32 v%d, 6, v%d' % (vT0, vT0))
    g.e('v_and_b32 v%d, 1, v%d' % (vT1, vLane))
    g.e('v_lshl_add_u32 v%d, v%d, 5, v%d' % (vT0, vT1, vT0))
    g.e('v_cmp_gt_u32 vcc, 2, v%d' % vL15)
    g.e('s_and_saveexec_b64 s[%d:%d], vcc' % (sEX, sEX + 1))
    for s_i in range(3):
        for hf in range(2):
            g.e('ds_write_b128 v%d, %s offset:%d' % (vT0, vr(vACC + 8 * s_i + 4 * hf, 4), HP_LDS + s_i * 2048 + hf * 16))
    g.e('s_mov_b64 exec, s[%d:%d]' % (sEX, sEX + 1))
    g.wait_lgkm(0)
    g.e('s_barrier')
    g.e('s_cmp_lg_u32 s%d, 0' % sW)
    g.e('s_cbranch_scc1 %s' % g.endlabel)
    g.c('---- wave 0: final reduce: lane(col=l&15, pg=l>>4)')
    g.e('v_lshlrev_b32 v%d, 9, v%d' % (vT0, vG))
    g.e('v_lshl_add_u32 v%d, v%d, 2, v%d' % (vT0, vL15, vT0))
    R = 64
    for s_i in range(3):
        for k in range(8):
            g.e('ds_read_b32 v%d, v%d offset:%d' % (R + s_i * 8 + k, vT0, HP_LDS + s_i * 2048 + k * 64))
    g.wait_lgkm(0)
    for s_i in range(3):
        b = R + s_i * 8
        for k in range(1, 8):
            g.e('v_add_f32 v%d, v%d, v%d' % (b, b, b + k))
    allreduce_rows(g, 'v_add_f32', [R, R + 8, R + 16], vT1)
    vq, vg_, vu = R, R + 8, R + 16
    g.e('v_cvt_pk_bf16_f32 v%d, v%d, v%d' % (vq, vq, vq))
    round_bf16(g, vg_, vg_)
    round_bf16(g, vu, vu)
    g.c('gelu(g) = g / (1 + exp(-2*beta*(g + kappa g^3)))')
    g.e('v_mul_f32 v%d, v%d, v%d' % (vT1, vg_, vg_))
    g.e('v_mul_f32 v%d, v%d, v%d' % (vT1, vT1, vg_))
    g.e('v_mul_f32 v%d, 0x3d372713, v%d' % (vT1, vT1))
    g.e('v_add_f32 v%d, v%d, v%d' % (vT1, vT1, vg_))
    g.e('v_mul_f32 v%d, 0x3f4c422a, v%d' % (vT1, vT1))
    g.e('v_mul_f32 v%d, 0xc038aa3b, v%d' % (vT1, vT1))
    g.e('v_exp_f32 v%d, v%d' % (vT1, vT1))
    g.e('v_add_f32 v%d, 1.0, v%d' % (vT1, vT1))
    g.e('v_rcp_f32 v%d, v%d' % (vT1, vT1))
    g.e('v_mul_f32 v%d, v%d, v%d' % (vT1, vT1, vg_))
    round_bf16(g, vT1, vT1)
    g.e('v_mul_f32 v%d, v%d, v%d' % (vT1, vT1, vu))
    g.e('v_cvt_pk_bf16_f32 v%d, v%d, v%d' % (vT1, vT1, vT1))
    g.c('stores (lanes 0..15)')
    g.e('s_lshl_b32 s%d, s%d, 11' % (sT1, sKV))
    g.e('s_lshl_b32 s%d, s%d, 5' % (sT2, sU))
    g.e('s_add_u32 s%d, s%d, s%d' % (sT1, sT1, sT2))
    g.e('v_lshlrev_b32 v%d, 1, v%d' % (vT2, vLane))
    g.e('v_add_u32 v%d, s%d, v%d' % (vT3, sT1, vT2))
    g.e('v_add_u32 v%d, s14, v%d' % (vT4, vT2))
    g.e('v_cmp_gt_u32 vcc, 16, v%d' % vLane)
    g.e('s_and_saveexec_b64 s[%d:%d], vcc' % (sEX, sEX + 1))
    g.e('buffer_store_short v%d, v%d, %s, 0 offen offset:%d' % (vq, vT3, srd('ws'), Q_OFF), 'st')
    g.e('s_mov_b32 s%d, %d' % (sT3, H_OFF))
    g.e('buffer_store_short v%d, v%d, %s, s%d offen' % (vT1, vT4, srd('ws'), sT3), 'st')
    g.e('s_mov_b64 exec, s[%d:%d]' % (sEX, sEX + 1))

OP_LDS = 0
HS = 576
WSTR = 8 * HS
ML_LDS = 8 * WSTR
vQ = 16
vS = 32
vK = 64
vV = 192
vB = 240
vM, vLs, vML = 248, 249, 250

def vtile_reg(T):
    return vV + 16 * T if T < 3 else vK + 16 * (T - 3)

def attn_addrs(g):
    g.c('K addr: kv<<24 + (1024u+128w+l15)*256 + g*16')
    g.e('s_lshl_b32 s%d, s%d, 24' % (sT0, sKV))
    g.e('s_lshl_b32 s%d, s%d, 18' % (sT1, sU))
    g.e('s_add_u32 s%d, s%d, s%d' % (sT0, sT0, sT1))
    g.e('s_lshl_b32 s%d, s%d, 15' % (sT1, sW))
    g.e('s_add_u32 s%d, s%d, s%d' % (sT0, sT0, sT1))
    g.e('v_lshlrev_b32 v%d, 8, v%d' % (vT0, vL15))
    g.e('v_lshl_add_u32 v%d, v%d, 4, v%d' % (vT0, vG, vT0))
    g.e('v_add_u32 v%d, s%d, v%d' % (vA0, sT0, vT0))
    g.e('v_lshlrev_b32 v%d, 10, v%d' % (vT0, vG))
    g.e('v_lshl_add_u32 v%d, v%d, 4, v%d' % (vT0, vL15, vT0))
    g.e('v_add_u32 v%d, s%d, v%d' % (vA1, sT0, vT0))

def load_ktile(g, T, nt=''):
    g.e('s_mov_b32 s%d, %d' % (sT3, T * 4096))
    for j in range(4):
        g.e('buffer_load_dwordx4 %s, v%d, %s, s%d offen offset:%d%s' % (vr(vK + 16 * T + 4 * j, 4), vA0, srd('K'), sT3, 64 * j, nt), 'K%d' % T)

def load_vtile(g, T, nt=''):
    g.e('s_mov_b32 s%d, %d' % (sT3, T * 4096))
    b = vtile_reg(T)
    for r in range(4):
        g.e('buffer_load_dwordx4 %s, v%d, %s, s%d offen offset:%d%s' % (vr(b + 4 * r, 4), vA1, srd('V'), sT3, 256 * r, nt), 'V%d' % T)

def load_q(g, flags=''):
    g.c('Q frag: Q_OFF + (kv*1024 + eta(n)*128 + 8g)*2 + 64j ; eta(n) = (n>>2) + 4*((n>>1)&1)')
    g.e('v_lshrrev_b32 v%d, 2, v%d' % (vT0, vL15))
    g.e('v_bfe_u32 v%d, v%d, 1, 1' % (vT1, vL15))
    g.e('v_lshl_add_u32 v%d, v%d, 2, v%d' % (vT0, vT1, vT0))
    g.e('v_lshlrev_b32 v%d, 8, v%d' % (vT1, vT0))
    g.e('v_lshl_add_u32 v%d, v%d, 4, v%d' % (vT1, vG, vT1))
    g.e('s_lshl_b32 s%d, s%d, 11' % (sT1, sKV))
    g.e('v_add_u32 v%d, s%d, v%d' % (vA2, sT1, vT1))
    for j in range(4):
        g.e('buffer_load_dwordx4 %s, v%d, %s, 0 offen offset:%d%s' % (vr(vQ + 4 * j, 4), vA2, srd('ws'), Q_OFF + 64 * j, flags), 'Q')

def qk_tile(g, T):
    s = vS + 4 * T
    for j in range(4):
        g.e('v_mfma_f32_16x16x32_bf16 %s, %s, %s, %s' % (vr(s, 4), vr(vK + 16 * T + 4 * j, 4), vr(vQ + 4 * j, 4), '0' if j == 0 else vr(s, 4)))

def score_tile(g, T):
    s = vS + 4 * T
    g.e('v_cvt_pk_bf16_f32 v%d, v%d, v%d' % (vT0, s, s + 1))
    g.e('v_cvt_pk_bf16_f32 v%d, v%d, v%d' % (vT1, s + 2, s + 3))
    g.e('v_lshlrev_b32 v%d, 16, v%d' % (s, vT0))
    g.e('v_and_b32 v%d, s%d, v%d' % (s + 1, sHI, vT0))
    g.e('v_lshlrev_b32 v%d, 16, v%d' % (s + 2, vT1))
    g.e('v_and_b32 v%d, s%d, v%d' % (s + 3, sHI, vT1))
    for k in range(4):
        g.e('v_mul_f32 v%d, s%d, v%d' % (s + k, sSCALE, s + k))
    g.e('v_cvt_pk_bf16_f32 v%d, v%d, v%d' % (vT0, s, s + 1))
    g.e('v_cvt_pk_bf16_f32 v%d, v%d, v%d' % (vT1, s + 2, s + 3))
    g.e('v_lshlrev_b32 v%d, 16, v%d' % (s, vT0))
    g.e('v_and_b32 v%d, s%d, v%d' % (s + 1, sHI, vT0))
    g.e('v_lshlrev_b32 v%d, 16, v%d' % (s + 2, vT1))
    g.e('v_and_b32 v%d, s%d, v%d' % (s + 3, sHI, vT1))
    if T == 0:
        g.e('v_max_f32 v%d, v%d, v%d' % (vM, s, s + 1))
    else:
        g.e('v_max3_f32 v%d, v%d, v%d, v%d' % (vM, vM, s, s + 1))
    g.e('v_max3_f32 v%d, v%d, v%d, v%d' % (vM, vM, s + 2, s + 3))

def softmax_all(g):
    allreduce_rows(g, 'v_max_f32', [vM], vT0)
    g.e('v_mul_f32 v%d, s%d, v%d' % (vML, sL2E, vM))
    for i in range(32):
        s = vS + i
        g.e('v_fma_f32 v%d, v%d, s%d, -v%d' % (s, s, sL2E, vML))
    for i in range(32):
        s = vS + i
        g.e('v_exp_f32 v%d, v%d' % (s, s))
    g.e('v_add_f32 v%d, v%d, v%d' % (vLs, vS, vS + 1))
    for i in range(2, 32):
        g.e('v_add_f32 v%d, v%d, v%d' % (vLs, vLs, vS + i))
    for i in range(32):
        s = vS + i
        g.e('v_cvt_pk_bf16_f32 v%d, v%d, v%d' % (s, s, s))
    allreduce_rows(g, 'v_add_f32', [vLs], vT0)

def pv_tile(g, T):
    vb = vtile_reg(T)
    for r in range(4):
        p = vS + 4 * T + r
        bb = vB + 4 * (r & 1)
        for u in range(2):
            q = 2 * u
            g.e('v_and_b32_dpp v%d, v%d, v%d quad_perm:[%d,%d,%d,%d] row_mask:0xf bank_mask:0xf' % (bb + 2 * u, p, vMask0, q, q, q, q))
            g.e('v_and_b32_dpp v%d, v%d, v%d quad_perm:[%d,%d,%d,%d] row_mask:0xf bank_mask:0xf' % (bb + 2 * u + 1, p, vMask1, q, q, q, q))
        for u in range(2):
            for a in range(2):
                acc = vQ + 4 * (2 * u + a)
                first = (T == 0 and r == 0)
                g.e('v_mfma_f32_16x16x16_bf16 %s, %s, %s, %s' % (vr(acc, 4), vr(vb + 4 * r + 2 * a, 2), vr(bb + 2 * u, 2), '0' if first else vr(acc, 4)))

def attn_combine(g, stflags=''):
    g.c('write O partials to LDS: w*WSTR + (4u+hq)*HS + ((2g+a)*4+e0)*16')
    g.e('v_lshrrev_b32 v%d, 2, v%d' % (vT0, vL15))
    g.e('v_and_b32 v%d, 3, v%d' % (vT1, vLane))
    g.e('s_mul_i32 s%d, s%d, %d' % (sT0, sW, WSTR))
    g.e('v_mul_u32_u24 v%d, %d, v%d' % (vT0, HS, vT0))
    g.e('v_lshlrev_b32 v%d, 7, v%d' % (vT2, vG))
    g.e('v_lshl_add_u32 v%d, v%d, 4, v%d' % (vT2, vT1, vT2))
    g.e('v_add3_u32 v%d, v%d, v%d, s%d' % (vT0, vT0, vT2, sT0))
    for u in range(2):
        for a in range(2):
            g.e('ds_write_b128 v%d, %s offset:%d' % (vT0, vr(vQ + 4 * (2 * u + a), 4), OP_LDS + u * 4 * HS + a * 64))
    g.c('m,l: lanes g==0 and (n&1)==0 -> ML_LDS + (w*8+eta)*8')
    g.e('v_lshrrev_b32 v%d, 2, v%d' % (vT0, vL15))
    g.e('v_bfe_u32 v%d, v%d, 1, 1' % (vT1, vL15))
    g.e('v_lshl_add_u32 v%d, v%d, 2, v%d' % (vT0, vT1, vT0))
    g.e('s_lshl_b32 s%d, s%d, 6' % (sT0, sW))
    g.e('v_lshlrev_b32 v%d, 3, v%d' % (vT0, vT0))
    g.e('v_add_u32 v%d, s%d, v%d' % (vT0, sT0, vT0))
    g.e('v_and_b32 v%d, 0x31, v%d' % (vT1, vLane))
    g.e('v_cmp_eq_u32 vcc, 0, v%d' % vT1)
    g.e('s_and_saveexec_b64 s[%d:%d], vcc' % (sEX, sEX + 1))
    g.e('ds_write_b64 v%d, %s offset:%d' % (vT0, vr(vM, 2), ML_LDS))
    g.e('s_mov_b64 exec, s[%d:%d]' % (sEX, sEX + 1))
    g.wait_lgkm(0)
    g.e('s_barrier')
    g.c('wave w combines head w')
    R = 64
    RM = 80
    g.e('s_mul_i32 s%d, s%d, %d' % (sT0, sW, HS))
    g.e('v_lshlrev_b32 v%d, 3, v%d' % (vT0, vLane))
    g.e('v_add_u32 v%d, s%d, v%d' % (vT0, sT0, vT0))
    g.e('s_lshl_b32 s%d, s%d, 3' % (sT1, sW))
    g.e('v_mov_b32 v%d, s%d' % (vT1, sT1))
    for w in range(8):
        g.e('ds_read_b64 %s, v%d offset:%d' % (vr(RM + 2 * w, 2), vT1, ML_LDS + w * 64))
    for w in range(8):
        g.e('ds_read_b64 %s, v%d offset:%d' % (vr(R + 2 * w, 2), vT0, OP_LDS + w * WSTR))
    g.wait_lgkm(8)
    g.e('v_max3_f32 v%d, v%d, v%d, v%d' % (vM, RM, RM + 2, RM + 4))
    g.e('v_max3_f32 v%d, v%d, v%d, v%d' % (vM, vM, RM + 6, RM + 8))
    g.e('v_max3_f32 v%d, v%d, v%d, v%d' % (vM, vM, RM + 10, RM + 12))
    g.e('v_max_f32 v%d, v%d, v%d' % (vM, vM, RM + 14))
    for w in range(8):
        g.e('v_sub_f32 v%d, v%d, v%d' % (RM + 2 * w, RM + 2 * w, vM))
    for w in range(8):
        g.e('v_mul_f32 v%d, s%d, v%d' % (RM + 2 * w, sL2E, RM + 2 * w))
    for w in range(8):
        g.e('v_exp_f32 v%d, v%d' % (RM + 2 * w, RM + 2 * w))
    g.e('v_mul_f32 v%d, v%d, v%d' % (vLs, RM, RM + 1))
    for w in range(1, 8):
        g.e('v_fmac_f32 v%d, v%d, v%d' % (vLs, RM + 2 * w, RM + 2 * w + 1))
    g.wait_lgkm(0)
    g.e('v_mul_f32 v%d, v%d, v%d' % (vT2, RM, R))
    g.e('v_mul_f32 v%d, v%d, v%d' % (vT3, RM, R + 1))
    for w in range(1, 8):
        g.e('v_fmac_f32 v%d, v%d, v%d' % (vT2, RM + 2 * w, R + 2 * w))
        g.e('v_fmac_f32 v%d, v%d, v%d' % (vT3, RM + 2 * w, R + 2 * w + 1))
    g.c('store: O_OFF + ((8kv+w)*64+u)*512 + 8l ; ML_OFF + ((8kv+w)*64+u)*8')
    g.e('s_lshl_b32 s%d, s%d, 3' % (sT0, sKV))
    g.e('s_add_u32 s%d, s%d, s%d' % (sT0, sT0, sW))
    g.e('s_lshl_b32 s%d, s%d, 6' % (sT0, sT0))
    g.e('s_add_u32 s%d, s%d, s%d' % (sT0, sT0, sU))
    g.e('s_lshl_b32 s%d, s%d, 9' % (sT1, sT0))
    g.e('s_add_u32 s%d, s%d, %d' % (sT1, sT1, O_OFF))
    g.e('s_lshl_b32 s%d, s%d, 3' % (sT2, sT0))
    g.e('s_add_u32 s%d, s%d, %d' % (sT2, sT2, ML_OFF))
    g.e('v_lshlrev_b32 v%d, 3, v%d' % (vT0, vLane))
    g.e('buffer_store_dwordx2 %s, v%d, %s, s%d offen%s' % (vr(vT2, 2), vT0, srd('ws'), sT1, stflags), 'st')
    g.e('v_cmp_eq_u32 vcc, 0, v%d' % vLane)
    g.e('s_and_saveexec_b64 s[%d:%d], vcc' % (sEX, sEX + 1))
    g.e('buffer_store_dwordx2 %s, v%d, %s, s%d offen%s' % (vr(vM, 2), vT0, srd('ws'), sT2, stflags), 'st')
    g.e('s_mov_b64 exec, s[%d:%d]' % (sEX, sEX + 1))

import os
NT = os.environ.get('NT', '')
def attn(g, nt=None):
    nt = NT
    make_masks(g)
    attn_addrs(g)
    load_q(g)
    for T in range(8): load_ktile(g, T, nt)
    for T in range(3): load_vtile(g, T, nt)
    g.wait_vm('Q')
    for T in range(8):
        g.wait_vm('K%d' % T)
        qk_tile(g, T)
        if T > 0: score_tile(g, T - 1)
        if T < 5:
            load_vtile(g, T + 3, nt)
    score_tile(g, 7)
    softmax_all(g)
    for T in range(8):
        g.wait_vm('V%d' % T)
        pv_tile(g, T)
    attn_combine(g)

RED_LDS = 0
OD_LDS = 4096
RED2_LDS = 8192
vWO = 144
vWD = 160
vHD = 176
vPO = 180
vPM = 196
vOD = 200
vAC = 208

def tail_wloads(g, nt=''):
    g.c('wo: row = 128h+16w+4jj+g ; voff = row*2048 + b*256 + c*16')
    g.e('s_lshl_b32 s%d, s%d, 7' % (sT0, sH))
    g.e('s_lshl_b32 s%d, s%d, 4' % (sT1, sW))
    g.e('s_add_u32 s%d, s%d, s%d' % (sT0, sT0, sT1))
    g.e('s_lshl_b32 s%d, s%d, 11' % (sT0, sT0))
    g.e('s_lshl_b32 s%d, s%d, 8' % (sT2, sB))
    g.e('s_add_u32 s%d, s%d, s%d' % (sT0, sT0, sT2))
    g.e('v_lshlrev_b32 v%d, 11, v%d' % (vT0, vG))
    g.e('v_lshl_add_u32 v%d, v%d, 4, v%d' % (vT0, vL15, vT0))
    g.e('v_add_u32 v%d, s%d, v%d' % (vA2, sT0, vT0))
    for jj in range(4):
        g.e('s_mov_b32 s%d, %d' % (sT3, jj * 8192))
        g.e('buffer_load_dwordx4 %s, v%d, %s, s%d offen%s' % (vr(vWO + 4 * jj, 4), vA2, srd('wo'), sT3, nt), 'wo')
    g.c('wd: row = 112h+16w+4jj+g (w<7)')
    g.e('s_mul_i32 s%d, s%d, 112' % (sT0, sH))
    g.e('s_add_u32 s%d, s%d, s%d' % (sT0, sT0, sT1))
    g.e('s_mov_b32 s15, s%d' % sT0)
    g.e('s_lshl_b32 s%d, s%d, 11' % (sT0, sT0))
    g.e('s_add_u32 s%d, s%d, s%d' % (sT0, sT0, sT2))
    g.e('s_cmp_eq_u32 s%d, 7' % sW)
    g.e('s_cselect_b32 s%d, 0x40000000, s%d' % (sT0, sT0))
    g.e('v_add_u32 v%d, s%d, v%d' % (vA3, sT0, vT0))
    for jj in range(4):
        g.e('s_mov_b32 s%d, %d' % (sT3, jj * 8192))
        g.e('buffer_load_dwordx4 %s, v%d, %s, s%d offen%s' % (vr(vWD + 4 * jj, 4), vA3, srd('wd'), sT3, nt), 'wd')

def tail_hload(g, flags=''):
    g.c('h gather: H_OFF + (112h+16w+g)*2 + 8jj')
    g.e('s_lshl_b32 s%d, s15, 1' % sT0)
    g.e('s_add_u32 s%d, s%d, %d' % (sT0, sT0, H_OFF))
    g.e('s_cmp_eq_u32 s%d, 7' % sW)
    g.e('s_cselect_b32 s%d, 0x40000000, s%d' % (sT0, sT0))
    g.e('v_lshlrev_b32 v%d, 1, v%d' % (vT0, vG))
    g.e('v_add_u32 v%d, s%d, v%d' % (vT0, sT0, vT0))
    for jj in range(4):
        g.e('buffer_load_ushort v%d, v%d, %s, 0 offen offset:%d%s' % (vHD + jj, vT0, srd('ws'), 8 * jj, flags), 'h')

def tail_pload(g, flags=''):
    g.c('ml: ML_OFF + (h*64+lane)*8 ; O: O_OFF + (h*64+8w+(l>>5))*512 + (l&31)*16 + i*1024')
    g.e('s_lshl_b32 s%d, s%d, 9' % (sT0, sH))
    g.e('s_add_u32 s%d, s%d, %d' % (sT0, sT0, ML_OFF))
    g.e('v_lshlrev_b32 v%d, 3, v%d' % (vT0, vLane))
    g.e('buffer_load_dwordx2 %s, v%d, %s, s%d offen%s' % (vr(vPM, 2), vT0, srd('ws'), sT0, flags), 'pm')
    g.e('s_lshl_b32 s%d, s%d, 15' % (sT0, sH))
    g.e('s_lshl_b32 s%d, s%d, 12' % (sT1, sW))
    g.e('s_add_u32 s%d, s%d, s%d' % (sT0, sT0, sT1))
    g.e('s_add_u32 s%d, s%d, %d' % (sT0, sT0, O_OFF))
    g.e('v_lshlrev_b32 v%d, 4, v%d' % (vT1, vLane))
    for i in range(4):
        g.e('buffer_load_dwordx4 %s, v%d, %s, s%d offen offset:%d%s' % (vr(vPO + 4 * i, 4), vT1, srd('ws'), sT0, 1024 * i, flags), 'po')

def tail1_compute(g, stflags=''):
    vWt = vT4; vLsum = vT5
    g.e('v_mov_b32 v%d, v%d' % (vT2, vPM))
    allreduce_inrow(g, 'v_max_f32', [vT2], [8, 4, 2, 1])
    allreduce_rows(g, 'v_max_f32', [vT2], vT3)
    g.e('v_sub_f32 v%d, v%d, v%d' % (vWt, vPM, vT2))
    g.e('v_mul_f32 v%d, s%d, v%d' % (vWt, sL2E, vWt))
    g.e('v_exp_f32 v%d, v%d' % (vWt, vWt))
    g.e('v_mul_f32 v%d, v%d, v%d' % (vLsum, vWt, vPM + 1))
    allreduce_inrow(g, 'v_add_f32', [vLsum], [8, 4, 2, 1])
    allreduce_rows(g, 'v_add_f32', [vLsum], vT3)
    g.c('weights for my splits: idx = (8w + 2i + (l>>5))*4')
    g.e('v_lshrrev_b32 v%d, 5, v%d' % (vT0, vLane))
    g.e('s_lshl_b32 s%d, s%d, 3' % (sT0, sW))
    g.e('v_add_lshl_u32 v%d, v%d, s%d, 2' % (vT0, vT0, sT0))
    W4 = vOD
    for i in range(4):
        if i: g.e('v_add_u32 v%d, 8, v%d' % (vT0, vT0))
        g.e('ds_bpermute_b32 v%d, v%d, v%d' % (W4 + i, vT0, vWt))
    g.wait_lgkm(0)
    g.wait_vm('po')
    A = vAC
    for k in range(4):
        g.e('v_mul_f32 v%d, v%d, v%d' % (A + k, W4, vPO + k))
    for i in range(1, 4):
        for k in range(4):
            g.e('v_fmac_f32 v%d, v%d, v%d' % (A + k, W4 + i, vPO + 4 * i + k))
    for k in range(4):
        g.e('v_mov_b32 v%d, v%d' % (vT0, A + k))
        g.e('v_permlane32_swap_b32 v%d, v%d' % (A + k, vT0))
        g.e('v_add_f32 v%d, v%d, v%d' % (A + k, A + k, vT0))
    g.e('s_lshl_b32 s%d, s%d, 9' % (sT0, sW))
    g.e('v_lshlrev_b32 v%d, 4, v%d' % (vT0, vLane))
    g.e('v_add_u32 v%d, s%d, v%d' % (vT0, sT0, vT0))
    g.e('v_cmp_gt_u32 vcc, 32, v%d' % vLane)
    g.e('s_and_saveexec_b64 s[%d:%d], vcc' % (sEX, sEX + 1))
    g.e('ds_write_b128 v%d, %s offset:%d' % (vT0, vr(A, 4), RED_LDS))
    g.e('s_mov_b64 exec, s[%d:%d]' % (sEX, sEX + 1))
    g.wait_lgkm(0)
    g.e('s_barrier')
    lab = g.newlabel('t1skip')
    g.e('s_cmp_ge_u32 s%d, 2' % sW)
    g.e('s_cbranch_scc1 %s' % lab)
    g.c('threads 0..127: p = tid')
    g.e('v_lshlrev_b32 v%d, 2, v0' % vT0)
    for w in range(8):
        g.e('ds_read_b32 v%d, v%d offset:%d' % (A + w, vT0, RED_LDS + 512 * w))
    g.e('v_rcp_f32 v%d, v%d' % (vT1, vLsum))
    g.c('d = 32(p>>5) + 8(p&3) + 4((p>>4)&1) + ((p>>2)&3); pos = 16(d>>4) + 4(d&3) + ((d>>2)&3)')
    g.e('v_and_b32 v%d, 0x6c, v0' % vT2)
    g.e('v_bfe_u32 v%d, v0, 1, 1' % vT3)
    g.e('v_lshl_or_b32 v%d, v%d, 4, v%d' % (vT2, vT3, vT2))
    g.e('v_and_b32 v%d, 1, v0' % vT3)
    g.e('v_lshl_or_b32 v%d, v%d, 1, v%d' % (vT2, vT3, vT2))
    g.e('v_bfe_u32 v%d, v0, 4, 1' % vT3)
    g.e('v_or_b32 v%d, v%d, v%d' % (vT2, vT2, vT3))
    g.e('v_lshlrev_b32 v%d, 2, v%d' % (vT2, vT2))
    g.wait_lgkm(0)
    for w in range(1, 8):
        g.e('v_add_f32 v%d, v%d, v%d' % (A, A, A + w))
    g.e('v_mul_f32 v%d, v%d, v%d' % (vT0, A, vT1))
    g.e('v_fma_f32 v%d, -v%d, v%d, v%d' % (vT3, vT0, vLsum, A))
    g.e('v_fma_f32 v%d, v%d, v%d, v%d' % (vT0, vT3, vT1, vT0))
    g.e('v_cvt_pk_bf16_f32 v%d, v%d, v%d' % (vT0, vT0, vT0))
    g.e('ds_write_b32 v%d, v%d offset:%d' % (vT2, vT0, OD_LDS))
    g.wait_lgkm(0)
    g.label(lab)
    g.e('s_barrier')
    g.e('s_lshl_b32 s%d, s%d, 6' % (sT0, sW))
    g.e('v_lshlrev_b32 v%d, 4, v%d' % (vT0, vG))
    g.e('v_add_u32 v%d, s%d, v%d' % (vT0, sT0, vT0))
    g.e('ds_read_b128 %s, v%d offset:%d' % (vr(vOD, 4), vT0, OD_LDS))
    g.wait_vm('h')
    for jj in range(4):
        g.e('v_lshl_or_b32 v%d, v%d, 16, v%d' % (vHD + jj, vHD + jj, vHD + jj))
    g.wait_vm('wd')
    g.wait_lgkm(0)
    for ab, (vec, W) in enumerate(((vOD, vWO), (vHD, vWD))):
        for jj in range(4):
            bb = vB + 2 * (jj & 1)
            g.e('v_and_b32 v%d, v%d, v%d' % (bb, vec + jj, vMask0))
            g.e('v_and_b32 v%d, v%d, v%d' % (bb + 1, vec + jj, vMask1))
            for a in range(2):
                acc = vAC + 8 * ab + 4 * a
                g.e('v_mfma_f32_16x16x16_bf16 %s, %s, %s, %s' % (vr(acc, 4), vr(W + 4 * jj + 2 * a, 2), vr(bb, 2), '0' if jj == 0 else vr(acc, 4)))
    g.c('write red2: (w*2+ab)*512 + ((2g+a)*4+e0)*16, lanes n<4')
    g.e('s_lshl_b32 s%d, s%d, 10' % (sT0, sW))
    g.e('v_lshlrev_b32 v%d, 7, v%d' % (vT0, vG))
    g.e('v_lshl_add_u32 v%d, v%d, 4, v%d' % (vT0, vL15, vT0))
    g.e('v_add_u32 v%d, s%d, v%d' % (vT0, sT0, vT0))
    g.e('v_cmp_gt_u32 vcc, 4, v%d' % vL15)
    g.e('s_and_saveexec_b64 s[%d:%d], vcc' % (sEX, sEX + 1))
    for ab in range(2):
        for a in range(2):
            g.e('ds_write_b128 v%d, %s offset:%d' % (vT0, vr(vAC + 8 * ab + 4 * a, 4), RED2_LDS + ab * 512 + a * 64))
    g.e('s_mov_b64 exec, s[%d:%d]' % (sEX, sEX + 1))
    g.wait_lgkm(0)
    g.e('s_barrier')
    lab2 = g.newlabel('t1skip2')
    g.e('s_cmp_ge_u32 s%d, 4' % sW)
    g.e('s_cbranch_scc1 %s' % lab2)
    g.c('threads 0..255: ab = t>>7, p = t&127')
    g.e('v_lshlrev_b32 v%d, 2, v0' % vT0)
    for w in range(8):
        g.e('ds_read_b32 v%d, v%d offset:%d' % (vPO + w, vT0, RED2_LDS + 1024 * w))
    g.e('v_and_b32 v%d, 0xe0, v0' % vT2)
    g.e('v_and_b32 v%d, 3, v0' % vT3)
    g.e('v_lshl_or_b32 v%d, v%d, 3, v%d' % (vT2, vT3, vT2))
    g.e('v_bfe_u32 v%d, v0, 4, 1' % vT3)
    g.e('v_lshl_or_b32 v%d, v%d, 2, v%d' % (vT2, vT3, vT2))
    g.e('v_bfe_u32 v%d, v0, 2, 2' % vT3)
    g.e('v_or_b32 v%d, v%d, v%d' % (vT2, vT2, vT3))
    g.e('v_lshlrev_b32 v%d, 2, v%d' % (vT2, vT2))
    g.e('s_lshl_b32 s%d, s%d, 5' % (sT0, sB))
    g.e('s_add_u32 s%d, s%d, s%d' % (sT0, sT0, sH))
    g.e('s_lshl_b32 s%d, s%d, 10' % (sT0, sT0))
    g.e('s_add_u32 s%d, s%d, 0x%x' % (sT0, sT0, P2_OFF))
    g.wait_lgkm(0)
    for w in range(1, 8):
        g.e('v_add_f32 v%d, v%d, v%d' % (vPO, vPO, vPO + w))
    g.e('buffer_store_dword v%d, v%d, %s, s%d offen%s' % (vPO, vT2, srd('ws'), sT0, stflags), 'st')
    g.label(lab2)

def tail1(g):
    make_masks(g)
    tail_pload(g)
    tail_wloads(g, NT)
    tail_hload(g)
    g.wait_vm('pm')
    tail1_compute(g)

def tail2_load(g, flags=''):
    g.c('lane(h2=l&31, ab=l>>5): P2_OFF + (((b*32+h2)*2+ab)*128 + 4h)*4')
    g.e('v_and_b32 v%d, 31, v%d' % (vT0, vLane))
    g.e('v_lshrrev_b32 v%d, 5, v%d' % (vT1, vLane))
    g.e('v_lshlrev_b32 v%d, 10, v%d' % (vT0, vT0))
    g.e('v_lshl_add_u32 v%d, v%d, 9, v%d' % (vA0, vT1, vT0))
    g.e('s_lshl_b32 s%d, s%d, 15' % (sT0, sB))
    g.e('s_lshl_b32 s%d, s%d, 4' % (sT1, sH))
    g.e('s_add_u32 s%d, s%d, s%d' % (sT0, sT0, sT1))
    g.e('s_add_u32 s%d, s%d, 0x%x' % (sT0, sT0, P2_OFF))
    g.e('buffer_load_dwordx4 %s, v%d, %s, s%d offen%s' % (vr(64, 4), vA0, srd('ws'), sT0, flags), 'p2')

def tail2_xload(g):
    g.e('s_lshl_b32 s%d, s%d, 8' % (sT1, sB))
    g.e('s_lshl_b32 s%d, s%d, 3' % (sT2, sH))
    g.e('s_add_u32 s%d, s%d, s%d' % (sT1, sT1, sT2))
    g.e('v_mov_b32 v%d, s%d' % (vA1, sT1))
    g.e('buffer_load_dwordx2 %s, v%d, %s, 0 offen' % (vr(72, 2), vA1, srd('x')), 'x2')

def tail2_compute(g):
    R = 64
    regs = [R, R + 1, R + 2, R + 3]
    allreduce_inrow(g, 'v_add_f32', regs, [8, 4, 2, 1])
    for r in regs:
        g.e('v_mov_b32 v%d, v%d' % (vT0, r))
        g.e('v_permlane16_swap_b32 v%d, v%d' % (r, vT0))
        g.e('v_add_f32 v%d, v%d, v%d' % (r, r, vT0))
    for k, r in enumerate(regs):
        g.e('v_mov_b32 v%d, v%d' % (R + 4 + k, r))
        g.e('v_permlane32_swap_b32 v%d, v%d' % (r, R + 4 + k))
    g.wait_vm('x2')
    X = 76
    g.e('v_lshlrev_b32 v%d, 16, v72' % X)
    g.e('v_and_b32 v%d, s%d, v72' % (X + 1, sHI))
    g.e('v_lshlrev_b32 v%d, 16, v73' % (X + 2))
    g.e('v_and_b32 v%d, s%d, v73' % (X + 3, sHI))
    for k in range(4):
        round_bf16(g, R + k, R + k)
        round_bf16(g, R + 4 + k, R + 4 + k)
        g.e('v_add_f32 v%d, v%d, v%d' % (R + k, R + k, X + k))
        round_bf16(g, R + k, R + k)
        g.e('v_add_f32 v%d, v%d, v%d' % (R + k, R + k, R + 4 + k))
    g.e('v_cvt_pk_bf16_f32 v%d, v%d, v%d' % (X, R, R + 1))
    g.e('v_cvt_pk_bf16_f32 v%d, v%d, v%d' % (X + 1, R + 2, R + 3))
    g.e('v_cmp_eq_u32 vcc, 0, v%d' % vLane)
    g.e('s_and_saveexec_b64 s[%d:%d], vcc' % (sEX, sEX + 1))
    g.e('buffer_store_dwordx2 %s, v%d, %s, 0 offen' % (vr(X, 2), vA1, srd('out')), 'st')
    g.e('s_mov_b64 exec, s[%d:%d]' % (sEX, sEX + 1))

def tail2(g):
    tail2_load(g)
    tail2_xload(g)
    g.wait_vm('p2')
    tail2_compute(g)

_lab = [0]
def kernel(name, body, used, nvgpr=256):
    g = Gen()
    g.endlabel = 'L_end_' + name
    def newlabel(p):
        _lab[0] += 1
        return 'L_%s_%d' % (p, _lab[0])
    g.newlabel = newlabel
    g.raw('.globl %s' % name)
    g.raw('.p2align 8')
    g.raw('.type %s,@function' % name)
    g.raw('%s:' % name)
    prologue(g, used)
    body(g)
    g.label(g.endlabel)
    g.e('s_endpgm')
    kd = '''.amdhsa_kernel %s
  .amdhsa_next_free_vgpr %d
  .amdhsa_next_free_sgpr 102
  .amdhsa_accum_offset %d
  .amdhsa_group_segment_fixed_size 0
  .amdhsa_kernarg_size 96
  .amdhsa_user_sgpr_count 2
  .amdhsa_user_sgpr_kernarg_segment_ptr 1
  .amdhsa_system_sgpr_workgroup_id_x 1
  .amdhsa_float_denorm_mode_32 3
  .amdhsa_float_denorm_mode_16_64 3
.end_amdhsa_kernel
''' % (name, nvgpr, nvgpr)
    return g.text(), kd

HEADER = open('cdna_kernels/%s.s.ref' % NAME).read().split('; Override launch')[0]

def main():
    ks = [
        ('head_kernel', head, ['x', 'wq', 'wg', 'wu', 'ws'], 512, 12288),
        ('attn_kernel', attn, ['K', 'V', 'ws'], 512, 40960),
        ('tail1_kernel', tail1, ['wo', 'wd', 'ws'], 512, 20480),
        ('tail2_kernel', tail2, ['x', 'out', 'ws'], 64, 0),
    ]
    out = HEADER
    for n, _, _, blk, lds in ks:
        out += '; @launch kernel=%s grid=(256,1,1) block=(%d,1,1) lds=%d\n' % (n, blk, lds)
    out += '.amdgcn_target "amdgcn-amd-amdhsa--gfx950"\n.text\n'
    kds = ''
    for n, body, used, blk, lds in ks:
        t, kd = kernel(n, body, used)
        out += t
        kds += '.p2align 6\n' + kd
    out += '.section .rodata,"a"\n' + kds
    path = sys.argv[1] if len(sys.argv) > 1 else 'cdna_kernels/%s.s' % NAME
    open(path, 'w').write(out)
    print('wrote', path, len(out))

if __name__ == '__main__':
    main()
```

```python
import sys
sys.path.insert(0, 'gen')
from asmgen import Gen

NAME = 'parallel_sum__gqa_block_cached__geglu_ffn__decode'

Q_OFF = 0
H_OFF = 8192
ML_OFF = 16384
O_OFF = 32768
P2_OFF = 0x110000
WS_BYTES = 268435456

L2E = 0x3fb8aa3b
SCALE = 0x3db504f3

sW, sX8, sJ, sKV, sU, sH, sB = 3, 4, 5, 6, 7, 8, 9
sT0, sT1, sT2, sT3 = 10, 11, 12, 13
SRD = dict(x=40, K=44, V=48, wq=52, wo=56, wg=60, wu=64, wd=68, out=72, dbg=76, ws=80)
PTR = dict(x=16, K=18, V=20, wq=22, wo=24, bx=26, wg=28, wu=30, wd=32, out=34, dbg=36, ws=38)
SIZE = dict(x=2048, K=67108864, V=67108864, wq=8388608, wo=8388608, wg=7340032, wu=7340032,
            wd=7340032, out=2048, dbg=256, ws=WS_BYTES)
sL2E, sSCALE, sHI = 84, 85, 86
sEX = 88
sM0 = 90

def srd(n): return 's[%d:%d]' % (SRD[n], SRD[n] + 3)
def vr(a, n): return 'v[%d:%d]' % (a, a + n - 1)

vLane, vL15, vG, vMask0, vMask1 = 1, 2, 3, 4, 5
vA0, vA1, vA2, vA3 = 6, 7, 8, 9
vT0, vT1, vT2, vT3, vT4, vT5 = 10, 11, 12, 13, 14, 15

def prologue(g, used):
    g.e('s_cmp_ge_u32 s2, 256')
    g.e('s_cbranch_scc1 %s' % g.endlabel)
    g.e('s_load_dwordx16 s[16:31], s[0:1], 0')
    g.e('s_load_dwordx8 s[32:39], s[0:1], 64')
    g.e('s_and_b32 s%d, s2, 7' % sX8)
    g.e('s_lshr_b32 s%d, s2, 3' % sJ)
    g.e('s_lshr_b32 s%d, s%d, 3' % (sKV, sJ))
    g.e('s_and_b32 s%d, s%d, 7' % (sB, sJ))
    g.e('s_lshl_b32 s%d, s%d, 3' % (sU, sX8))
    g.e('s_add_u32 s%d, s%d, s%d' % (sU, sU, sB))
    g.e('s_lshl_b32 s%d, s%d, 3' % (sH, sKV))
    g.e('s_add_u32 s%d, s%d, s%d' % (sH, sH, sX8))
    g.e('v_lshrrev_b32 v%d, 6, v0' % vT0)
    g.e('v_and_b32 v%d, 63, v0' % vLane)
    g.e('v_readfirstlane_b32 s%d, v%d' % (sW, vT0))
    g.e('v_and_b32 v%d, 15, v0' % vL15)
    g.e('v_lshrrev_b32 v%d, 4, v%d' % (vG, vLane))
    g.e('s_mov_b32 s%d, 0x%x' % (sL2E, L2E))
    g.e('s_mov_b32 s%d, 0x%x' % (sSCALE, SCALE))
    g.e('s_mov_b32 s%d, 0xffff0000' % sHI)
    g.e('s_waitcnt lgkmcnt(0)')
    for n in used:
        b = SRD[n]; p = PTR[n]
        g.e('s_mov_b32 s%d, s%d' % (b, p))
        g.e('s_and_b32 s%d, s%d, 0xffff' % (b + 1, p + 1))
        g.e('s_mov_b32 s%d, 0x%x' % (b + 2, SIZE[n]))
        g.e('s_mov_b32 s%d, 0x20000' % (b + 3))

def make_masks(g):
    g.e('v_and_b32 v%d, 3, v%d' % (vT0, vLane))
    g.e('v_and_b32 v%d, 1, v%d' % (vT1, vLane))
    g.e('v_lshlrev_b32 v%d, 4, v%d' % (vT1, vT1))
    g.e('v_mov_b32 v%d, 0xffff' % vT2)
    g.e('v_lshlrev_b32 v%d, v%d, v%d' % (vT2, vT1, vT2))
    g.e('v_cmp_gt_u32 vcc, 2, v%d' % vT0)
    g.e('v_cndmask_b32 v%d, 0, v%d, vcc' % (vMask0, vT2))
    g.e('v_cndmask_b32 v%d, v%d, 0, vcc' % (vMask1, vT2))

def allreduce_rows(g, op, regs, tmp):
    for r in regs:
        g.e('v_mov_b32 v%d, v%d' % (tmp, r))
        g.e('v_permlane16_swap_b32 v%d, v%d' % (r, tmp))
        g.e('%s v%d, v%d, v%d' % (op, r, r, tmp))
        g.e('v_mov_b32 v%d, v%d' % (tmp, r))
        g.e('v_permlane32_swap_b32 v%d, v%d' % (r, tmp))
        g.e('%s v%d, v%d, v%d' % (op, r, r, tmp))

def allreduce_inrow(g, op, regs, rors):
    for ro in rors:
        for r in regs:
            g.e('%s_dpp v%d, v%d, v%d row_ror:%d row_mask:0xf bank_mask:0xf' % (op, r, r, r, ro))

def round_bf16(g, dst, src, tmp=None):
    g.e('v_cvt_pk_bf16_f32 v%d, v%d, v%d' % (dst, src, src))
    g.e('v_and_b32 v%d, s%d, v%d' % (dst, sHI, dst))

XN_LDS = 0
HP_LDS = 4096
def head(g):
    vX = 224
    vXF = 232
    vWQ = 16
    vWG = 192
    vWU = 208
    vACC = 32
    vXN = 56
    g.c('x loads')
    g.e('v_lshlrev_b32 v%d, 5, v%d' % (vA0, vLane))
    g.e('buffer_load_dwordx4 %s, v%d, %s, 0 offen' % (vr(vX, 4), vA0, srd('x')), 'x')
    g.e('buffer_load_dwordx4 %s, v%d, %s, 0 offen offset:16' % (vr(vX + 4, 4), vA0, srd('x')), 'x')
    g.c('wq loads: voff = (128w+4rho)*8192 + kv*2048 + u*32 + c*16')
    g.e('v_lshrrev_b32 v%d, 1, v%d' % (vT0, vLane))
    g.e('v_and_b32 v%d, 1, v%d' % (vT1, vLane))
    g.e('v_lshlrev_b32 v%d, 2, v%d' % (vT0, vT0))
    g.e('s_lshl_b32 s%d, s%d, 7' % (sT0, sW))
    g.e('v_add_u32 v%d, s%d, v%d' % (vT0, sT0, vT0))
    g.e('v_lshlrev_b32 v%d, 4, v%d' % (vT1, vT1))
    g.e('s_lshl_b32 s%d, s%d, 11' % (sT1, sKV))
    g.e('s_lshl_b32 s%d, s%d, 5' % (sT2, sU))
    g.e('s_add_u32 s%d, s%d, s%d' % (sT1, sT1, sT2))
    g.e('v_lshlrev_b32 v%d, 13, v%d' % (vA1, vT0))
    g.e('v_add3_u32 v%d, v%d, v%d, s%d' % (vA1, vA1, vT1, sT1))
    for i in range(4):
        g.e('s_mov_b32 s%d, %d' % (sT3, i * 8192))
        g.e('buffer_load_dwordx4 %s, v%d, %s, s%d offen' % (vr(vWQ + 4 * i, 4), vA1, srd('wq'), sT3), 'wq')
    g.c('gate/up loads: voff = row0*7168 + tau*32 + c*16 ; tau = 28*x8 + j (j<28) else OOB')
    g.e('s_mul_i32 s%d, s%d, 28' % (sT1, sX8))
    g.e('s_add_u32 s%d, s%d, s%d' % (sT1, sT1, sJ))
    g.e('s_lshl_b32 s%d, s%d, 5' % (sT1, sT1))
    g.e('s_cmp_ge_u32 s%d, 28' % sJ)
    g.e('s_cselect_b32 s%d, 0x40000000, s%d' % (sT1, sT1))
    g.e('s_mov_b32 s%d, 7168' % sT2)
    g.e('v_mul_lo_u32 v%d, v%d, s%d' % (vA2, vT0, sT2))
    g.e('v_add3_u32 v%d, v%d, v%d, s%d' % (vA2, vA2, vT1, sT1))
    for i in range(4):
        g.e('s_mov_b32 s%d, %d' % (sT3, i * 7168))
        g.e('buffer_load_dwordx4 %s, v%d, %s, s%d offen' % (vr(vWG + 4 * i, 4), vA2, srd('wg'), sT3), 'wg')
        g.e('buffer_load_dwordx4 %s, v%d, %s, s%d offen' % (vr(vWU + 4 * i, 4), vA2, srd('wu'), sT3), 'wu')
    g.e('s_mov_b32 s%d, s%d' % (14, sT1))
    g.c('xn read address')
    g.e('v_lshlrev_b32 v%d, 2, v%d' % (vA3, vT0))
    g.c('---- layernorm')
    g.wait_vm('x')
    for k in range(8):
        g.e('v_lshlrev_b32 v%d, 16, v%d' % (vXF + 2 * k, vX + k))
        g.e('v_and_b32 v%d, s%d, v%d' % (vXF + 2 * k + 1, sHI, vX + k))
    g.e('v_add_f32 v%d, v%d, v%d' % (vT2, vXF, vXF + 1))
    for k in range(2, 16):
        g.e('v_add_f32 v%d, v%d, v%d' % (vT2, vT2, vXF + k))
    allreduce_inrow(g, 'v_add_f32', [vT2], [8, 4, 2, 1])
    allreduce_rows(g, 'v_add_f32', [vT2], vT3)
    g.e('v_mul_f32 v%d, 0x3a800000, v%d' % (vT2, vT2))
    g.e('v_sub_f32 v%d, v%d, v%d' % (vT3, vXF, vT2))
    g.e('v_mul_f32 v%d, v%d, v%d' % (vT4, vT3, vT3))
    for k in range(1, 16):
        g.e('v_sub_f32 v%d, v%d, v%d' % (vT3, vXF + k, vT2))
        g.e('v_fmac_f32 v%d, v%d, v%d' % (vT4, vT3, vT3))
    allreduce_inrow(g, 'v_add_f32', [vT4], [8, 4, 2, 1])
    allreduce_rows(g, 'v_add_f32', [vT4], vT3)
    g.e('v_mul_f32 v%d, 0x3a800000, v%d' % (vT4, vT4))
    round_bf16(g, vT2, vT2)
    round_bf16(g, vT4, vT4)
    g.e('v_add_f32 v%d, 0x3727c5ac, v%d' % (vT4, vT4))
    round_bf16(g, vT4, vT4)
    g.e('v_sqrt_f32 v%d, v%d' % (vT4, vT4))
    round_bf16(g, vT4, vT4)
    g.e('v_rcp_f32 v%d, v%d' % (vT5, vT4))
    for k in range(0, 16, 2):
        a, b = vXF + k, vXF + k + 1
        g.e('v_sub_f32 v%d, v%d, v%d' % (a, a, vT2))
        g.e('v_sub_f32 v%d, v%d, v%d' % (b, b, vT2))
        g.e('v_cvt_pk_bf16_f32 v%d, v%d, v%d' % (vT3, a, b))
        g.e('v_lshlrev_b32 v%d, 16, v%d' % (a, vT3))
        g.e('v_and_b32 v%d, s%d, v%d' % (b, sHI, vT3))
        for r in (a, b):
            g.e('v_mul_f32 v%d, v%d, v%d' % (vT0, r, vT5))
            g.e('v_fma_f32 v%d, -v%d, v%d, v%d' % (vT1, vT0, vT4, r))
            g.e('v_fma_f32 v%d, v%d, v%d, v%d' % (r, vT1, vT5, vT0))
        g.e('v_cvt_pk_bf16_f32 v%d, v%d, v%d' % (vT3, a, b))
        g.e('v_lshlrev_b32 v%d, 16, v%d' % (a, vT3))
        g.e('v_and_b32 v%d, s%d, v%d' % (b, sHI, vT3))
    g.e('v_lshlrev_b32 v%d, 6, v%d' % (vT0, vLane))
    for k in range(4):
        g.e('ds_write_b128 v%d, %s offset:%d' % (vT0, vr(vXF + 4 * k, 4), XN_LDS + 16 * k))
    g.wait_lgkm(0)
    g.e('ds_read_b128 %s, v%d offset:%d' % (vr(vXN, 4), vA3, XN_LDS))
    g.wait_lgkm(0)
    g.c('---- gemv FMAs')
    for s_i, (vW, tag) in enumerate(((vWQ, 'wq'), (vWG, 'wg'), (vWU, 'wu'))):
        if tag != 'wu':
            g.wait_vm('wq' if tag == 'wq' else 'wu')
        acc = vACC + 8 * s_i
        for i in range(4):
            for k in range(4):
                w = vW + 4 * i + k
                g.e('v_lshlrev_b32 v%d, 16, v%d' % (vT0, w))
                g.e('v_and_b32 v%d, s%d, v%d' % (vT1, sHI, w))
                if i == 0:
                    g.e('v_mul_f32 v%d, v%d, v%d' % (acc + 2 * k, vT0, vXN + i))
                    g.e('v_mul_f32 v%d, v%d, v%d' % (acc + 2 * k + 1, vT1, vXN + i))
                else:
                    g.e('v_fmac_f32 v%d, v%d, v%d' % (acc + 2 * k, vT0, vXN + i))
                    g.e('v_fmac_f32 v%d, v%d, v%d' % (acc + 2 * k + 1, vT1, vXN + i))
    allreduce_inrow(g, 'v_add_f32', list(range(vACC, vACC + 24)), [8, 4, 2])
    g.c('write partials: addr = ((set*32 + 4w + row)*16 + 8c)*4')
    g.e('s_lshl_b32 s%d, s%d, 2' % (sT0, sW))
    g.e('v_add_u32 v%d, s%d, v%d' % (vT0, sT0, vG))
    g.e('v_lshlrev_b32 v%d, 6, v%d' % (vT0, vT0))
    g.e('v_and_b32 v%d, 1, v%d' % (vT1, vLane))
    g.e('v_lshl_add_u32 v%d, v%d, 5, v%d' % (vT0, vT1, vT0))
    g.e('v_cmp_gt_u32 vcc, 2, v%d' % vL15)
    g.e('s_and_saveexec_b64 s[%d:%d], vcc' % (sEX, sEX + 1))
    for s_i in range(3):
        for hf in range(2):
            g.e('ds_write_b128 v%d, %s offset:%d' % (vT0, vr(vACC + 8 * s_i + 4 * hf, 4), HP_LDS + s_i * 2048 + hf * 16))
    g.e('s_mov_b64 exec, s[%d:%d]' % (sEX, sEX + 1))
    g.wait_lgkm(0)
    g.e('s_barrier')
    g.e('s_cmp_lg_u32 s%d, 0' % sW)
    g.e('s_cbranch_scc1 %s' % g.endlabel)
    g.c('---- wave 0: final reduce: lane(col=l&15, pg=l>>4)')
    g.e('v_lshlrev_b32 v%d, 9, v%d' % (vT0, vG))
    g.e('v_lshl_add_u32 v%d, v%d, 2, v%d' % (vT0, vL15, vT0))
    R = 64
    for s_i in range(3):
        for k in range(8):
            g.e('ds_read_b32 v%d, v%d offset:%d' % (R + s_i * 8 + k, vT0, HP_LDS + s_i * 2048 + k * 64))
    g.wait_lgkm(0)
    for s_i in range(3):
        b = R + s_i * 8
        for k in range(1, 8):
            g.e('v_add_f32 v%d, v%d, v%d' % (b, b, b + k))
    allreduce_rows(g, 'v_add_f32', [R, R + 8, R + 16], vT1)
    vq, vg_, vu = R, R + 8, R + 16
    g.e('v_cvt_pk_bf16_f32 v%d, v%d, v%d' % (vq, vq, vq))
    round_bf16(g, vg_, vg_)
    round_bf16(g, vu, vu)
    g.c('gelu(g) = g / (1 + exp(-2*beta*(g + kappa g^3)))')
    g.e('v_mul_f32 v%d, v%d, v%d' % (vT1, vg_, vg_))
    g.e('v_mul_f32 v%d, v%d, v%d' % (vT1, vT1, vg_))
    g.e('v_mul_f32 v%d, 0x3d372713, v%d' % (vT1, vT1))
    g.e('v_add_f32 v%d, v%d, v%d' % (vT1, vT1, vg_))
    g.e('v_mul_f32 v%d, 0x3f4c422a, v%d' % (vT1, vT1))
    g.e('v_mul_f32 v%d, 0xc038aa3b, v%d' % (vT1, vT1))
    g.e('v_exp_f32 v%d, v%d' % (vT1, vT1))
    g.e('v_add_f32 v%d, 1.0, v%d' % (vT1, vT1))
    g.e('v_rcp_f32 v%d, v%d' % (vT1, vT1))
    g.e('v_mul_f32 v%d, v%d, v%d' % (vT1, vT1, vg_))
    round_bf16(g, vT1, vT1)
    g.e('v_mul_f32 v%d, v%d, v%d' % (vT1, vT1, vu))
    g.e('v_cvt_pk_bf16_f32 v%d, v%d, v%d' % (vT1, vT1, vT1))
    g.c('stores (lanes 0..15)')
    g.e('s_lshl_b32 s%d, s%d, 11' % (sT1, sKV))
    g.e('s_lshl_b32 s%d, s%d, 5' % (sT2, sU))
    g.e('s_add_u32 s%d, s%d, s%d' % (sT1, sT1, sT2))
    g.e('v_lshlrev_b32 v%d, 1, v%d' % (vT2, vLane))
    g.e('v_add_u32 v%d, s%d, v%d' % (vT3, sT1, vT2))
    g.e('v_add_u32 v%d, s14, v%d' % (vT4, vT2))
    g.e('v_cmp_gt_u32 vcc, 16, v%d' % vLane)
    g.e('s_and_saveexec_b64 s[%d:%d], vcc' % (sEX, sEX + 1))
    g.e('buffer_store_short v%d, v%d, %s, 0 offen offset:%d' % (vq, vT3, srd('ws'), Q_OFF), 'st')
    g.e('s_mov_b32 s%d, %d' % (sT3, H_OFF))
    g.e('buffer_store_short v%d, v%d, %s, s%d offen' % (vT1, vT4, srd('ws'), sT3), 'st')
    g.e('s_mov_b64 exec, s[%d:%d]' % (sEX, sEX + 1))

OP_LDS = 0
HS = 576
WSTR = 8 * HS
ML_LDS = 8 * WSTR
vQ = 16
vS = 32
vK = 64
vV = 192
vB = 240
vM, vLs, vML = 248, 249, 250

import os
PAT = int(os.environ.get('PAT', '1'))
TSTRIDE = 4096 if PAT == 1 else 4096 * 512
def vtile_reg(T):
    return vV + 16 * T if T < 3 else vK + 16 * (T - 3)

def attn_addrs(g):
    g.c('K addr: kv<<24 + (1024u+128w+l15)*256 + g*16')
    g.e('s_lshl_b32 s%d, s%d, 24' % (sT0, sKV))
    g.e('s_lshl_b32 s%d, s%d, %d' % (sT1, sU, 18 if PAT == 1 else 15))
    g.e('s_add_u32 s%d, s%d, s%d' % (sT0, sT0, sT1))
    g.e('s_lshl_b32 s%d, s%d, %d' % (sT1, sW, 15 if PAT == 1 else 12))
    g.e('s_add_u32 s%d, s%d, s%d' % (sT0, sT0, sT1))
    g.e('v_lshlrev_b32 v%d, 8, v%d' % (vT0, vL15))
    g.e('v_lshl_add_u32 v%d, v%d, 4, v%d' % (vT0, vG, vT0))
    g.e('v_add_u32 v%d, s%d, v%d' % (vA0, sT0, vT0))
    g.e('v_lshlrev_b32 v%d, 10, v%d' % (vT0, vG))
    g.e('v_lshl_add_u32 v%d, v%d, 4, v%d' % (vT0, vL15, vT0))
    g.e('v_add_u32 v%d, s%d, v%d' % (vA1, sT0, vT0))

def load_ktile(g, T, nt=''):
    g.e('s_mov_b32 s%d, %d' % (sT3, T * TSTRIDE))
    for j in range(4):
        g.e('buffer_load_dwordx4 %s, v%d, %s, s%d offen offset:%d%s' % (vr(vK + 16 * T + 4 * j, 4), vA0, srd('K'), sT3, 64 * j, nt), 'K%d' % T)

def load_vtile(g, T, nt=''):
    g.e('s_mov_b32 s%d, %d' % (sT3, T * TSTRIDE))
    b = vtile_reg(T)
    for r in range(4):
        g.e('buffer_load_dwordx4 %s, v%d, %s, s%d offen offset:%d%s' % (vr(b + 4 * r, 4), vA1, srd('V'), sT3, 256 * r, nt), 'V%d' % T)

def load_q(g, flags=''):
    g.c('Q frag: Q_OFF + (kv*1024 + eta(n)*128 + 8g)*2 + 64j ; eta(n) = (n>>2) + 4*((n>>1)&1)')
    g.e('v_lshrrev_b32 v%d, 2, v%d' % (vT0, vL15))
    g.e('v_bfe_u32 v%d, v%d, 1, 1' % (vT1, vL15))
    g.e('v_lshl_add_u32 v%d, v%d, 2, v%d' % (vT0, vT1, vT0))
    g.e('v_lshlrev_b32 v%d, 8, v%d' % (vT1, vT0))
    g.e('v_lshl_add_u32 v%d, v%d, 4, v%d' % (vT1, vG, vT1))
    g.e('s_lshl_b32 s%d, s%d, 11' % (sT1, sKV))
    g.e('v_add_u32 v%d, s%d, v%d' % (vA2, sT1, vT1))
    for j in range(4):
        g.e('buffer_load_dwordx4 %s, v%d, %s, 0 offen offset:%d%s' % (vr(vQ + 4 * j, 4), vA2, srd('ws'), Q_OFF + 64 * j, flags), 'Q')

def qk_tile(g, T):
    s = vS + 4 * T
    for j in range(4):
        g.e('v_mfma_f32_16x16x32_bf16 %s, %s, %s, %s' % (vr(s, 4), vr(vK + 16 * T + 4 * j, 4), vr(vQ + 4 * j, 4), '0' if j == 0 else vr(s, 4)))

def score_tile(g, T):
    s = vS + 4 * T
    g.e('v_cvt_pk_bf16_f32 v%d, v%d, v%d' % (vT0, s, s + 1))
    g.e('v_cvt_pk_bf16_f32 v%d, v%d, v%d' % (vT1, s + 2, s + 3))
    g.e('v_lshlrev_b32 v%d, 16, v%d' % (s, vT0))
    g.e('v_and_b32 v%d, s%d, v%d' % (s + 1, sHI, vT0))
    g.e('v_lshlrev_b32 v%d, 16, v%d' % (s + 2, vT1))
    g.e('v_and_b32 v%d, s%d, v%d' % (s + 3, sHI, vT1))
    for k in range(4):
        g.e('v_mul_f32 v%d, s%d, v%d' % (s + k, sSCALE, s + k))
    g.e('v_cvt_pk_bf16_f32 v%d, v%d, v%d' % (vT0, s, s + 1))
    g.e('v_cvt_pk_bf16_f32 v%d, v%d, v%d' % (vT1, s + 2, s + 3))
    g.e('v_lshlrev_b32 v%d, 16, v%d' % (s, vT0))
    g.e('v_and_b32 v%d, s%d, v%d' % (s + 1, sHI, vT0))
    g.e('v_lshlrev_b32 v%d, 16, v%d' % (s + 2, vT1))
    g.e('v_and_b32 v%d, s%d, v%d' % (s + 3, sHI, vT1))
    if T == 0:
        g.e('v_max_f32 v%d, v%d, v%d' % (vM, s, s + 1))
    else:
        g.e('v_max3_f32 v%d, v%d, v%d, v%d' % (vM, vM, s, s + 1))
    g.e('v_max3_f32 v%d, v%d, v%d, v%d' % (vM, vM, s + 2, s + 3))

def softmax_all(g):
    allreduce_rows(g, 'v_max_f32', [vM], vT0)
    g.e('v_mul_f32 v%d, s%d, v%d' % (vML, sL2E, vM))
    for i in range(32):
        s = vS + i
        g.e('v_fma_f32 v%d, v%d, s%d, -v%d' % (s, s, sL2E, vML))
    for i in range(32):
        s = vS + i
        g.e('v_exp_f32 v%d, v%d' % (s, s))
    g.e('v_add_f32 v%d, v%d, v%d' % (vLs, vS, vS + 1))
    for i in range(2, 32):
        g.e('v_add_f32 v%d, v%d, v%d' % (vLs, vLs, vS + i))
    for i in range(32):
        s = vS + i
        g.e('v_cvt_pk_bf16_f32 v%d, v%d, v%d' % (s, s, s))
    allreduce_rows(g, 'v_add_f32', [vLs], vT0)

def pv_tile(g, T):
    vb = vtile_reg(T)
    for r in range(4):
        p = vS + 4 * T + r
        bb = vB + 4 * (r & 1)
        for u in range(2):
            q = 2 * u
            g.e('v_and_b32_dpp v%d, v%d, v%d quad_perm:[%d,%d,%d,%d] row_mask:0xf bank_mask:0xf' % (bb + 2 * u, p, vMask0, q, q, q, q))
            g.e('v_and_b32_dpp v%d, v%d, v%d quad_perm:[%d,%d,%d,%d] row_mask:0xf bank_mask:0xf' % (bb + 2 * u + 1, p, vMask1, q, q, q, q))
        for u in range(2):
            for a in range(2):
                acc = vQ + 4 * (2 * u + a)
                first = (T == 0 and r == 0)
                g.e('v_mfma_f32_16x16x16_bf16 %s, %s, %s, %s' % (vr(acc, 4), vr(vb + 4 * r + 2 * a, 2), vr(bb + 2 * u, 2), '0' if first else vr(acc, 4)))

def attn_combine(g, stflags=''):
    g.c('write O partials to LDS: w*WSTR + (4u+hq)*HS + ((2g+a)*4+e0)*16')
    g.e('v_lshrrev_b32 v%d, 2, v%d' % (vT0, vL15))
    g.e('v_and_b32 v%d, 3, v%d' % (vT1, vLane))
    g.e('s_mul_i32 s%d, s%d, %d' % (sT0, sW, WSTR))
    g.e('v_mul_u32_u24 v%d, %d, v%d' % (vT0, HS, vT0))
    g.e('v_lshlrev_b32 v%d, 7, v%d' % (vT2, vG))
    g.e('v_lshl_add_u32 v%d, v%d, 4, v%d' % (vT2, vT1, vT2))
    g.e('v_add3_u32 v%d, v%d, v%d, s%d' % (vT0, vT0, vT2, sT0))
    for u in range(2):
        for a in range(2):
            g.e('ds_write_b128 v%d, %s offset:%d' % (vT0, vr(vQ + 4 * (2 * u + a), 4), OP_LDS + u * 4 * HS + a * 64))
    g.c('m,l: lanes g==0 and (n&1)==0 -> ML_LDS + (w*8+eta)*8')
    g.e('v_lshrrev_b32 v%d, 2, v%d' % (vT0, vL15))
    g.e('v_bfe_u32 v%d, v%d, 1, 1' % (vT1, vL15))
    g.e('v_lshl_add_u32 v%d, v%d, 2, v%d' % (vT0, vT1, vT0))
    g.e('s_lshl_b32 s%d, s%d, 6' % (sT0, sW))
    g.e('v_lshlrev_b32 v%d, 3, v%d' % (vT0, vT0))
    g.e('v_add_u32 v%d, s%d, v%d' % (vT0, sT0, vT0))
    g.e('v_and_b32 v%d, 0x31, v%d' % (vT1, vLane))
    g.e('v_cmp_eq_u32 vcc, 0, v%d' % vT1)
    g.e('s_and_saveexec_b64 s[%d:%d], vcc' % (sEX, sEX + 1))
    g.e('ds_write_b64 v%d, %s offset:%d' % (vT0, vr(vM, 2), ML_LDS))
    g.e('s_mov_b64 exec, s[%d:%d]' % (sEX, sEX + 1))
    g.wait_lgkm(0)
    g.e('s_barrier')
    g.c('wave w combines head w')
    R = 64
    RM = 80
    g.e('s_mul_i32 s%d, s%d, %d' % (sT0, sW, HS))
    g.e('v_lshlrev_b32 v%d, 3, v%d' % (vT0, vLane))
    g.e('v_add_u32 v%d, s%d, v%d' % (vT0, sT0, vT0))
    g.e('s_lshl_b32 s%d, s%d, 3' % (sT1, sW))
    g.e('v_mov_b32 v%d, s%d' % (vT1, sT1))
    for w in range(8):
        g.e('ds_read_b64 %s, v%d offset:%d' % (vr(RM + 2 * w, 2), vT1, ML_LDS + w * 64))
    for w in range(8):
        g.e('ds_read_b64 %s, v%d offset:%d' % (vr(R + 2 * w, 2), vT0, OP_LDS + w * WSTR))
    g.wait_lgkm(8)
    g.e('v_max3_f32 v%d, v%d, v%d, v%d' % (vM, RM, RM + 2, RM + 4))
    g.e('v_max3_f32 v%d, v%d, v%d, v%d' % (vM, vM, RM + 6, RM + 8))
    g.e('v_max3_f32 v%d, v%d, v%d, v%d' % (vM, vM, RM + 10, RM + 12))
    g.e('v_max_f32 v%d, v%d, v%d' % (vM, vM, RM + 14))
    for w in range(8):
        g.e('v_sub_f32 v%d, v%d, v%d' % (RM + 2 * w, RM + 2 * w, vM))
    for w in range(8):
        g.e('v_mul_f32 v%d, s%d, v%d' % (RM + 2 * w, sL2E, RM + 2 * w))
    for w in range(8):
        g.e('v_exp_f32 v%d, v%d' % (RM + 2 * w, RM + 2 * w))
    g.e('v_mul_f32 v%d, v%d, v%d' % (vLs, RM, RM + 1))
    for w in range(1, 8):
        g.e('v_fmac_f32 v%d, v%d, v%d' % (vLs, RM + 2 * w, RM + 2 * w + 1))
    g.wait_lgkm(0)
    g.e('v_mul_f32 v%d, v%d, v%d' % (vT2, RM, R))
    g.e('v_mul_f32 v%d, v%d, v%d' % (vT3, RM, R + 1))
    for w in range(1, 8):
        g.e('v_fmac_f32 v%d, v%d, v%d' % (vT2, RM + 2 * w, R + 2 * w))
        g.e('v_fmac_f32 v%d, v%d, v%d' % (vT3, RM + 2 * w, R + 2 * w + 1))
    g.c('store: O_OFF + ((8kv+w)*64+u)*512 + 8l ; ML_OFF + ((8kv+w)*64+u)*8')
    g.e('s_lshl_b32 s%d, s%d, 3' % (sT0, sKV))
    g.e('s_add_u32 s%d, s%d, s%d' % (sT0, sT0, sW))
    g.e('s_lshl_b32 s%d, s%d, 6' % (sT0, sT0))
    g.e('s_add_u32 s%d, s%d, s%d' % (sT0, sT0, sU))
    g.e('s_lshl_b32 s%d, s%d, 9' % (sT1, sT0))
    g.e('s_add_u32 s%d, s%d, %d' % (sT1, sT1, O_OFF))
    g.e('s_lshl_b32 s%d, s%d, 3' % (sT2, sT0))
    g.e('s_add_u32 s%d, s%d, %d' % (sT2, sT2, ML_OFF))
    g.e('v_lshlrev_b32 v%d, 3, v%d' % (vT0, vLane))
    g.e('buffer_store_dwordx2 %s, v%d, %s, s%d offen%s' % (vr(vT2, 2), vT0, srd('ws'), sT1, stflags), 'st')
    g.e('v_cmp_eq_u32 vcc, 0, v%d' % vLane)
    g.e('s_and_saveexec_b64 s[%d:%d], vcc' % (sEX, sEX + 1))
    g.e('buffer_store_dwordx2 %s, v%d, %s, s%d offen%s' % (vr(vM, 2), vT0, srd('ws'), sT2, stflags), 'st')
    g.e('s_mov_b64 exec, s[%d:%d]' % (sEX, sEX + 1))

import os
NT = os.environ.get('NT', '')
def attn(g, nt=None):
    nt = NT
    make_masks(g)
    attn_addrs(g)
    load_q(g)
    for T in range(8): load_ktile(g, T, nt)
    for T in range(3): load_vtile(g, T, nt)
    g.wait_vm('Q')
    for T in range(8):
        g.wait_vm('K%d' % T)
        qk_tile(g, T)
        if T > 0: score_tile(g, T - 1)
        if T < 5:
            load_vtile(g, T + 3, nt)
    score_tile(g, 7)
    softmax_all(g)
    for T in range(8):
        g.wait_vm('V%d' % T)
        pv_tile(g, T)
    attn_combine(g)

RED_LDS = 0
OD_LDS = 4096
RED2_LDS = 8192
vWO = 144
vWD = 160
vHD = 176
vPO = 180
vPM = 196
vOD = 200
vAC = 208

def tail_wloads(g, nt=''):
    g.c('wo: row = 128h+16w+4jj+g ; voff = row*2048 + b*256 + c*16')
    g.e('s_lshl_b32 s%d, s%d, 7' % (sT0, sH))
    g.e('s_lshl_b32 s%d, s%d, 4' % (sT1, sW))
    g.e('s_add_u32 s%d, s%d, s%d' % (sT0, sT0, sT1))
    g.e('s_lshl_b32 s%d, s%d, 11' % (sT0, sT0))
    g.e('s_lshl_b32 s%d, s%d, 8' % (sT2, sB))
    g.e('s_add_u32 s%d, s%d, s%d' % (sT0, sT0, sT2))
    g.e('v_lshlrev_b32 v%d, 11, v%d' % (vT0, vG))
    g.e('v_lshl_add_u32 v%d, v%d, 4, v%d' % (vT0, vL15, vT0))
    g.e('v_add_u32 v%d, s%d, v%d' % (vA2, sT0, vT0))
    for jj in range(4):
        g.e('s_mov_b32 s%d, %d' % (sT3, jj * 8192))
        g.e('buffer_load_dwordx4 %s, v%d, %s, s%d offen%s' % (vr(vWO + 4 * jj, 4), vA2, srd('wo'), sT3, nt), 'wo')
    g.c('wd: row = 112h+16w+4jj+g (w<7)')
    g.e('s_mul_i32 s%d, s%d, 112' % (sT0, sH))
    g.e('s_add_u32 s%d, s%d, s%d' % (sT0, sT0, sT1))
    g.e('s_mov_b32 s15, s%d' % sT0)
    g.e('s_lshl_b32 s%d, s%d, 11' % (sT0, sT0))
    g.e('s_add_u32 s%d, s%d, s%d' % (sT0, sT0, sT2))
    g.e('s_cmp_eq_u32 s%d, 7' % sW)
    g.e('s_cselect_b32 s%d, 0x40000000, s%d' % (sT0, sT0))
    g.e('v_add_u32 v%d, s%d, v%d' % (vA3, sT0, vT0))
    for jj in range(4):
        g.e('s_mov_b32 s%d, %d' % (sT3, jj * 8192))
        g.e('buffer_load_dwordx4 %s, v%d, %s, s%d offen%s' % (vr(vWD + 4 * jj, 4), vA3, srd('wd'), sT3, nt), 'wd')

def tail_hload(g, flags=''):
    g.c('h gather: H_OFF + (112h+16w+g)*2 + 8jj')
    g.e('s_lshl_b32 s%d, s15, 1' % sT0)
    g.e('s_add_u32 s%d, s%d, %d' % (sT0, sT0, H_OFF))
    g.e('s_cmp_eq_u32 s%d, 7' % sW)
    g.e('s_cselect_b32 s%d, 0x40000000, s%d' % (sT0, sT0))
    g.e('v_lshlrev_b32 v%d, 1, v%d' % (vT0, vG))
    g.e('v_add_u32 v%d, s%d, v%d' % (vT0, sT0, vT0))
    for jj in range(4):
        g.e('buffer_load_ushort v%d, v%d, %s, 0 offen offset:%d%s' % (vHD + jj, vT0, srd('ws'), 8 * jj, flags), 'h')

def tail_pload(g, flags=''):
    g.c('ml: ML_OFF + (h*64+lane)*8 ; O: O_OFF + (h*64+8w+(l>>5))*512 + (l&31)*16 + i*1024')
    g.e('s_lshl_b32 s%d, s%d, 9' % (sT0, sH))
    g.e('s_add_u32 s%d, s%d, %d' % (sT0, sT0, ML_OFF))
    g.e('v_lshlrev_b32 v%d, 3, v%d' % (vT0, vLane))
    g.e('buffer_load_dwordx2 %s, v%d, %s, s%d offen%s' % (vr(vPM, 2), vT0, srd('ws'), sT0, flags), 'pm')
    g.e('s_lshl_b32 s%d, s%d, 15' % (sT0, sH))
    g.e('s_lshl_b32 s%d, s%d, 12' % (sT1, sW))
    g.e('s_add_u32 s%d, s%d, s%d' % (sT0, sT0, sT1))
    g.e('s_add_u32 s%d, s%d, %d' % (sT0, sT0, O_OFF))
    g.e('v_lshlrev_b32 v%d, 4, v%d' % (vT1, vLane))
    for i in range(4):
        g.e('buffer_load_dwordx4 %s, v%d, %s, s%d offen offset:%d%s' % (vr(vPO + 4 * i, 4), vT1, srd('ws'), sT0, 1024 * i, flags), 'po')

def tail1_compute(g, stflags=''):
    vWt = vT4; vLsum = vT5
    g.e('v_mov_b32 v%d, v%d' % (vT2, vPM))
    allreduce_inrow(g, 'v_max_f32', [vT2], [8, 4, 2, 1])
    allreduce_rows(g, 'v_max_f32', [vT2], vT3)
    g.e('v_sub_f32 v%d, v%d, v%d' % (vWt, vPM, vT2))
    g.e('v_mul_f32 v%d, s%d, v%d' % (vWt, sL2E, vWt))
    g.e('v_exp_f32 v%d, v%d' % (vWt, vWt))
    g.e('v_mul_f32 v%d, v%d, v%d' % (vLsum, vWt, vPM + 1))
    allreduce_inrow(g, 'v_add_f32', [vLsum], [8, 4, 2, 1])
    allreduce_rows(g, 'v_add_f32', [vLsum], vT3)
    g.c('weights for my splits: idx = (8w + 2i + (l>>5))*4')
    g.e('v_lshrrev_b32 v%d, 5, v%d' % (vT0, vLane))
    g.e('s_lshl_b32 s%d, s%d, 3' % (sT0, sW))
    g.e('v_add_lshl_u32 v%d, v%d, s%d, 2' % (vT0, vT0, sT0))
    W4 = vOD
    for i in range(4):
        if i: g.e('v_add_u32 v%d, 8, v%d' % (vT0, vT0))
        g.e('ds_bpermute_b32 v%d, v%d, v%d' % (W4 + i, vT0, vWt))
    g.wait_lgkm(0)
    g.wait_vm('po')
    A = vAC
    for k in range(4):
        g.e('v_mul_f32 v%d, v%d, v%d' % (A + k, W4, vPO + k))
    for i in range(1, 4):
        for k in range(4):
            g.e('v_fmac_f32 v%d, v%d, v%d' % (A + k, W4 + i, vPO + 4 * i + k))
    for k in range(4):
        g.e('v_mov_b32 v%d, v%d' % (vT0, A + k))
        g.e('v_permlane32_swap_b32 v%d, v%d' % (A + k, vT0))
        g.e('v_add_f32 v%d, v%d, v%d' % (A + k, A + k, vT0))
    g.e('s_lshl_b32 s%d, s%d, 9' % (sT0, sW))
    g.e('v_lshlrev_b32 v%d, 4, v%d' % (vT0, vLane))
    g.e('v_add_u32 v%d, s%d, v%d' % (vT0, sT0, vT0))
    g.e('v_cmp_gt_u32 vcc, 32, v%d' % vLane)
    g.e('s_and_saveexec_b64 s[%d:%d], vcc' % (sEX, sEX + 1))
    g.e('ds_write_b128 v%d, %s offset:%d' % (vT0, vr(A, 4), RED_LDS))
    g.e('s_mov_b64 exec, s[%d:%d]' % (sEX, sEX + 1))
    g.wait_lgkm(0)
    g.e('s_barrier')
    lab = g.newlabel('t1skip')
    g.e('s_cmp_ge_u32 s%d, 2' % sW)
    g.e('s_cbranch_scc1 %s' % lab)
    g.c('threads 0..127: p = tid')
    g.e('v_lshlrev_b32 v%d, 2, v0' % vT0)
    for w in range(8):
        g.e('ds_read_b32 v%d, v%d offset:%d' % (A + w, vT0, RED_LDS + 512 * w))
    g.e('v_rcp_f32 v%d, v%d' % (vT1, vLsum))
    g.c('d = 32(p>>5) + 8(p&3) + 4((p>>4)&1) + ((p>>2)&3); pos = 16(d>>4) + 4(d&3) + ((d>>2)&3)')
    g.e('v_and_b32 v%d, 0x6c, v0' % vT2)
    g.e('v_bfe_u32 v%d, v0, 1, 1' % vT3)
    g.e('v_lshl_or_b32 v%d, v%d, 4, v%d' % (vT2, vT3, vT2))
    g.e('v_and_b32 v%d, 1, v0' % vT3)
    g.e('v_lshl_or_b32 v%d, v%d, 1, v%d' % (vT2, vT3, vT2))
    g.e('v_bfe_u32 v%d, v0, 4, 1' % vT3)
    g.e('v_or_b32 v%d, v%d, v%d' % (vT2, vT2, vT3))
    g.e('v_lshlrev_b32 v%d, 2, v%d' % (vT2, vT2))
    g.wait_lgkm(0)
    for w in range(1, 8):
        g.e('v_add_f32 v%d, v%d, v%d' % (A, A, A + w))
    g.e('v_mul_f32 v%d, v%d, v%d' % (vT0, A, vT1))
    g.e('v_fma_f32 v%d, -v%d, v%d, v%d' % (vT3, vT0, vLsum, A))
    g.e('v_fma_f32 v%d, v%d, v%d, v%d' % (vT0, vT3, vT1, vT0))
    g.e('v_cvt_pk_bf16_f32 v%d, v%d, v%d' % (vT0, vT0, vT0))
    g.e('ds_write_b32 v%d, v%d offset:%d' % (vT2, vT0, OD_LDS))
    g.wait_lgkm(0)
    g.label(lab)
    g.e('s_barrier')
    g.e('s_lshl_b32 s%d, s%d, 6' % (sT0, sW))
    g.e('v_lshlrev_b32 v%d, 4, v%d' % (vT0, vG))
    g.e('v_add_u32 v%d, s%d, v%d' % (vT0, sT0, vT0))
    g.e('ds_read_b128 %s, v%d offset:%d' % (vr(vOD, 4), vT0, OD_LDS))
    g.wait_vm('h')
    for jj in range(4):
        g.e('v_lshl_or_b32 v%d, v%d, 16, v%d' % (vHD + jj, vHD + jj, vHD + jj))
    g.wait_vm('wd')
    g.wait_lgkm(0)
    for ab, (vec, W) in enumerate(((vOD, vWO), (vHD, vWD))):
        for jj in range(4):
            bb = vB + 2 * (jj & 1)
            g.e('v_and_b32 v%d, v%d, v%d' % (bb, vec + jj, vMask0))
            g.e('v_and_b32 v%d, v%d, v%d' % (bb + 1, vec + jj, vMask1))
            for a in range(2):
                acc = vAC + 8 * ab + 4 * a
                g.e('v_mfma_f32_16x16x16_bf16 %s, %s, %s, %s' % (vr(acc, 4), vr(W + 4 * jj + 2 * a, 2), vr(bb, 2), '0' if jj == 0 else vr(acc, 4)))
    g.c('write red2: (w*2+ab)*512 + ((2g+a)*4+e0)*16, lanes n<4')
    g.e('s_lshl_b32 s%d, s%d, 10' % (sT0, sW))
    g.e('v_lshlrev_b32 v%d, 7, v%d' % (vT0, vG))
    g.e('v_lshl_add_u32 v%d, v%d, 4, v%d' % (vT0, vL15, vT0))
    g.e('v_add_u32 v%d, s%d, v%d' % (vT0, sT0, vT0))
    g.e('v_cmp_gt_u32 vcc, 4, v%d' % vL15)
    g.e('s_and_saveexec_b64 s[%d:%d], vcc' % (sEX, sEX + 1))
    for ab in range(2):
        for a in range(2):
            g.e('ds_write_b128 v%d, %s offset:%d' % (vT0, vr(vAC + 8 * ab + 4 * a, 4), RED2_LDS + ab * 512 + a * 64))
    g.e('s_mov_b64 exec, s[%d:%d]' % (sEX, sEX + 1))
    g.wait_lgkm(0)
    g.e('s_barrier')
    lab2 = g.newlabel('t1skip2')
    g.e('s_cmp_ge_u32 s%d, 4' % sW)
    g.e('s_cbranch_scc1 %s' % lab2)
    g.c('threads 0..255: ab = t>>7, p = t&127')
    g.e('v_lshlrev_b32 v%d, 2, v0' % vT0)
    for w in range(8):
        g.e('ds_read_b32 v%d, v%d offset:%d' % (vPO + w, vT0, RED2_LDS + 1024 * w))
    g.e('v_and_b32 v%d, 0xe0, v0' % vT2)
    g.e('v_and_b32 v%d, 3, v0' % vT3)
    g.e('v_lshl_or_b32 v%d, v%d, 3, v%d' % (vT2, vT3, vT2))
    g.e('v_bfe_u32 v%d, v0, 4, 1' % vT3)
    g.e('v_lshl_or_b32 v%d, v%d, 2, v%d' % (vT2, vT3, vT2))
    g.e('v_bfe_u32 v%d, v0, 2, 2' % vT3)
    g.e('v_or_b32 v%d, v%d, v%d' % (vT2, vT2, vT3))
    g.e('v_lshlrev_b32 v%d, 2, v%d' % (vT2, vT2))
    g.e('s_lshl_b32 s%d, s%d, 5' % (sT0, sB))
    g.e('s_add_u32 s%d, s%d, s%d' % (sT0, sT0, sH))
    g.e('s_lshl_b32 s%d, s%d, 10' % (sT0, sT0))
    g.e('s_add_u32 s%d, s%d, 0x%x' % (sT0, sT0, P2_OFF))
    g.wait_lgkm(0)
    for w in range(1, 8):
        g.e('v_add_f32 v%d, v%d, v%d' % (vPO, vPO, vPO + w))
    g.e('buffer_store_dword v%d, v%d, %s, s%d offen%s' % (vPO, vT2, srd('ws'), sT0, stflags), 'st')
    g.label(lab2)

def tail1(g):
    make_masks(g)
    tail_pload(g)
    tail_wloads(g, NT)
    tail_hload(g)
    g.wait_vm('pm')
    tail1_compute(g)

def tail2_load(g, flags=''):
    g.c('lane(h2=l&31, ab=l>>5): P2_OFF + (((b*32+h2)*2+ab)*128 + 4h)*4')
    g.e('v_and_b32 v%d, 31, v%d' % (vT0, vLane))
    g.e('v_lshrrev_b32 v%d, 5, v%d' % (vT1, vLane))
    g.e('v_lshlrev_b32 v%d, 10, v%d' % (vT0, vT0))
    g.e('v_lshl_add_u32 v%d, v%d, 9, v%d' % (vA0, vT1, vT0))
    g.e('s_lshl_b32 s%d, s%d, 15' % (sT0, sB))
    g.e('s_lshl_b32 s%d, s%d, 4' % (sT1, sH))
    g.e('s_add_u32 s%d, s%d, s%d' % (sT0, sT0, sT1))
    g.e('s_add_u32 s%d, s%d, 0x%x' % (sT0, sT0, P2_OFF))
    g.e('buffer_load_dwordx4 %s, v%d, %s, s%d offen%s' % (vr(64, 4), vA0, srd('ws'), sT0, flags), 'p2')

def tail2_xload(g):
    g.e('s_lshl_b32 s%d, s%d, 8' % (sT1, sB))
    g.e('s_lshl_b32 s%d, s%d, 3' % (sT2, sH))
    g.e('s_add_u32 s%d, s%d, s%d' % (sT1, sT1, sT2))
    g.e('v_mov_b32 v%d, s%d' % (vA1, sT1))
    g.e('buffer_load_dwordx2 %s, v%d, %s, 0 offen' % (vr(72, 2), vA1, srd('x')), 'x2')

def tail2_compute(g):
    R = 64
    regs = [R, R + 1, R + 2, R + 3]
    allreduce_inrow(g, 'v_add_f32', regs, [8, 4, 2, 1])
    for r in regs:
        g.e('v_mov_b32 v%d, v%d' % (vT0, r))
        g.e('v_permlane16_swap_b32 v%d, v%d' % (r, vT0))
        g.e('v_add_f32 v%d, v%d, v%d' % (r, r, vT0))
    for k, r in enumerate(regs):
        g.e('v_mov_b32 v%d, v%d' % (R + 4 + k, r))
        g.e('v_permlane32_swap_b32 v%d, v%d' % (r, R + 4 + k))
    g.wait_vm('x2')
    X = 76
    g.e('v_lshlrev_b32 v%d, 16, v72' % X)
    g.e('v_and_b32 v%d, s%d, v72' % (X + 1, sHI))
    g.e('v_lshlrev_b32 v%d, 16, v73' % (X + 2))
    g.e('v_and_b32 v%d, s%d, v73' % (X + 3, sHI))
    for k in range(4):
        round_bf16(g, R + k, R + k)
        round_bf16(g, R + 4 + k, R + 4 + k)
        g.e('v_add_f32 v%d, v%d, v%d' % (R + k, R + k, X + k))
        round_bf16(g, R + k, R + k)
        g.e('v_add_f32 v%d, v%d, v%d' % (R + k, R + k, R + 4 + k))
    g.e('v_cvt_pk_bf16_f32 v%d, v%d, v%d' % (X, R, R + 1))
    g.e('v_cvt_pk_bf16_f32 v%d, v%d, v%d' % (X + 1, R + 2, R + 3))
    g.e('v_cmp_eq_u32 vcc, 0, v%d' % vLane)
    g.e('s_and_saveexec_b64 s[%d:%d], vcc' % (sEX, sEX + 1))
    g.e('buffer_store_dwordx2 %s, v%d, %s, 0 offen' % (vr(X, 2), vA1, srd('out')), 'st')
    g.e('s_mov_b64 exec, s[%d:%d]' % (sEX, sEX + 1))

def tail2(g):
    tail2_load(g)
    tail2_xload(g)
    g.wait_vm('p2')
    tail2_compute(g)

_lab = [0]
def kernel(name, body, used, nvgpr=256):
    g = Gen()
    g.endlabel = 'L_end_' + name
    def newlabel(p):
        _lab[0] += 1
        return 'L_%s_%d' % (p, _lab[0])
    g.newlabel = newlabel
    g.raw('.globl %s' % name)
    g.raw('.p2align 8')
    g.raw('.type %s,@function' % name)
    g.raw('%s:' % name)
    prologue(g, used)
    body(g)
    g.label(g.endlabel)
    g.e('s_endpgm')
    kd = '''.amdhsa_kernel %s
  .amdhsa_next_free_vgpr %d
  .amdhsa_next_free_sgpr 102
  .amdhsa_accum_offset %d
  .amdhsa_group_segment_fixed_size 0
  .amdhsa_kernarg_size 96
  .amdhsa_user_sgpr_count 2
  .amdhsa_user_sgpr_kernarg_segment_ptr 1
  .amdhsa_system_sgpr_workgroup_id_x 1
  .amdhsa_float_denorm_mode_32 3
  .amdhsa_float_denorm_mode_16_64 3
.end_amdhsa_kernel
''' % (name, nvgpr, nvgpr)
    return g.text(), kd

HEADER = open('cdna_kernels/%s.s.ref' % NAME).read().split('; Override launch')[0]

def main():
    ks = [
        ('head_kernel', head, ['x', 'wq', 'wg', 'wu', 'ws'], 512, 12288),
        ('attn_kernel', attn, ['K', 'V', 'ws'], 512, 40960),
        ('tail1_kernel', tail1, ['wo', 'wd', 'ws'], 512, 20480),
        ('tail2_kernel', tail2, ['x', 'out', 'ws'], 64, 0),
    ]
    out = HEADER
    for n, _, _, blk, lds in ks:
        out += '; @launch kernel=%s grid=(256,1,1) block=(%d,1,1) lds=%d\n' % (n, blk, lds)
    out += '.amdgcn_target "amdgcn-amd-amdhsa--gfx950"\n.text\n'
    kds = ''
    for n, body, used, blk, lds in ks:
        t, kd = kernel(n, body, used)
        out += t
        kds += '.p2align 6\n' + kd
    out += '.section .rodata,"a"\n' + kds
    path = sys.argv[1] if len(sys.argv) > 1 else 'cdna_kernels/%s.s' % NAME
    open(path, 'w').write(out)
    print('wrote', path, len(out))

if __name__ == '__main__':
    main()
```

```python
import sys
sys.path.insert(0, 'gen')
from asmgen import Gen

NAME = 'parallel_sum__gqa_block_cached__geglu_ffn__decode'

Q_OFF = 0
H_OFF = 8192
ML_OFF = 16384
O_OFF = 32768
P2_OFF = 0x110000
WS_BYTES = 268435456

L2E = 0x3fb8aa3b
SCALE = 0x3db504f3

sW, sX8, sJ, sKV, sU, sH, sB = 3, 4, 5, 6, 7, 8, 9
sT0, sT1, sT2, sT3 = 10, 11, 12, 13
SRD = dict(x=40, K=44, V=48, wq=52, wo=56, wg=60, wu=64, wd=68, out=72, dbg=76, ws=80)
PTR = dict(x=16, K=18, V=20, wq=22, wo=24, bx=26, wg=28, wu=30, wd=32, out=34, dbg=36, ws=38)
SIZE = dict(x=2048, K=67108864, V=67108864, wq=8388608, wo=8388608, wg=7340032, wu=7340032,
            wd=7340032, out=2048, dbg=256, ws=WS_BYTES)
sL2E, sSCALE, sHI = 84, 85, 86
sEX = 88
sM0 = 90

def srd(n): return 's[%d:%d]' % (SRD[n], SRD[n] + 3)
def vr(a, n): return 'v[%d:%d]' % (a, a + n - 1)

vLane, vL15, vG, vMask0, vMask1 = 1, 2, 3, 4, 5
vA0, vA1, vA2, vA3 = 6, 7, 8, 9
vT0, vT1, vT2, vT3, vT4, vT5 = 10, 11, 12, 13, 14, 15

def prologue(g, used):
    g.e('s_cmp_ge_u32 s2, 256')
    g.e('s_cbranch_scc1 %s' % g.endlabel)
    g.e('s_load_dwordx16 s[16:31], s[0:1], 0')
    g.e('s_load_dwordx8 s[32:39], s[0:1], 64')
    g.e('s_and_b32 s%d, s2, 7' % sX8)
    g.e('s_lshr_b32 s%d, s2, 3' % sJ)
    g.e('s_lshr_b32 s%d, s%d, 3' % (sKV, sJ))
    g.e('s_and_b32 s%d, s%d, 7' % (sB, sJ))
    g.e('s_lshl_b32 s%d, s%d, 3' % (sU, sX8))
    g.e('s_add_u32 s%d, s%d, s%d' % (sU, sU, sB))
    g.e('s_lshl_b32 s%d, s%d, 3' % (sH, sKV))
    g.e('s_add_u32 s%d, s%d, s%d' % (sH, sH, sX8))
    g.e('v_lshrrev_b32 v%d, 6, v0' % vT0)
    g.e('v_and_b32 v%d, 63, v0' % vLane)
    g.e('v_readfirstlane_b32 s%d, v%d' % (sW, vT0))
    g.e('v_and_b32 v%d, 15, v0' % vL15)
    g.e('v_lshrrev_b32 v%d, 4, v%d' % (vG, vLane))
    g.e('s_mov_b32 s%d, 0x%x' % (sL2E, L2E))
    g.e('s_mov_b32 s%d, 0x%x' % (sSCALE, SCALE))
    g.e('s_mov_b32 s%d, 0xffff0000' % sHI)
    g.e('s_waitcnt lgkmcnt(0)')
    for n in used:
        b = SRD[n]; p = PTR[n]
        g.e('s_mov_b32 s%d, s%d' % (b, p))
        g.e('s_and_b32 s%d, s%d, 0xffff' % (b + 1, p + 1))
        g.e('s_mov_b32 s%d, 0x%x' % (b + 2, SIZE[n]))
        g.e('s_mov_b32 s%d, 0x20000' % (b + 3))

STAMP = int(__import__('os').environ.get('STAMP', '0'))
STAMP_OFF = 0x200000
def stamp(g, idx):
    if not STAMP: return
    g.e('s_memrealtime s[92:93]')
    g.e('s_waitcnt lgkmcnt(0)')
    g.e('s_mov_b32 s%d, s92' % (94 + idx))
def stamp_store(g, kidx):
    if not STAMP: return
    stamp(g, 7)
    for i in range(8):
        g.e('v_mov_b32 v%d, s%d' % (16 + i, 94 + i))
    g.e('s_lshl_b32 s92, s2, 3')
    g.e('s_add_u32 s92, s92, s%d' % sW)
    g.e('s_lshl_b32 s92, s92, 5')
    g.e('s_add_u32 s92, s92, 0x%x' % (STAMP_OFF + kidx * 65536))
    g.e('v_mov_b32 v24, 0')
    g.e('s_mov_b64 exec, 1')
    g.e('buffer_store_dwordx4 v[16:19], v24, %s, s92 offen' % srd('ws'))
    g.e('buffer_store_dwordx4 v[20:23], v24, %s, s92 offen offset:16' % srd('ws'))

def make_masks(g):
    g.e('v_and_b32 v%d, 3, v%d' % (vT0, vLane))
    g.e('v_and_b32 v%d, 1, v%d' % (vT1, vLane))
    g.e('v_lshlrev_b32 v%d, 4, v%d' % (vT1, vT1))
    g.e('v_mov_b32 v%d, 0xffff' % vT2)
    g.e('v_lshlrev_b32 v%d, v%d, v%d' % (vT2, vT1, vT2))
    g.e('v_cmp_gt_u32 vcc, 2, v%d' % vT0)
    g.e('v_cndmask_b32 v%d, 0, v%d, vcc' % (vMask0, vT2))
    g.e('v_cndmask_b32 v%d, v%d, 0, vcc' % (vMask1, vT2))

def allreduce_rows(g, op, regs, tmp):
    for r in regs:
        g.e('v_mov_b32 v%d, v%d' % (tmp, r))
        g.e('v_permlane16_swap_b32 v%d, v%d' % (r, tmp))
        g.e('%s v%d, v%d, v%d' % (op, r, r, tmp))
        g.e('v_mov_b32 v%d, v%d' % (tmp, r))
        g.e('v_permlane32_swap_b32 v%d, v%d' % (r, tmp))
        g.e('%s v%d, v%d, v%d' % (op, r, r, tmp))

def allreduce_inrow(g, op, regs, rors):
    for ro in rors:
        for r in regs:
            g.e('%s_dpp v%d, v%d, v%d row_ror:%d row_mask:0xf bank_mask:0xf' % (op, r, r, r, ro))

def round_bf16(g, dst, src, tmp=None):
    g.e('v_cvt_pk_bf16_f32 v%d, v%d, v%d' % (dst, src, src))
    g.e('v_and_b32 v%d, s%d, v%d' % (dst, sHI, dst))

XN_LDS = 0
HP_LDS = 4096
def head(g):
    vX = 224
    vXF = 232
    vWQ = 16
    vWG = 192
    vWU = 208
    vACC = 32
    vXN = 56
    g.c('x loads')
    g.e('v_lshlrev_b32 v%d, 5, v%d' % (vA0, vLane))
    g.e('buffer_load_dwordx4 %s, v%d, %s, 0 offen' % (vr(vX, 4), vA0, srd('x')), 'x')
    g.e('buffer_load_dwordx4 %s, v%d, %s, 0 offen offset:16' % (vr(vX + 4, 4), vA0, srd('x')), 'x')
    g.c('wq loads: voff = (128w+4rho)*8192 + kv*2048 + u*32 + c*16')
    g.e('v_lshrrev_b32 v%d, 1, v%d' % (vT0, vLane))
    g.e('v_and_b32 v%d, 1, v%d' % (vT1, vLane))
    g.e('v_lshlrev_b32 v%d, 2, v%d' % (vT0, vT0))
    g.e('s_lshl_b32 s%d, s%d, 7' % (sT0, sW))
    g.e('v_add_u32 v%d, s%d, v%d' % (vT0, sT0, vT0))
    g.e('v_lshlrev_b32 v%d, 4, v%d' % (vT1, vT1))
    g.e('s_lshl_b32 s%d, s%d, 11' % (sT1, sKV))
    g.e('s_lshl_b32 s%d, s%d, 5' % (sT2, sU))
    g.e('s_add_u32 s%d, s%d, s%d' % (sT1, sT1, sT2))
    g.e('v_lshlrev_b32 v%d, 13, v%d' % (vA1, vT0))
    g.e('v_add3_u32 v%d, v%d, v%d, s%d' % (vA1, vA1, vT1, sT1))
    for i in range(4):
        g.e('s_mov_b32 s%d, %d' % (sT3, i * 8192))
        g.e('buffer_load_dwordx4 %s, v%d, %s, s%d offen' % (vr(vWQ + 4 * i, 4), vA1, srd('wq'), sT3), 'wq')
    g.c('gate/up loads: voff = row0*7168 + tau*32 + c*16 ; tau = 28*x8 + j (j<28) else OOB')
    g.e('s_mul_i32 s%d, s%d, 28' % (sT1, sX8))
    g.e('s_add_u32 s%d, s%d, s%d' % (sT1, sT1, sJ))
    g.e('s_lshl_b32 s%d, s%d, 5' % (sT1, sT1))
    g.e('s_cmp_ge_u32 s%d, 28' % sJ)
    g.e('s_cselect_b32 s%d, 0x40000000, s%d' % (sT1, sT1))
    g.e('s_mov_b32 s%d, 7168' % sT2)
    g.e('v_mul_lo_u32 v%d, v%d, s%d' % (vA2, vT0, sT2))
    g.e('v_add3_u32 v%d, v%d, v%d, s%d' % (vA2, vA2, vT1, sT1))
    for i in range(4):
        g.e('s_mov_b32 s%d, %d' % (sT3, i * 7168))
        g.e('buffer_load_dwordx4 %s, v%d, %s, s%d offen' % (vr(vWG + 4 * i, 4), vA2, srd('wg'), sT3), 'wg')
        g.e('buffer_load_dwordx4 %s, v%d, %s, s%d offen' % (vr(vWU + 4 * i, 4), vA2, srd('wu'), sT3), 'wu')
    g.e('s_mov_b32 s%d, s%d' % (14, sT1))
    g.c('xn read address')
    g.e('v_lshlrev_b32 v%d, 2, v%d' % (vA3, vT0))
    stamp(g, 1)
    g.c('---- layernorm')
    g.wait_vm('x')
    stamp(g, 2)
    for k in range(8):
        g.e('v_lshlrev_b32 v%d, 16, v%d' % (vXF + 2 * k, vX + k))
        g.e('v_and_b32 v%d, s%d, v%d' % (vXF + 2 * k + 1, sHI, vX + k))
    g.e('v_add_f32 v%d, v%d, v%d' % (vT2, vXF, vXF + 1))
    for k in range(2, 16):
        g.e('v_add_f32 v%d, v%d, v%d' % (vT2, vT2, vXF + k))
    allreduce_inrow(g, 'v_add_f32', [vT2], [8, 4, 2, 1])
    allreduce_rows(g, 'v_add_f32', [vT2], vT3)
    g.e('v_mul_f32 v%d, 0x3a800000, v%d' % (vT2, vT2))
    g.e('v_sub_f32 v%d, v%d, v%d' % (vT3, vXF, vT2))
    g.e('v_mul_f32 v%d, v%d, v%d' % (vT4, vT3, vT3))
    for k in range(1, 16):
        g.e('v_sub_f32 v%d, v%d, v%d' % (vT3, vXF + k, vT2))
        g.e('v_fmac_f32 v%d, v%d, v%d' % (vT4, vT3, vT3))
    allreduce_inrow(g, 'v_add_f32', [vT4], [8, 4, 2, 1])
    allreduce_rows(g, 'v_add_f32', [vT4], vT3)
    g.e('v_mul_f32 v%d, 0x3a800000, v%d' % (vT4, vT4))
    round_bf16(g, vT2, vT2)
    round_bf16(g, vT4, vT4)
    g.e('v_add_f32 v%d, 0x3727c5ac, v%d' % (vT4, vT4))
    round_bf16(g, vT4, vT4)
    g.e('v_sqrt_f32 v%d, v%d' % (vT4, vT4))
    round_bf16(g, vT4, vT4)
    g.e('v_rcp_f32 v%d, v%d' % (vT5, vT4))
    for k in range(0, 16, 2):
        a, b = vXF + k, vXF + k + 1
        g.e('v_sub_f32 v%d, v%d, v%d' % (a, a, vT2))
        g.e('v_sub_f32 v%d, v%d, v%d' % (b, b, vT2))
        g.e('v_cvt_pk_bf16_f32 v%d, v%d, v%d' % (vT3, a, b))
        g.e('v_lshlrev_b32 v%d, 16, v%d' % (a, vT3))
        g.e('v_and_b32 v%d, s%d, v%d' % (b, sHI, vT3))
        for r in (a, b):
            g.e('v_mul_f32 v%d, v%d, v%d' % (vT0, r, vT5))
            g.e('v_fma_f32 v%d, -v%d, v%d, v%d' % (vT1, vT0, vT4, r))
            g.e('v_fma_f32 v%d, v%d, v%d, v%d' % (r, vT1, vT5, vT0))
        g.e('v_cvt_pk_bf16_f32 v%d, v%d, v%d' % (vT3, a, b))
        g.e('v_lshlrev_b32 v%d, 16, v%d' % (a, vT3))
        g.e('v_and_b32 v%d, s%d, v%d' % (b, sHI, vT3))
    g.e('v_lshlrev_b32 v%d, 6, v%d' % (vT0, vLane))
    for k in range(4):
        g.e('ds_write_b128 v%d, %s offset:%d' % (vT0, vr(vXF + 4 * k, 4), XN_LDS + 16 * k))
    g.wait_lgkm(0)
    g.e('ds_read_b128 %s, v%d offset:%d' % (vr(vXN, 4), vA3, XN_LDS))
    g.wait_lgkm(0)
    stamp(g, 3)
    g.c('---- gemv FMAs')
    for s_i, (vW, tag) in enumerate(((vWQ, 'wq'), (vWG, 'wg'), (vWU, 'wu'))):
        if tag != 'wu':
            g.wait_vm('wq' if tag == 'wq' else 'wu')
        acc = vACC + 8 * s_i
        for i in range(4):
            for k in range(4):
                w = vW + 4 * i + k
                g.e('v_lshlrev_b32 v%d, 16, v%d' % (vT0, w))
                g.e('v_and_b32 v%d, s%d, v%d' % (vT1, sHI, w))
                if i == 0:
                    g.e('v_mul_f32 v%d, v%d, v%d' % (acc + 2 * k, vT0, vXN + i))
                    g.e('v_mul_f32 v%d, v%d, v%d' % (acc + 2 * k + 1, vT1, vXN + i))
                else:
                    g.e('v_fmac_f32 v%d, v%d, v%d' % (acc + 2 * k, vT0, vXN + i))
                    g.e('v_fmac_f32 v%d, v%d, v%d' % (acc + 2 * k + 1, vT1, vXN + i))
    stamp(g, 4)
    allreduce_inrow(g, 'v_add_f32', list(range(vACC, vACC + 24)), [8, 4, 2])
    g.c('write partials: addr = ((set*32 + 4w + row)*16 + 8c)*4')
    g.e('s_lshl_b32 s%d, s%d, 2' % (sT0, sW))
    g.e('v_add_u32 v%d, s%d, v%d' % (vT0, sT0, vG))
    g.e('v_lshlrev_b32 v%d, 6, v%d' % (vT0, vT0))
    g.e('v_and_b32 v%d, 1, v%d' % (vT1, vLane))
    g.e('v_lshl_add_u32 v%d, v%d, 5, v%d' % (vT0, vT1, vT0))
    g.e('v_cmp_gt_u32 vcc, 2, v%d' % vL15)
    g.e('s_and_saveexec_b64 s[%d:%d], vcc' % (sEX, sEX + 1))
    for s_i in range(3):
        for hf in range(2):
            g.e('ds_write_b128 v%d, %s offset:%d' % (vT0, vr(vACC + 8 * s_i + 4 * hf, 4), HP_LDS + s_i * 2048 + hf * 16))
    g.e('s_mov_b64 exec, s[%d:%d]' % (sEX, sEX + 1))
    g.wait_lgkm(0)
    stamp(g, 5)
    g.e('s_barrier')
    stamp(g, 6)
    g.e('s_cmp_lg_u32 s%d, 0' % sW)
    g.e('s_cbranch_scc1 %s' % g.endlabel2)
    g.c('---- wave 0: final reduce: lane(col=l&15, pg=l>>4)')
    g.e('v_lshlrev_b32 v%d, 9, v%d' % (vT0, vG))
    g.e('v_lshl_add_u32 v%d, v%d, 2, v%d' % (vT0, vL15, vT0))
    R = 64
    for s_i in range(3):
        for k in range(8):
            g.e('ds_read_b32 v%d, v%d offset:%d' % (R + s_i * 8 + k, vT0, HP_LDS + s_i * 2048 + k * 64))
    g.wait_lgkm(0)
    for s_i in range(3):
        b = R + s_i * 8
        for k in range(1, 8):
            g.e('v_add_f32 v%d, v%d, v%d' % (b, b, b + k))
    allreduce_rows(g, 'v_add_f32', [R, R + 8, R + 16], vT1)
    vq, vg_, vu = R, R + 8, R + 16
    g.e('v_cvt_pk_bf16_f32 v%d, v%d, v%d' % (vq, vq, vq))
    round_bf16(g, vg_, vg_)
    round_bf16(g, vu, vu)
    g.c('gelu(g) = g / (1 + exp(-2*beta*(g + kappa g^3)))')
    g.e('v_mul_f32 v%d, v%d, v%d' % (vT1, vg_, vg_))
    g.e('v_mul_f32 v%d, v%d, v%d' % (vT1, vT1, vg_))
    g.e('v_mul_f32 v%d, 0x3d372713, v%d' % (vT1, vT1))
    g.e('v_add_f32 v%d, v%d, v%d' % (vT1, vT1, vg_))
    g.e('v_mul_f32 v%d, 0x3f4c422a, v%d' % (vT1, vT1))
    g.e('v_mul_f32 v%d, 0xc038aa3b, v%d' % (vT1, vT1))
    g.e('v_exp_f32 v%d, v%d' % (vT1, vT1))
    g.e('v_add_f32 v%d, 1.0, v%d' % (vT1, vT1))
    g.e('v_rcp_f32 v%d, v%d' % (vT1, vT1))
    g.e('v_mul_f32 v%d, v%d, v%d' % (vT1, vT1, vg_))
    round_bf16(g, vT1, vT1)
    g.e('v_mul_f32 v%d, v%d, v%d' % (vT1, vT1, vu))
    g.e('v_cvt_pk_bf16_f32 v%d, v%d, v%d' % (vT1, vT1, vT1))
    g.c('stores (lanes 0..15)')
    g.e('s_lshl_b32 s%d, s%d, 11' % (sT1, sKV))
    g.e('s_lshl_b32 s%d, s%d, 5' % (sT2, sU))
    g.e('s_add_u32 s%d, s%d, s%d' % (sT1, sT1, sT2))
    g.e('v_lshlrev_b32 v%d, 1, v%d' % (vT2, vLane))
    g.e('v_add_u32 v%d, s%d, v%d' % (vT3, sT1, vT2))
    g.e('v_add_u32 v%d, s14, v%d' % (vT4, vT2))
    g.e('v_cmp_gt_u32 vcc, 16, v%d' % vLane)
    g.e('s_and_saveexec_b64 s[%d:%d], vcc' % (sEX, sEX + 1))
    g.e('buffer_store_short v%d, v%d, %s, 0 offen offset:%d' % (vq, vT3, srd('ws'), Q_OFF), 'st')
    g.e('s_mov_b32 s%d, %d' % (sT3, H_OFF))
    g.e('buffer_store_short v%d, v%d, %s, s%d offen' % (vT1, vT4, srd('ws'), sT3), 'st')
    g.e('s_mov_b64 exec, s[%d:%d]' % (sEX, sEX + 1))

OP_LDS = 0
HS = 576
WSTR = 8 * HS
ML_LDS = 8 * WSTR
vQ = 16
vS = 32
vK = 64
vV = 192
vB = 240
vM, vLs, vML = 248, 249, 250

import os
PAT = int(os.environ.get('PAT', '1'))
TSTRIDE = 4096 if PAT == 1 else 4096 * 512
def vtile_reg(T):
    return vV + 16 * T if T < 3 else vK + 16 * (T - 3)

def attn_addrs(g):
    g.c('K addr: kv<<24 + (1024u+128w+l15)*256 + g*16')
    g.e('s_lshl_b32 s%d, s%d, 24' % (sT0, sKV))
    g.e('s_lshl_b32 s%d, s%d, %d' % (sT1, sU, 18 if PAT == 1 else 15))
    g.e('s_add_u32 s%d, s%d, s%d' % (sT0, sT0, sT1))
    g.e('s_lshl_b32 s%d, s%d, %d' % (sT1, sW, 15 if PAT == 1 else 12))
    g.e('s_add_u32 s%d, s%d, s%d' % (sT0, sT0, sT1))
    g.e('v_lshlrev_b32 v%d, 8, v%d' % (vT0, vL15))
    g.e('v_lshl_add_u32 v%d, v%d, 4, v%d' % (vT0, vG, vT0))
    g.e('v_add_u32 v%d, s%d, v%d' % (vA0, sT0, vT0))
    g.e('v_lshlrev_b32 v%d, 10, v%d' % (vT0, vG))
    g.e('v_lshl_add_u32 v%d, v%d, 4, v%d' % (vT0, vL15, vT0))
    g.e('v_add_u32 v%d, s%d, v%d' % (vA1, sT0, vT0))

def load_ktile(g, T, nt=''):
    g.e('s_mov_b32 s%d, %d' % (sT3, T * TSTRIDE))
    for j in range(4):
        g.e('buffer_load_dwordx4 %s, v%d, %s, s%d offen offset:%d%s' % (vr(vK + 16 * T + 4 * j, 4), vA0, srd('K'), sT3, 64 * j, nt), 'K%d' % T)

def load_vtile(g, T, nt=''):
    g.e('s_mov_b32 s%d, %d' % (sT3, T * TSTRIDE))
    b = vtile_reg(T)
    for r in range(4):
        g.e('buffer_load_dwordx4 %s, v%d, %s, s%d offen offset:%d%s' % (vr(b + 4 * r, 4), vA1, srd('V'), sT3, 256 * r, nt), 'V%d' % T)

def load_q(g, flags=''):
    g.c('Q frag: Q_OFF + (kv*1024 + eta(n)*128 + 8g)*2 + 64j ; eta(n) = (n>>2) + 4*((n>>1)&1)')
    g.e('v_lshrrev_b32 v%d, 2, v%d' % (vT0, vL15))
    g.e('v_bfe_u32 v%d, v%d, 1, 1' % (vT1, vL15))
    g.e('v_lshl_add_u32 v%d, v%d, 2, v%d' % (vT0, vT1, vT0))
    g.e('v_lshlrev_b32 v%d, 8, v%d' % (vT1, vT0))
    g.e('v_lshl_add_u32 v%d, v%d, 4, v%d' % (vT1, vG, vT1))
    g.e('s_lshl_b32 s%d, s%d, 11' % (sT1, sKV))
    g.e('v_add_u32 v%d, s%d, v%d' % (vA2, sT1, vT1))
    for j in range(4):
        g.e('buffer_load_dwordx4 %s, v%d, %s, 0 offen offset:%d%s' % (vr(vQ + 4 * j, 4), vA2, srd('ws'), Q_OFF + 64 * j, flags), 'Q')

def qk_tile(g, T):
    s = vS + 4 * T
    for j in range(4):
        g.e('v_mfma_f32_16x16x32_bf16 %s, %s, %s, %s' % (vr(s, 4), vr(vK + 16 * T + 4 * j, 4), vr(vQ + 4 * j, 4), '0' if j == 0 else vr(s, 4)))

def score_tile(g, T):
    s = vS + 4 * T
    g.e('v_cvt_pk_bf16_f32 v%d, v%d, v%d' % (vT0, s, s + 1))
    g.e('v_cvt_pk_bf16_f32 v%d, v%d, v%d' % (vT1, s + 2, s + 3))
    g.e('v_lshlrev_b32 v%d, 16, v%d' % (s, vT0))
    g.e('v_and_b32 v%d, s%d, v%d' % (s + 1, sHI, vT0))
    g.e('v_lshlrev_b32 v%d, 16, v%d' % (s + 2, vT1))
    g.e('v_and_b32 v%d, s%d, v%d' % (s + 3, sHI, vT1))
    for k in range(4):
        g.e('v_mul_f32 v%d, s%d, v%d' % (s + k, sSCALE, s + k))
    g.e('v_cvt_pk_bf16_f32 v%d, v%d, v%d' % (vT0, s, s + 1))
    g.e('v_cvt_pk_bf16_f32 v%d, v%d, v%d' % (vT1, s + 2, s + 3))
    g.e('v_lshlrev_b32 v%d, 16, v%d' % (s, vT0))
    g.e('v_and_b32 v%d, s%d, v%d' % (s + 1, sHI, vT0))
    g.e('v_lshlrev_b32 v%d, 16, v%d' % (s + 2, vT1))
    g.e('v_and_b32 v%d, s%d, v%d' % (s + 3, sHI, vT1))
    if T == 0:
        g.e('v_max_f32 v%d, v%d, v%d' % (vM, s, s + 1))
    else:
        g.e('v_max3_f32 v%d, v%d, v%d, v%d' % (vM, vM, s, s + 1))
    g.e('v_max3_f32 v%d, v%d, v%d, v%d' % (vM, vM, s + 2, s + 3))

def softmax_all(g):
    allreduce_rows(g, 'v_max_f32', [vM], vT0)
    g.e('v_mul_f32 v%d, s%d, v%d' % (vML, sL2E, vM))
    for i in range(32):
        s = vS + i
        g.e('v_fma_f32 v%d, v%d, s%d, -v%d' % (s, s, sL2E, vML))
    for i in range(32):
        s = vS + i
        g.e('v_exp_f32 v%d, v%d' % (s, s))
    g.e('v_add_f32 v%d, v%d, v%d' % (vLs, vS, vS + 1))
    for i in range(2, 32):
        g.e('v_add_f32 v%d, v%d, v%d' % (vLs, vLs, vS + i))
    for i in range(32):
        s = vS + i
        g.e('v_cvt_pk_bf16_f32 v%d, v%d, v%d' % (s, s, s))
    allreduce_rows(g, 'v_add_f32', [vLs], vT0)

def pv_tile(g, T):
    vb = vtile_reg(T)
    for r in range(4):
        p = vS + 4 * T + r
        bb = vB + 4 * (r & 1)
        for u in range(2):
            q = 2 * u
            g.e('v_and_b32_dpp v%d, v%d, v%d quad_perm:[%d,%d,%d,%d] row_mask:0xf bank_mask:0xf' % (bb + 2 * u, p, vMask0, q, q, q, q))
            g.e('v_and_b32_dpp v%d, v%d, v%d quad_perm:[%d,%d,%d,%d] row_mask:0xf bank_mask:0xf' % (bb + 2 * u + 1, p, vMask1, q, q, q, q))
        for u in range(2):
            for a in range(2):
                acc = vQ + 4 * (2 * u + a)
                first = (T == 0 and r == 0)
                g.e('v_mfma_f32_16x16x16_bf16 %s, %s, %s, %s' % (vr(acc, 4), vr(vb + 4 * r + 2 * a, 2), vr(bb + 2 * u, 2), '0' if first else vr(acc, 4)))

def attn_combine(g, stflags=''):
    g.c('write O partials to LDS: w*WSTR + (4u+hq)*HS + ((2g+a)*4+e0)*16')
    g.e('v_lshrrev_b32 v%d, 2, v%d' % (vT0, vL15))
    g.e('v_and_b32 v%d, 3, v%d' % (vT1, vLane))
    g.e('s_mul_i32 s%d, s%d, %d' % (sT0, sW, WSTR))
    g.e('v_mul_u32_u24 v%d, %d, v%d' % (vT0, HS, vT0))
    g.e('v_lshlrev_b32 v%d, 7, v%d' % (vT2, vG))
    g.e('v_lshl_add_u32 v%d, v%d, 4, v%d' % (vT2, vT1, vT2))
    g.e('v_add3_u32 v%d, v%d, v%d, s%d' % (vT0, vT0, vT2, sT0))
    for u in range(2):
        for a in range(2):
            g.e('ds_write_b128 v%d, %s offset:%d' % (vT0, vr(vQ + 4 * (2 * u + a), 4), OP_LDS + u * 4 * HS + a * 64))
    g.c('m,l: lanes g==0 and (n&1)==0 -> ML_LDS + (w*8+eta)*8')
    g.e('v_lshrrev_b32 v%d, 2, v%d' % (vT0, vL15))
    g.e('v_bfe_u32 v%d, v%d, 1, 1' % (vT1, vL15))
    g.e('v_lshl_add_u32 v%d, v%d, 2, v%d' % (vT0, vT1, vT0))
    g.e('s_lshl_b32 s%d, s%d, 6' % (sT0, sW))
    g.e('v_lshlrev_b32 v%d, 3, v%d' % (vT0, vT0))
    g.e('v_add_u32 v%d, s%d, v%d' % (vT0, sT0, vT0))
    g.e('v_and_b32 v%d, 0x31, v%d' % (vT1, vLane))
    g.e('v_cmp_eq_u32 vcc, 0, v%d' % vT1)
    g.e('s_and_saveexec_b64 s[%d:%d], vcc' % (sEX, sEX + 1))
    g.e('ds_write_b64 v%d, %s offset:%d' % (vT0, vr(vM, 2), ML_LDS))
    g.e('s_mov_b64 exec, s[%d:%d]' % (sEX, sEX + 1))
    g.wait_lgkm(0)
    g.e('s_barrier')
    g.c('wave w combines head w')
    R = 64
    RM = 80
    g.e('s_mul_i32 s%d, s%d, %d' % (sT0, sW, HS))
    g.e('v_lshlrev_b32 v%d, 3, v%d' % (vT0, vLane))
    g.e('v_add_u32 v%d, s%d, v%d' % (vT0, sT0, vT0))
    g.e('s_lshl_b32 s%d, s%d, 3' % (sT1, sW))
    g.e('v_mov_b32 v%d, s%d' % (vT1, sT1))
    for w in range(8):
        g.e('ds_read_b64 %s, v%d offset:%d' % (vr(RM + 2 * w, 2), vT1, ML_LDS + w * 64))
    for w in range(8):
        g.e('ds_read_b64 %s, v%d offset:%d' % (vr(R + 2 * w, 2), vT0, OP_LDS + w * WSTR))
    g.wait_lgkm(8)
    g.e('v_max3_f32 v%d, v%d, v%d, v%d' % (vM, RM, RM + 2, RM + 4))
    g.e('v_max3_f32 v%d, v%d, v%d, v%d' % (vM, vM, RM + 6, RM + 8))
    g.e('v_max3_f32 v%d, v%d, v%d, v%d' % (vM, vM, RM + 10, RM + 12))
    g.e('v_max_f32 v%d, v%d, v%d' % (vM, vM, RM + 14))
    for w in range(8):
        g.e('v_sub_f32 v%d, v%d, v%d' % (RM + 2 * w, RM + 2 * w, vM))
    for w in range(8):
        g.e('v_mul_f32 v%d, s%d, v%d' % (RM + 2 * w, sL2E, RM + 2 * w))
    for w in range(8):
        g.e('v_exp_f32 v%d, v%d' % (RM + 2 * w, RM + 2 * w))
    g.e('v_mul_f32 v%d, v%d, v%d' % (vLs, RM, RM + 1))
    for w in range(1, 8):
        g.e('v_fmac_f32 v%d, v%d, v%d' % (vLs, RM + 2 * w, RM + 2 * w + 1))
    g.wait_lgkm(0)
    g.e('v_mul_f32 v%d, v%d, v%d' % (vT2, RM, R))
    g.e('v_mul_f32 v%d, v%d, v%d' % (vT3, RM, R + 1))
    for w in range(1, 8):
        g.e('v_fmac_f32 v%d, v%d, v%d' % (vT2, RM + 2 * w, R + 2 * w))
        g.e('v_fmac_f32 v%d, v%d, v%d' % (vT3, RM + 2 * w, R + 2 * w + 1))
    g.c('store: O_OFF + ((8kv+w)*64+u)*512 + 8l ; ML_OFF + ((8kv+w)*64+u)*8')
    g.e('s_lshl_b32 s%d, s%d, 3' % (sT0, sKV))
    g.e('s_add_u32 s%d, s%d, s%d' % (sT0, sT0, sW))
    g.e('s_lshl_b32 s%d, s%d, 6' % (sT0, sT0))
    g.e('s_add_u32 s%d, s%d, s%d' % (sT0, sT0, sU))
    g.e('s_lshl_b32 s%d, s%d, 9' % (sT1, sT0))
    g.e('s_add_u32 s%d, s%d, %d' % (sT1, sT1, O_OFF))
    g.e('s_lshl_b32 s%d, s%d, 3' % (sT2, sT0))
    g.e('s_add_u32 s%d, s%d, %d' % (sT2, sT2, ML_OFF))
    g.e('v_lshlrev_b32 v%d, 3, v%d' % (vT0, vLane))
    g.e('buffer_store_dwordx2 %s, v%d, %s, s%d offen%s' % (vr(vT2, 2), vT0, srd('ws'), sT1, stflags), 'st')
    g.e('v_cmp_eq_u32 vcc, 0, v%d' % vLane)
    g.e('s_and_saveexec_b64 s[%d:%d], vcc' % (sEX, sEX + 1))
    g.e('buffer_store_dwordx2 %s, v%d, %s, s%d offen%s' % (vr(vM, 2), vT0, srd('ws'), sT2, stflags), 'st')
    g.e('s_mov_b64 exec, s[%d:%d]' % (sEX, sEX + 1))

import os
NT = os.environ.get('NT', '')
def attn(g, nt=None):
    nt = NT
    make_masks(g)
    attn_addrs(g)
    load_q(g)
    for T in range(8): load_ktile(g, T, nt)
    for T in range(3): load_vtile(g, T, nt)
    stamp(g, 1)
    g.wait_vm('Q')
    stamp(g, 2)
    for T in range(8):
        g.wait_vm('K%d' % T)
        if T == 0: stamp(g, 3)
        qk_tile(g, T)
        if T > 0: score_tile(g, T - 1)
        if T < 5:
            load_vtile(g, T + 3, nt)
    stamp(g, 4)
    score_tile(g, 7)
    softmax_all(g)
    stamp(g, 5)
    for T in range(8):
        g.wait_vm('V%d' % T)
        pv_tile(g, T)
    stamp(g, 6)
    attn_combine(g)

RED_LDS = 0
OD_LDS = 4096
RED2_LDS = 8192
vWO = 144
vWD = 160
vHD = 176
vPO = 180
vPM = 196
vOD = 200
vAC = 208

def tail_wloads(g, nt=''):
    g.c('wo: row = 128h+16w+4jj+g ; voff = row*2048 + b*256 + c*16')
    g.e('s_lshl_b32 s%d, s%d, 7' % (sT0, sH))
    g.e('s_lshl_b32 s%d, s%d, 4' % (sT1, sW))
    g.e('s_add_u32 s%d, s%d, s%d' % (sT0, sT0, sT1))
    g.e('s_lshl_b32 s%d, s%d, 11' % (sT0, sT0))
    g.e('s_lshl_b32 s%d, s%d, 8' % (sT2, sB))
    g.e('s_add_u32 s%d, s%d, s%d' % (sT0, sT0, sT2))
    g.e('v_lshlrev_b32 v%d, 11, v%d' % (vT0, vG))
    g.e('v_lshl_add_u32 v%d, v%d, 4, v%d' % (vT0, vL15, vT0))
    g.e('v_add_u32 v%d, s%d, v%d' % (vA2, sT0, vT0))
    for jj in range(4):
        g.e('s_mov_b32 s%d, %d' % (sT3, jj * 8192))
        g.e('buffer_load_dwordx4 %s, v%d, %s, s%d offen%s' % (vr(vWO + 4 * jj, 4), vA2, srd('wo'), sT3, nt), 'wo')
    g.c('wd: row = 112h+16w+4jj+g (w<7)')
    g.e('s_mul_i32 s%d, s%d, 112' % (sT0, sH))
    g.e('s_add_u32 s%d, s%d, s%d' % (sT0, sT0, sT1))
    g.e('s_mov_b32 s15, s%d' % sT0)
    g.e('s_lshl_b32 s%d, s%d, 11' % (sT0, sT0))
    g.e('s_add_u32 s%d, s%d, s%d' % (sT0, sT0, sT2))
    g.e('s_cmp_eq_u32 s%d, 7' % sW)
    g.e('s_cselect_b32 s%d, 0x40000000, s%d' % (sT0, sT0))
    g.e('v_add_u32 v%d, s%d, v%d' % (vA3, sT0, vT0))
    for jj in range(4):
        g.e('s_mov_b32 s%d, %d' % (sT3, jj * 8192))
        g.e('buffer_load_dwordx4 %s, v%d, %s, s%d offen%s' % (vr(vWD + 4 * jj, 4), vA3, srd('wd'), sT3, nt), 'wd')

def tail_hload(g, flags=''):
    g.c('h gather: H_OFF + (112h+16w+g)*2 + 8jj')
    g.e('s_lshl_b32 s%d, s15, 1' % sT0)
    g.e('s_add_u32 s%d, s%d, %d' % (sT0, sT0, H_OFF))
    g.e('s_cmp_eq_u32 s%d, 7' % sW)
    g.e('s_cselect_b32 s%d, 0x40000000, s%d' % (sT0, sT0))
    g.e('v_lshlrev_b32 v%d, 1, v%d' % (vT0, vG))
    g.e('v_add_u32 v%d, s%d, v%d' % (vT0, sT0, vT0))
    for jj in range(4):
        g.e('buffer_load_ushort v%d, v%d, %s, 0 offen offset:%d%s' % (vHD + jj, vT0, srd('ws'), 8 * jj, flags), 'h')

def tail_pload(g, flags=''):
    g.c('ml: ML_OFF + (h*64+lane)*8 ; O: O_OFF + (h*64+8w+(l>>5))*512 + (l&31)*16 + i*1024')
    g.e('s_lshl_b32 s%d, s%d, 9' % (sT0, sH))
    g.e('s_add_u32 s%d, s%d, %d' % (sT0, sT0, ML_OFF))
    g.e('v_lshlrev_b32 v%d, 3, v%d' % (vT0, vLane))
    g.e('buffer_load_dwordx2 %s, v%d, %s, s%d offen%s' % (vr(vPM, 2), vT0, srd('ws'), sT0, flags), 'pm')
    g.e('s_lshl_b32 s%d, s%d, 15' % (sT0, sH))
    g.e('s_lshl_b32 s%d, s%d, 12' % (sT1, sW))
    g.e('s_add_u32 s%d, s%d, s%d' % (sT0, sT0, sT1))
    g.e('s_add_u32 s%d, s%d, %d' % (sT0, sT0, O_OFF))
    g.e('v_lshlrev_b32 v%d, 4, v%d' % (vT1, vLane))
    for i in range(4):
        g.e('buffer_load_dwordx4 %s, v%d, %s, s%d offen offset:%d%s' % (vr(vPO + 4 * i, 4), vT1, srd('ws'), sT0, 1024 * i, flags), 'po')

def tail1_compute(g, stflags=''):
    vWt = vT4; vLsum = vT5
    g.e('v_mov_b32 v%d, v%d' % (vT2, vPM))
    allreduce_inrow(g, 'v_max_f32', [vT2], [8, 4, 2, 1])
    allreduce_rows(g, 'v_max_f32', [vT2], vT3)
    g.e('v_sub_f32 v%d, v%d, v%d' % (vWt, vPM, vT2))
    g.e('v_mul_f32 v%d, s%d, v%d' % (vWt, sL2E, vWt))
    g.e('v_exp_f32 v%d, v%d' % (vWt, vWt))
    g.e('v_mul_f32 v%d, v%d, v%d' % (vLsum, vWt, vPM + 1))
    allreduce_inrow(g, 'v_add_f32', [vLsum], [8, 4, 2, 1])
    allreduce_rows(g, 'v_add_f32', [vLsum], vT3)
    g.c('weights for my splits: idx = (8w + 2i + (l>>5))*4')
    g.e('v_lshrrev_b32 v%d, 5, v%d' % (vT0, vLane))
    g.e('s_lshl_b32 s%d, s%d, 3' % (sT0, sW))
    g.e('v_add_lshl_u32 v%d, v%d, s%d, 2' % (vT0, vT0, sT0))
    W4 = vOD
    for i in range(4):
        if i: g.e('v_add_u32 v%d, 8, v%d' % (vT0, vT0))
        g.e('ds_bpermute_b32 v%d, v%d, v%d' % (W4 + i, vT0, vWt))
    g.wait_lgkm(0)
    g.wait_vm('po')
    stamp(g, 3)
    A = vAC
    for k in range(4):
        g.e('v_mul_f32 v%d, v%d, v%d' % (A + k, W4, vPO + k))
    for i in range(1, 4):
        for k in range(4):
            g.e('v_fmac_f32 v%d, v%d, v%d' % (A + k, W4 + i, vPO + 4 * i + k))
    for k in range(4):
        g.e('v_mov_b32 v%d, v%d' % (vT0, A + k))
        g.e('v_permlane32_swap_b32 v%d, v%d' % (A + k, vT0))
        g.e('v_add_f32 v%d, v%d, v%d' % (A + k, A + k, vT0))
    g.e('s_lshl_b32 s%d, s%d, 9' % (sT0, sW))
    g.e('v_lshlrev_b32 v%d, 4, v%d' % (vT0, vLane))
    g.e('v_add_u32 v%d, s%d, v%d' % (vT0, sT0, vT0))
    g.e('v_cmp_gt_u32 vcc, 32, v%d' % vLane)
    g.e('s_and_saveexec_b64 s[%d:%d], vcc' % (sEX, sEX + 1))
    g.e('ds_write_b128 v%d, %s offset:%d' % (vT0, vr(A, 4), RED_LDS))
    g.e('s_mov_b64 exec, s[%d:%d]' % (sEX, sEX + 1))
    g.wait_lgkm(0)
    g.e('s_barrier')
    lab = g.newlabel('t1skip')
    g.e('s_cmp_ge_u32 s%d, 2' % sW)
    g.e('s_cbranch_scc1 %s' % lab)
    g.c('threads 0..127: p = tid')
    g.e('v_lshlrev_b32 v%d, 2, v0' % vT0)
    for w in range(8):
        g.e('ds_read_b32 v%d, v%d offset:%d' % (A + w, vT0, RED_LDS + 512 * w))
    g.e('v_rcp_f32 v%d, v%d' % (vT1, vLsum))
    g.c('d = 32(p>>5) + 8(p&3) + 4((p>>4)&1) + ((p>>2)&3); pos = 16(d>>4) + 4(d&3) + ((d>>2)&3)')
    g.e('v_and_b32 v%d, 0x6c, v0' % vT2)
    g.e('v_bfe_u32 v%d, v0, 1, 1' % vT3)
    g.e('v_lshl_or_b32 v%d, v%d, 4, v%d' % (vT2, vT3, vT2))
    g.e('v_and_b32 v%d, 1, v0' % vT3)
    g.e('v_lshl_or_b32 v%d, v%d, 1, v%d' % (vT2, vT3, vT2))
    g.e('v_bfe_u32 v%d, v0, 4, 1' % vT3)
    g.e('v_or_b32 v%d, v%d, v%d' % (vT2, vT2, vT3))
    g.e('v_lshlrev_b32 v%d, 2, v%d' % (vT2, vT2))
    g.wait_lgkm(0)
    for w in range(1, 8):
        g.e('v_add_f32 v%d, v%d, v%d' % (A, A, A + w))
    g.e('v_mul_f32 v%d, v%d, v%d' % (vT0, A, vT1))
    g.e('v_fma_f32 v%d, -v%d, v%d, v%d' % (vT3, vT0, vLsum, A))
    g.e('v_fma_f32 v%d, v%d, v%d, v%d' % (vT0, vT3, vT1, vT0))
    g.e('v_cvt_pk_bf16_f32 v%d, v%d, v%d' % (vT0, vT0, vT0))
    g.e('ds_write_b32 v%d, v%d offset:%d' % (vT2, vT0, OD_LDS))
    g.wait_lgkm(0)
    g.label(lab)
    g.e('s_barrier')
    g.e('s_lshl_b32 s%d, s%d, 6' % (sT0, sW))
    g.e('v_lshlrev_b32 v%d, 4, v%d' % (vT0, vG))
    g.e('v_add_u32 v%d, s%d, v%d' % (vT0, sT0, vT0))
    g.e('ds_read_b128 %s, v%d offset:%d' % (vr(vOD, 4), vT0, OD_LDS))
    g.wait_vm('h')
    for jj in range(4):
        g.e('v_lshl_or_b32 v%d, v%d, 16, v%d' % (vHD + jj, vHD + jj, vHD + jj))
    g.wait_vm('wd')
    g.wait_lgkm(0)
    stamp(g, 4)
    for ab, (vec, W) in enumerate(((vOD, vWO), (vHD, vWD))):
        for jj in range(4):
            bb = vB + 2 * (jj & 1)
            g.e('v_and_b32 v%d, v%d, v%d' % (bb, vec + jj, vMask0))
            g.e('v_and_b32 v%d, v%d, v%d' % (bb + 1, vec + jj, vMask1))
            for a in range(2):
                acc = vAC + 8 * ab + 4 * a
                g.e('v_mfma_f32_16x16x16_bf16 %s, %s, %s, %s' % (vr(acc, 4), vr(W + 4 * jj + 2 * a, 2), vr(bb, 2), '0' if jj == 0 else vr(acc, 4)))
    g.c('write red2: (w*2+ab)*512 + ((2g+a)*4+e0)*16, lanes n<4')
    g.e('s_lshl_b32 s%d, s%d, 10' % (sT0, sW))
    g.e('v_lshlrev_b32 v%d, 7, v%d' % (vT0, vG))
    g.e('v_lshl_add_u32 v%d, v%d, 4, v%d' % (vT0, vL15, vT0))
    g.e('v_add_u32 v%d, s%d, v%d' % (vT0, sT0, vT0))
    g.e('v_cmp_gt_u32 vcc, 4, v%d' % vL15)
    g.e('s_and_saveexec_b64 s[%d:%d], vcc' % (sEX, sEX + 1))
    for ab in range(2):
        for a in range(2):
            g.e('ds_write_b128 v%d, %s offset:%d' % (vT0, vr(vAC + 8 * ab + 4 * a, 4), RED2_LDS + ab * 512 + a * 64))
    g.e('s_mov_b64 exec, s[%d:%d]' % (sEX, sEX + 1))
    g.wait_lgkm(0)
    g.e('s_barrier')
    lab2 = g.newlabel('t1skip2')
    g.e('s_cmp_ge_u32 s%d, 4' % sW)
    g.e('s_cbranch_scc1 %s' % lab2)
    g.c('threads 0..255: ab = t>>7, p = t&127')
    g.e('v_lshlrev_b32 v%d, 2, v0' % vT0)
    for w in range(8):
        g.e('ds_read_b32 v%d, v%d offset:%d' % (vPO + w, vT0, RED2_LDS + 1024 * w))
    g.e('v_and_b32 v%d, 0xe0, v0' % vT2)
    g.e('v_and_b32 v%d, 3, v0' % vT3)
    g.e('v_lshl_or_b32 v%d, v%d, 3, v%d' % (vT2, vT3, vT2))
    g.e('v_bfe_u32 v%d, v0, 4, 1' % vT3)
    g.e('v_lshl_or_b32 v%d, v%d, 2, v%d' % (vT2, vT3, vT2))
    g.e('v_bfe_u32 v%d, v0, 2, 2' % vT3)
    g.e('v_or_b32 v%d, v%d, v%d' % (vT2, vT2, vT3))
    g.e('v_lshlrev_b32 v%d, 2, v%d' % (vT2, vT2))
    g.e('s_lshl_b32 s%d, s%d, 5' % (sT0, sB))
    g.e('s_add_u32 s%d, s%d, s%d' % (sT0, sT0, sH))
    g.e('s_lshl_b32 s%d, s%d, 10' % (sT0, sT0))
    g.e('s_add_u32 s%d, s%d, 0x%x' % (sT0, sT0, P2_OFF))
    g.wait_lgkm(0)
    for w in range(1, 8):
        g.e('v_add_f32 v%d, v%d, v%d' % (vPO, vPO, vPO + w))
    g.e('buffer_store_dword v%d, v%d, %s, s%d offen%s' % (vPO, vT2, srd('ws'), sT0, stflags), 'st')
    g.label(lab2)

def tail1(g):
    make_masks(g)
    tail_pload(g)
    tail_wloads(g, NT)
    tail_hload(g)
    stamp(g, 1)
    g.wait_vm('pm')
    stamp(g, 2)
    tail1_compute(g)

def tail2_load(g, flags=''):
    g.c('lane(h2=l&31, ab=l>>5): P2_OFF + (((b*32+h2)*2+ab)*128 + 4h)*4')
    g.e('v_and_b32 v%d, 31, v%d' % (vT0, vLane))
    g.e('v_lshrrev_b32 v%d, 5, v%d' % (vT1, vLane))
    g.e('v_lshlrev_b32 v%d, 10, v%d' % (vT0, vT0))
    g.e('v_lshl_add_u32 v%d, v%d, 9, v%d' % (vA0, vT1, vT0))
    g.e('s_lshl_b32 s%d, s%d, 15' % (sT0, sB))
    g.e('s_lshl_b32 s%d, s%d, 4' % (sT1, sH))
    g.e('s_add_u32 s%d, s%d, s%d' % (sT0, sT0, sT1))
    g.e('s_add_u32 s%d, s%d, 0x%x' % (sT0, sT0, P2_OFF))
    g.e('buffer_load_dwordx4 %s, v%d, %s, s%d offen%s' % (vr(64, 4), vA0, srd('ws'), sT0, flags), 'p2')

def tail2_xload(g):
    g.e('s_lshl_b32 s%d, s%d, 8' % (sT1, sB))
    g.e('s_lshl_b32 s%d, s%d, 3' % (sT2, sH))
    g.e('s_add_u32 s%d, s%d, s%d' % (sT1, sT1, sT2))
    g.e('v_mov_b32 v%d, s%d' % (vA1, sT1))
    g.e('buffer_load_dwordx2 %s, v%d, %s, 0 offen' % (vr(72, 2), vA1, srd('x')), 'x2')

def tail2_compute(g):
    R = 64
    regs = [R, R + 1, R + 2, R + 3]
    allreduce_inrow(g, 'v_add_f32', regs, [8, 4, 2, 1])
    for r in regs:
        g.e('v_mov_b32 v%d, v%d' % (vT0, r))
        g.e('v_permlane16_swap_b32 v%d, v%d' % (r, vT0))
        g.e('v_add_f32 v%d, v%d, v%d' % (r, r, vT0))
    for k, r in enumerate(regs):
        g.e('v_mov_b32 v%d, v%d' % (R + 4 + k, r))
        g.e('v_permlane32_swap_b32 v%d, v%d' % (r, R + 4 + k))
    g.wait_vm('x2')
    X = 76
    g.e('v_lshlrev_b32 v%d, 16, v72' % X)
    g.e('v_and_b32 v%d, s%d, v72' % (X + 1, sHI))
    g.e('v_lshlrev_b32 v%d, 16, v73' % (X + 2))
    g.e('v_and_b32 v%d, s%d, v73' % (X + 3, sHI))
    for k in range(4):
        round_bf16(g, R + k, R + k)
        round_bf16(g, R + 4 + k, R + 4 + k)
        g.e('v_add_f32 v%d, v%d, v%d' % (R + k, R + k, X + k))
        round_bf16(g, R + k, R + k)
        g.e('v_add_f32 v%d, v%d, v%d' % (R + k, R + k, R + 4 + k))
    g.e('v_cvt_pk_bf16_f32 v%d, v%d, v%d' % (X, R, R + 1))
    g.e('v_cvt_pk_bf16_f32 v%d, v%d, v%d' % (X + 1, R + 2, R + 3))
    g.e('v_cmp_eq_u32 vcc, 0, v%d' % vLane)
    g.e('s_and_saveexec_b64 s[%d:%d], vcc' % (sEX, sEX + 1))
    g.e('buffer_store_dwordx2 %s, v%d, %s, 0 offen' % (vr(X, 2), vA1, srd('out')), 'st')
    g.e('s_mov_b64 exec, s[%d:%d]' % (sEX, sEX + 1))

def tail2(g):
    tail2_load(g)
    tail2_xload(g)
    stamp(g, 1)
    g.wait_vm('p2')
    stamp(g, 2)
    tail2_compute(g)

_lab = [0]
def kernel(name, body, used, kidx=0, nvgpr=256):
    g = Gen()
    g.endlabel = 'L_end_' + name
    g.endlabel2 = 'L_end2_' + name
    def newlabel(p):
        _lab[0] += 1
        return 'L_%s_%d' % (p, _lab[0])
    g.newlabel = newlabel
    g.raw('.globl %s' % name)
    g.raw('.p2align 8')
    g.raw('.type %s,@function' % name)
    g.raw('%s:' % name)
    if STAMP:
        for i in range(8): g.e('s_mov_b32 s%d, 0' % (94 + i))
        g.e('s_memrealtime s[92:93]')
    prologue(g, used)
    if STAMP: g.e('s_mov_b32 s94, s92')
    body(g)
    g.label(g.endlabel2)
    stamp_store(g, kidx)
    g.label(g.endlabel)
    g.e('s_endpgm')
    kd = '''.amdhsa_kernel %s
  .amdhsa_next_free_vgpr %d
  .amdhsa_next_free_sgpr 102
  .amdhsa_accum_offset %d
  .amdhsa_group_segment_fixed_size 0
  .amdhsa_kernarg_size 96
  .amdhsa_user_sgpr_count 2
  .amdhsa_user_sgpr_kernarg_segment_ptr 1
  .amdhsa_system_sgpr_workgroup_id_x 1
  .amdhsa_float_denorm_mode_32 3
  .amdhsa_float_denorm_mode_16_64 3
.end_amdhsa_kernel
''' % (name, nvgpr, nvgpr)
    return g.text(), kd

HEADER = open('cdna_kernels/%s.s.ref' % NAME).read().split('; Override launch')[0]

def main():
    ks = [
        ('head_kernel', head, ['x', 'wq', 'wg', 'wu', 'ws'], 512, 12288),
        ('attn_kernel', attn, ['K', 'V', 'ws'], 512, 40960),
        ('tail1_kernel', tail1, ['wo', 'wd', 'ws'], 512, 20480),
        ('tail2_kernel', tail2, ['x', 'out', 'ws'], 64, 0),
    ]
    out = HEADER
    for n, _, _, blk, lds in ks:
        out += '; @launch kernel=%s grid=(256,1,1) block=(%d,1,1) lds=%d\n' % (n, blk, lds)
    out += '.amdgcn_target "amdgcn-amd-amdhsa--gfx950"\n.text\n'
    kds = ''
    for kidx, (n, body, used, blk, lds) in enumerate(ks):
        t, kd = kernel(n, body, used, kidx)
        out += t
        kds += '.p2align 6\n' + kd
    out += '.section .rodata,"a"\n' + kds
    path = sys.argv[1] if len(sys.argv) > 1 else 'cdna_kernels/%s.s' % NAME
    open(path, 'w').write(out)
    print('wrote', path, len(out))

if __name__ == '__main__':
    main()
```

```python
import sys, os
sys.path.insert(0, 'gen')
import gen1
from gen1 import *

NT = os.environ.get('NT', ' nt')
QP_OFF = 0
GP_OFF = 0x10000
UP_OFF = 0x20000
ML_OFF2 = 0x30000
O_OFF2 = 0x40000
P2_OFF2 = 0x140000
L_OP = 0
L_HP = 0
L_ML = 36864
L_RED = 37376
L_OD = 41472
L_RED2 = 41984
L_QL = 50176
L_HD = 52224
L_XN = 52736
LDS_BYTES = 56832
sCBL, sKQ = 14, 15
sCNT = 87
SPIN_MAX = 1 << 20

def clears(g):
    g.c('---- clear own hand-off slots with sentinel')
    g.e('v_mov_b32 v%d, -1' % vT2)
    g.e('v_mov_b32 v%d, -1' % vT3)
    g.e('s_lshl_b32 s%d, s%d, 3' % (sT0, sKV))
    g.e('s_add_u32 s%d, s%d, s%d' % (sT0, sT0, sW))
    g.e('s_lshl_b32 s%d, s%d, 6' % (sT0, sT0))
    g.e('s_add_u32 s%d, s%d, s%d' % (sT0, sT0, sU))
    g.e('s_lshl_b32 s%d, s%d, 9' % (sT1, sT0))
    g.e('s_add_u32 s%d, s%d, 0x%x' % (sT1, sT1, O_OFF2))
    g.e('s_lshl_b32 s%d, s%d, 3' % (sT2, sT0))
    g.e('s_add_u32 s%d, s%d, 0x%x' % (sT2, sT2, ML_OFF2))
    g.e('v_lshlrev_b32 v%d, 3, v%d' % (vT0, vLane))
    g.e('buffer_store_dwordx2 %s, v%d, %s, s%d offen sc1' % (vr(vT2, 2), vT0, srd('ws'), sT1), 'st')
    g.e('v_mov_b32 v%d, 0' % vT1)
    g.e('s_mov_b64 exec, 1')
    g.e('buffer_store_dwordx2 %s, v%d, %s, s%d offen sc1' % (vr(vT2, 2), vT1, srd('ws'), sT2), 'st')
    g.e('s_mov_b64 exec, -1')
    g.c('hop2 slot: P2 + (b*32+h)*1024 + tid*4 for tid<256 (OOB for others)')
    g.e('s_lshl_b32 s%d, s%d, 5' % (sT0, sB))
    g.e('s_add_u32 s%d, s%d, s%d' % (sT0, sT0, sH))
    g.e('s_lshl_b32 s%d, s%d, 10' % (sT0, sT0))
    g.e('s_add_u32 s%d, s%d, 0x%x' % (sT0, sT0, P2_OFF2))
    g.e('s_cmp_ge_u32 s%d, 4' % sW)
    g.e('s_cselect_b32 s%d, 0x40000000, s%d' % (sT0, sT0))
    g.e('v_lshlrev_b32 v%d, 2, v0' % vT0)
    g.e('buffer_store_dword v%d, v%d, %s, s%d offen sc1' % (vT2, vT0, srd('ws'), sT0), 'st')

def head2(g):
    vX = 224; vXF = 232; vWQ = 16; vWG = 192; vWU = 208; vACC = 32; vXN = 56
    g.e('s_lshr_b32 s%d, s%d, 2' % (sCBL, sU))
    g.e('s_and_b32 s%d, s%d, 3' % (sKQ, sU))
    g.c('x loads')
    g.e('v_lshlrev_b32 v%d, 5, v%d' % (vA0, vLane))
    g.e('buffer_load_dwordx4 %s, v%d, %s, 0 offen' % (vr(vX, 4), vA0, srd('x')), 'x')
    g.e('buffer_load_dwordx4 %s, v%d, %s, 0 offen offset:16' % (vr(vX + 4, 4), vA0, srd('x')), 'x')
    g.c('row0 = 256kq + 32w + 4rho ; c = l&7, rho = l>>3')
    g.e('v_lshrrev_b32 v%d, 3, v%d' % (vT0, vLane))
    g.e('v_and_b32 v%d, 7, v%d' % (vT1, vLane))
    g.e('v_lshlrev_b32 v%d, 2, v%d' % (vT0, vT0))
    g.e('s_lshl_b32 s%d, s%d, 8' % (sT0, sKQ))
    g.e('s_lshl_b32 s%d, s%d, 5' % (sT1, sW))
    g.e('s_add_u32 s%d, s%d, s%d' % (sT0, sT0, sT1))
    g.e('v_add_u32 v%d, s%d, v%d' % (vT0, sT0, vT0))
    g.e('v_lshlrev_b32 v%d, 4, v%d' % (vT1, vT1))
    g.e('s_lshl_b32 s%d, s%d, 11' % (sT1, sKV))
    g.e('s_lshl_b32 s%d, s%d, 7' % (sT2, sCBL))
    g.e('s_add_u32 s%d, s%d, s%d' % (sT1, sT1, sT2))
    g.e('v_lshlrev_b32 v%d, 13, v%d' % (vA1, vT0))
    g.e('v_add3_u32 v%d, v%d, v%d, s%d' % (vA1, vA1, vT1, sT1))
    for i in range(4):
        g.e('s_mov_b32 s%d, %d' % (sT3, i * 8192))
        g.e('buffer_load_dwordx4 %s, v%d, %s, s%d offen%s' % (vr(vWQ + 4 * i, 4), vA1, srd('wq'), sT3, NT), 'wq')
    g.e('s_cmp_ge_u32 s%d, %d' % (sT1, 56 * 128))
    g.e('s_cselect_b32 s%d, 0x40000000, s%d' % (sT1, sT1))
    g.e('s_mov_b32 s%d, 7168' % sT2)
    g.e('v_mul_lo_u32 v%d, v%d, s%d' % (vA2, vT0, sT2))
    g.e('v_add3_u32 v%d, v%d, v%d, s%d' % (vA2, vA2, vT1, sT1))
    for i in range(4):
        g.e('s_mov_b32 s%d, %d' % (sT3, i * 7168))
        g.e('buffer_load_dwordx4 %s, v%d, %s, s%d offen%s' % (vr(vWG + 4 * i, 4), vA2, srd('wg'), sT3, NT), 'wg')
        g.e('buffer_load_dwordx4 %s, v%d, %s, s%d offen%s' % (vr(vWU + 4 * i, 4), vA2, srd('wu'), sT3, NT), 'wu')
    g.e('v_lshlrev_b32 v%d, 2, v%d' % (vA3, vT0))
    g.e('v_add_u32 v%d, %d, v%d' % (vA3, L_XN, vA3))
    stamp(g, 1)
    g.c('---- layernorm')
    g.wait_vm('x')
    for k in range(8):
        g.e('v_lshlrev_b32 v%d, 16, v%d' % (vXF + 2 * k, vX + k))
        g.e('v_and_b32 v%d, s%d, v%d' % (vXF + 2 * k + 1, sHI, vX + k))
    g.e('v_add_f32 v%d, v%d, v%d' % (vT2, vXF, vXF + 1))
    for k in range(2, 16):
        g.e('v_add_f32 v%d, v%d, v%d' % (vT2, vT2, vXF + k))
    allreduce_inrow(g, 'v_add_f32', [vT2], [8, 4, 2, 1])
    allreduce_rows(g, 'v_add_f32', [vT2], vT3)
    g.e('v_mul_f32 v%d, 0x3a800000, v%d' % (vT2, vT2))
    g.e('v_sub_f32 v%d, v%d, v%d' % (vT3, vXF, vT2))
    g.e('v_mul_f32 v%d, v%d, v%d' % (vT4, vT3, vT3))
    for k in range(1, 16):
        g.e('v_sub_f32 v%d, v%d, v%d' % (vT3, vXF + k, vT2))
        g.e('v_fmac_f32 v%d, v%d, v%d' % (vT4, vT3, vT3))
    allreduce_inrow(g, 'v_add_f32', [vT4], [8, 4, 2, 1])
    allreduce_rows(g, 'v_add_f32', [vT4], vT3)
    g.e('v_mul_f32 v%d, 0x3a800000, v%d' % (vT4, vT4))
    round_bf16(g, vT2, vT2)
    round_bf16(g, vT4, vT4)
    g.e('v_add_f32 v%d, 0x3727c5ac, v%d' % (vT4, vT4))
    round_bf16(g, vT4, vT4)
    g.e('v_sqrt_f32 v%d, v%d' % (vT4, vT4))
    round_bf16(g, vT4, vT4)
    g.e('v_rcp_f32 v%d, v%d' % (vT5, vT4))
    for k in range(0, 16, 2):
        a, b = vXF + k, vXF + k + 1
        g.e('v_sub_f32 v%d, v%d, v%d' % (a, a, vT2))
        g.e('v_sub_f32 v%d, v%d, v%d' % (b, b, vT2))
        g.e('v_cvt_pk_bf16_f32 v%d, v%d, v%d' % (vT3, a, b))
        g.e('v_lshlrev_b32 v%d, 16, v%d' % (a, vT3))
        g.e('v_and_b32 v%d, s%d, v%d' % (b, sHI, vT3))
        for r in (a, b):
            g.e('v_mul_f32 v%d, v%d, v%d' % (vT0, r, vT5))
            g.e('v_fma_f32 v%d, -v%d, v%d, v%d' % (vT1, vT0, vT4, r))
            g.e('v_fma_f32 v%d, v%d, v%d, v%d' % (r, vT1, vT5, vT0))
        g.e('v_cvt_pk_bf16_f32 v%d, v%d, v%d' % (vT3, a, b))
        g.e('v_lshlrev_b32 v%d, 16, v%d' % (a, vT3))
        g.e('v_and_b32 v%d, s%d, v%d' % (b, sHI, vT3))
    g.e('v_lshlrev_b32 v%d, 6, v%d' % (vT0, vLane))
    for k in range(4):
        g.e('ds_write_b128 v%d, %s offset:%d' % (vT0, vr(vXF + 4 * k, 4), L_XN + 16 * k))
    g.wait_lgkm(0)
    g.e('ds_read_b128 %s, v%d' % (vr(vXN, 4), vA3))
    attn_addrs(g)
    make_masks(g)
    g.c('early K prefetch for waves != 0')
    lab = g.newlabel('noearly')
    g.e('s_cmp_eq_u32 s%d, 0' % sW)
    g.e('s_cbranch_scc1 %s' % lab)
    saved = list(g.vm)
    load_ktile(g, 0, NT)
    load_ktile(g, 1, NT)
    n_early = len(g.vm) - len(saved)
    g.label(lab)
    g.wait_lgkm(0)
    stamp(g, 2)
    g.c('---- gemv FMAs')
    labw = g.newlabel('w0wait')
    labj = g.newlabel('wjoin')
    def dualwait(n_after_without_early):
        l1 = g.newlabel('dw'); l2 = g.newlabel('dw')
        g.e('s_cmp_eq_u32 s%d, 0' % sW)
        g.e('s_cbranch_scc1 %s' % l1)
        g.e('s_waitcnt vmcnt(%d)' % (n_after_without_early + n_early))
        g.e('s_branch %s' % l2)
        g.label(l1)
        g.e('s_waitcnt vmcnt(%d)' % n_after_without_early)
        g.label(l2)
    for s_i, (vW, tag) in enumerate(((vWQ, 'wq'), (vWG, 'wg'), (vWU, 'wu'))):
        if tag == 'wq': dualwait(8)
        if tag == 'wg': dualwait(0)
        acc = vACC + 8 * s_i
        for i in range(4):
            for k in range(4):
                w = vW + 4 * i + k
                g.e('v_lshlrev_b32 v%d, 16, v%d' % (vT0, w))
                g.e('v_and_b32 v%d, s%d, v%d' % (vT1, sHI, w))
                if i == 0:
                    g.e('v_mul_f32 v%d, v%d, v%d' % (acc + 2 * k, vT0, vXN + i))
                    g.e('v_mul_f32 v%d, v%d, v%d' % (acc + 2 * k + 1, vT1, vXN + i))
                else:
                    g.e('v_fmac_f32 v%d, v%d, v%d' % (acc + 2 * k, vT0, vXN + i))
                    g.e('v_fmac_f32 v%d, v%d, v%d' % (acc + 2 * k + 1, vT1, vXN + i))
    allreduce_inrow(g, 'v_add_f32', list(range(vACC, vACC + 24)), [8])
    g.c('write partials: hp[set][part=4w+row][64 cols]: addr = set*8192 + (4w+row)*256 + c*32')
    g.e('s_lshl_b32 s%d, s%d, 2' % (sT0, sW))
    g.e('v_add_u32 v%d, s%d, v%d' % (vT0, sT0, vG))
    g.e('v_lshlrev_b32 v%d, 8, v%d' % (vT0, vT0))
    g.e('v_and_b32 v%d, 7, v%d' % (vT1, vLane))
    g.e('v_lshl_add_u32 v%d, v%d, 5, v%d' % (vT0, vT1, vT0))
    g.e('v_cmp_gt_u32 vcc, 8, v%d' % vL15)
    g.e('s_and_saveexec_b64 s[%d:%d], vcc' % (sEX, sEX + 1))
    for s_i in range(3):
        for hf in range(2):
            g.e('ds_write_b128 v%d, %s offset:%d' % (vT0, vr(vACC + 8 * s_i + 4 * hf, 4), L_HP + s_i * 8192 + hf * 16))
    g.e('s_mov_b64 exec, s[%d:%d]' % (sEX, sEX + 1))
    g.wait_lgkm(0)
    g.e('s_barrier')
    stamp(g, 3)
    lab = g.newlabel('notw0')
    g.e('s_cmp_lg_u32 s%d, 0' % sW)
    g.e('s_cbranch_scc1 %s' % lab)
    g.c('---- wave 0: final reduce: lane(cg=l&15 (4 cols), pg=l>>4 (8 parts))')
    g.e('v_lshlrev_b32 v%d, 11, v%d' % (vT0, vG))
    g.e('v_lshl_add_u32 v%d, v%d, 4, v%d' % (vT0, vL15, vT0))
    R = 64
    for s_i in range(3):
        for k in range(8):
            g.e('ds_read_b128 %s, v%d offset:%d' % (vr(R + s_i * 32 + 4 * k, 4), vT0, L_HP + s_i * 8192 + k * 256))
    for s_i in range(3):
        g.wait_lgkm(8 if s_i < 2 else 0)
        b = R + s_i * 32
        for k in range(1, 8):
            for e in range(4):
                g.e('v_add_f32 v%d, v%d, v%d' % (b + e, b + e, b + 4 * k + e))
    allreduce_rows(g, 'v_add_f32', [R + s_i * 32 + e for s_i in range(3) for e in range(4)], vT1)
    g.c('stores (lanes 0..15, 16B each): qp + (kq*4096 + 1024kv + 64cbl)*4 ; gp/up + (kq*3584 + (16kv+cbl)*64)*4')
    g.e('s_lshl_b32 s%d, s%d, 4' % (sT0, sKV))
    g.e('s_add_u32 s%d, s%d, s%d' % (sT0, sT0, sCBL))
    g.e('s_lshl_b32 s%d, s%d, 8' % (sT1, sT0))
    g.e('s_lshl_b32 s%d, s%d, 14' % (sT2, sKQ))
    g.e('s_add_u32 s%d, s%d, s%d' % (sT2, sT2, sT1))
    g.e('s_mul_i32 s%d, s%d, %d' % (sT3, sKQ, 3584 * 4))
    g.e('s_add_u32 s%d, s%d, s%d' % (sT3, sT3, sT1))
    g.e('s_add_u32 s%d, s%d, 0x%x' % (sT3, sT3, GP_OFF))
    g.e('s_cmp_ge_u32 s%d, 56' % sT0)
    g.e('s_cselect_b32 s%d, 0x40000000, s%d' % (sT3, sT3))
    g.e('s_add_u32 s%d, s%d, 0x%x' % (sT1, sT3, UP_OFF - GP_OFF))
    g.e('v_lshlrev_b32 v%d, 4, v%d' % (vT2, vLane))
    g.e('s_mov_b64 exec, 0xffff')
    g.e('buffer_store_dwordx4 %s, v%d, %s, s%d offen sc1' % (vr(R, 4), vT2, srd('ws'), sT2), 'st')
    g.e('buffer_store_dwordx4 %s, v%d, %s, s%d offen sc1' % (vr(R + 32, 4), vT2, srd('ws'), sT3), 'st')
    g.e('buffer_store_dwordx4 %s, v%d, %s, s%d offen sc1' % (vr(R + 64, 4), vT2, srd('ws'), sT1), 'st')
    g.e('s_waitcnt vmcnt(0)')
    g.e('s_mov_b64 exec, 1')
    g.e('s_lshl_b32 s%d, s%d, 6' % (sT0, sKV))
    g.e('v_mov_b32 v%d, s%d' % (vT2, sT0))
    g.e('v_mov_b32 v%d, 1' % vT3)
    g.e('buffer_atomic_add v%d, v%d, %s, 0 offen sc1' % (vT3, vT2, srd('dbg')), 'st')
    g.e('s_mov_b64 exec, -1')
    load_ktile(g, 0, NT)
    load_ktile(g, 1, NT)
    g.label(lab)

def poll_counters(g):
    g.e('v_and_b32 v%d, 3, v%d' % (vA2, vLane))
    g.e('v_lshlrev_b32 v%d, 6, v%d' % (vA2, vA2))
    load_ktile(g, 2, NT)
    load_ktile(g, 3, NT)
    g.e('buffer_load_dword v%d, v%d, %s, 0 offen sc1' % (vT5, vA2, srd('dbg')), 'poll')
    load_ktile(g, 4, NT)
    load_ktile(g, 5, NT)
    g.wait_vm('poll')
    lok = g.newlabel('pollok'); lloop = g.newlabel('pollloop')
    g.e('v_cmp_gt_u32 vcc, 64, v%d' % vT5)
    g.e('s_cmp_eq_u64 vcc, 0')
    g.e('s_cbranch_scc1 %s' % lok)
    g.e('s_mov_b32 s%d, 0' % sCNT)
    g.label(lloop)
    g.e('s_sleep 2')
    g.e('buffer_load_dword v%d, v%d, %s, 0 offen sc1' % (vT5, vA2, srd('dbg')), 'poll2')
    g.e('s_waitcnt vmcnt(0)')
    g.e('v_cmp_gt_u32 vcc, 64, v%d' % vT5)
    g.e('s_cmp_eq_u64 vcc, 0')
    g.e('s_cbranch_scc1 %s' % lok)
    g.e('s_add_u32 s%d, s%d, 1' % (sCNT, sCNT))
    g.e('s_cmp_lt_u32 s%d, %d' % (sCNT, SPIN_MAX))
    g.e('s_cbranch_scc1 %s' % lloop)
    g.label(lok)
    g.vm.pop()

def gather_q_h(g):
    G = 32
    Hh = 40
    g.c('q gather: QP + (kq*4096 + 1024kv + 2t)*4')
    g.e('s_lshl_b32 s%d, s%d, 12' % (sT0, sKV))
    g.e('v_lshlrev_b32 v%d, 3, v0' % vT0)
    g.e('v_add_u32 v%d, s%d, v%d' % (vT0, sT0, vT0))
    for kq in range(4):
        g.e('s_mov_b32 s%d, %d' % (sT3, QP_OFF + kq * 16384))
        g.e('buffer_load_dwordx2 %s, v%d, %s, s%d offen sc1' % (vr(G + 2 * kq, 2), vT0, srd('ws'), sT3), 'qg')
    g.c('h gather (wave 7, lanes<56; OOB otherwise): GP + (kq*3584 + 112h + 2l)*4')
    g.e('s_mul_i32 s%d, s%d, 448' % (sT0, sH))
    g.e('s_cmp_lg_u32 s%d, 7' % sW)
    g.e('s_cselect_b32 s%d, 0x40000000, s%d' % (sT0, sT0))
    g.e('v_lshlrev_b32 v%d, 3, v%d' % (vT1, vLane))
    g.e('v_add_u32 v%d, s%d, v%d' % (vT1, sT0, vT1))
    lsk = g.newlabel('nohg')
    g.e('s_cmp_lg_u32 s%d, 7' % sW)
    g.e('s_cbranch_scc1 %s' % lsk)
    saved = list(g.vm)
    for kq in range(4):
        g.e('s_mov_b32 s%d, %d' % (sT3, GP_OFF + kq * 3584 * 4))
        g.e('buffer_load_dwordx2 %s, v%d, %s, s%d offen sc1' % (vr(Hh + 2 * kq, 2), vT1, srd('ws'), sT3), 'hg')
        g.e('s_mov_b32 s%d, %d' % (sT3, UP_OFF + kq * 3584 * 4))
        g.e('buffer_load_dwordx2 %s, v%d, %s, s%d offen sc1' % (vr(Hh + 8 + 2 * kq, 2), vT1, srd('ws'), sT3), 'hg')
    g.wait_vm('hg')
    g.vm = saved
    for e in range(2):
        gg = Hh + e; uu = Hh + 8 + e
        g.e('v_add_f32 v%d, v%d, v%d' % (gg, gg, gg + 2))
        g.e('v_add_f32 v%d, v%d, v%d' % (gg + 4, gg + 4, gg + 6))
        g.e('v_add_f32 v%d, v%d, v%d' % (gg, gg, gg + 4))
        g.e('v_add_f32 v%d, v%d, v%d' % (uu, uu, uu + 2))
        g.e('v_add_f32 v%d, v%d, v%d' % (uu + 4, uu + 4, uu + 6))
        g.e('v_add_f32 v%d, v%d, v%d' % (uu, uu, uu + 4))
        round_bf16(g, gg, gg)
        round_bf16(g, uu, uu)
        g.e('v_mul_f32 v%d, v%d, v%d' % (vT2, gg, gg))
        g.e('v_mul_f32 v%d, v%d, v%d' % (vT2, vT2, gg))
        g.e('v_mul_f32 v%d, 0x3d372713, v%d' % (vT2, vT2))
        g.e('v_add_f32 v%d, v%d, v%d' % (vT2, vT2, gg))
        g.e('v_mul_f32 v%d, 0x3f4c422a, v%d' % (vT2, vT2))
        g.e('v_mul_f32 v%d, 0xc038aa3b, v%d' % (vT2, vT2))
        g.e('v_exp_f32 v%d, v%d' % (vT2, vT2))
        g.e('v_add_f32 v%d, 1.0, v%d' % (vT2, vT2))
        g.e('v_rcp_f32 v%d, v%d' % (vT2, vT2))
        g.e('v_mul_f32 v%d, v%d, v%d' % (vT2, vT2, gg))
        round_bf16(g, vT2, vT2)
        g.e('v_mul_f32 v%d, v%d, v%d' % (vT2, vT2, uu))
        g.e('v_cvt_pk_bf16_f32 v%d, v%d, v%d' % (gg, vT2, vT2))
    g.c('rr = 2l+e = 16w+4jj+g -> pos = 16w + 4g + jj')
    for e in range(2):
        g.e('v_lshlrev_b32 v%d, 1, v%d' % (vT2, vLane))
        if e: g.e('v_or_b32 v%d, 1, v%d' % (vT2, vT2))
        g.e('v_and_b32 v%d, 0x70, v%d' % (vT3, vT2))
        g.e('v_and_b32 v%d, 3, v%d' % (vT4, vT2))
        g.e('v_lshl_or_b32 v%d, v%d, 2, v%d' % (vT3, vT4, vT3))
        g.e('v_bfe_u32 v%d, v%d, 2, 2' % (vT4, vT2))
        g.e('v_or_b32 v%d, v%d, v%d' % (vT3, vT3, vT4))
        g.e('v_lshlrev_b32 v%d, 2, v%d' % (vT3, vT3))
        g.e('ds_write_b32 v%d, v%d offset:%d' % (vT3, Hh + e, L_HD))
    g.label(lsk)
    load_ktile(g, 6, NT)
    load_ktile(g, 7, NT)
    g.wait_vm('qg')
    g.e('v_add_f32 v%d, v%d, v%d' % (G, G, G + 2))
    g.e('v_add_f32 v%d, v%d, v%d' % (G + 1, G + 1, G + 3))
    g.e('v_add_f32 v%d, v%d, v%d' % (G + 4, G + 4, G + 6))
    g.e('v_add_f32 v%d, v%d, v%d' % (G + 5, G + 5, G + 7))
    g.e('v_add_f32 v%d, v%d, v%d' % (G, G, G + 4))
    g.e('v_add_f32 v%d, v%d, v%d' % (G + 1, G + 1, G + 5))
    g.e('v_cvt_pk_bf16_f32 v%d, v%d, v%d' % (G, G, G + 1))
    g.e('v_lshlrev_b32 v%d, 2, v0' % vT0)
    g.e('ds_write_b32 v%d, v%d offset:%d' % (vT0, G, L_QL))
    for T in range(3): load_vtile(g, T, NT)
    g.wait_lgkm(0)
    g.e('s_barrier')
    g.c('Q frags from LDS: (eta*128 + 8g)*2 + 64j')
    g.e('v_lshrrev_b32 v%d, 2, v%d' % (vT0, vL15))
    g.e('v_bfe_u32 v%d, v%d, 1, 1' % (vT1, vL15))
    g.e('v_lshl_add_u32 v%d, v%d, 2, v%d' % (vT0, vT1, vT0))
    g.e('v_lshlrev_b32 v%d, 8, v%d' % (vT1, vT0))
    g.e('v_lshl_add_u32 v%d, v%d, 4, v%d' % (vT1, vG, vT1))
    for j in range(4):
        g.e('ds_read_b128 %s, v%d offset:%d' % (vr(vQ + 4 * j, 4), vT1, L_QL + 64 * j))
    g.wait_lgkm(0)

def wo_loads(g):
    g.c('wo: row = 128h+16w+4jj+g ; voff = row*2048 + b*256 + c*16')
    g.e('s_lshl_b32 s%d, s%d, 7' % (sT0, sH))
    g.e('s_lshl_b32 s%d, s%d, 4' % (sT1, sW))
    g.e('s_add_u32 s%d, s%d, s%d' % (sT0, sT0, sT1))
    g.e('s_lshl_b32 s%d, s%d, 11' % (sT0, sT0))
    g.e('s_lshl_b32 s%d, s%d, 8' % (sT2, sB))
    g.e('s_add_u32 s%d, s%d, s%d' % (sT0, sT0, sT2))
    g.e('v_lshlrev_b32 v%d, 11, v%d' % (vA3, vG))
    g.e('v_lshl_add_u32 v%d, v%d, 4, v%d' % (vA3, vL15, vA3))
    g.e('v_add_u32 v%d, s%d, v%d' % (vA2, sT0, vA3))
    for jj in range(4):
        g.e('s_mov_b32 s%d, %d' % (sT3, jj * 8192))
        g.e('buffer_load_dwordx4 %s, v%d, %s, s%d offen%s' % (vr(vWO + 4 * jj, 4), vA2, srd('wo'), sT3, NT), 'wo')

def wd_loads(g):
    g.c('wd: row = 112h+16w+4jj+g (w<7)')
    g.e('s_mul_i32 s%d, s%d, 112' % (sT0, sH))
    g.e('s_lshl_b32 s%d, s%d, 4' % (sT1, sW))
    g.e('s_add_u32 s%d, s%d, s%d' % (sT0, sT0, sT1))
    g.e('s_lshl_b32 s%d, s%d, 11' % (sT0, sT0))
    g.e('s_lshl_b32 s%d, s%d, 8' % (sT2, sB))
    g.e('s_add_u32 s%d, s%d, s%d' % (sT0, sT0, sT2))
    g.e('s_cmp_eq_u32 s%d, 7' % sW)
    g.e('s_cselect_b32 s%d, 0x40000000, s%d' % (sT0, sT0))
    g.e('v_add_u32 v%d, s%d, v%d' % (vA2, sT0, vA3))
    for jj in range(4):
        g.e('s_mov_b32 s%d, %d' % (sT3, jj * 8192))
        g.e('buffer_load_dwordx4 %s, v%d, %s, s%d offen%s' % (vr(vWD + 4 * jj, 4), vA2, srd('wd'), sT3, NT), 'wd')

def attn_combine2(g):
    g.c('write O partials to LDS: w*WSTR + (4u+hq)*HS + ((2g+a)*4+e0)*16')
    g.e('v_lshrrev_b32 v%d, 2, v%d' % (vT0, vL15))
    g.e('v_and_b32 v%d, 3, v%d' % (vT1, vLane))
    g.e('s_mul_i32 s%d, s%d, %d' % (sT0, sW, WSTR))
    g.e('v_mul_u32_u24 v%d, %d, v%d' % (vT0, HS, vT0))
    g.e('v_lshlrev_b32 v%d, 7, v%d' % (vT2, vG))
    g.e('v_lshl_add_u32 v%d, v%d, 4, v%d' % (vT2, vT1, vT2))
    g.e('v_add3_u32 v%d, v%d, v%d, s%d' % (vT0, vT0, vT2, sT0))
    for u in range(2):
        for a in range(2):
            g.e('ds_write_b128 v%d, %s offset:%d' % (vT0, vr(vQ + 4 * (2 * u + a), 4), L_OP + u * 4 * HS + a * 64))
    g.e('v_lshrrev_b32 v%d, 2, v%d' % (vT0, vL15))
    g.e('v_bfe_u32 v%d, v%d, 1, 1' % (vT1, vL15))
    g.e('v_lshl_add_u32 v%d, v%d, 2, v%d' % (vT0, vT1, vT0))
    g.e('s_lshl_b32 s%d, s%d, 6' % (sT0, sW))
    g.e('v_lshlrev_b32 v%d, 3, v%d' % (vT0, vT0))
    g.e('v_add_u32 v%d, s%d, v%d' % (vT0, sT0, vT0))
    g.e('v_and_b32 v%d, 0x31, v%d' % (vT1, vLane))
    g.e('v_cmp_eq_u32 vcc, 0, v%d' % vT1)
    g.e('s_and_saveexec_b64 s[%d:%d], vcc' % (sEX, sEX + 1))
    g.e('ds_write_b64 v%d, %s offset:%d' % (vT0, vr(vM, 2), L_ML))
    g.e('s_mov_b64 exec, s[%d:%d]' % (sEX, sEX + 1))
    g.wait_lgkm(0)
    g.e('s_barrier')
    R = 64; RM = 80
    g.e('s_mul_i32 s%d, s%d, %d' % (sT0, sW, HS))
    g.e('v_lshlrev_b32 v%d, 3, v%d' % (vT0, vLane))
    g.e('v_add_u32 v%d, s%d, v%d' % (vT0, sT0, vT0))
    g.e('s_lshl_b32 s%d, s%d, 3' % (sT1, sW))
    g.e('v_mov_b32 v%d, s%d' % (vT1, sT1))
    for w in range(8):
        g.e('ds_read_b64 %s, v%d offset:%d' % (vr(RM + 2 * w, 2), vT1, L_ML + w * 64))
    for w in range(8):
        g.e('ds_read_b64 %s, v%d offset:%d' % (vr(R + 2 * w, 2), vT0, L_OP + w * WSTR))
    g.wait_lgkm(8)
    g.e('v_max3_f32 v%d, v%d, v%d, v%d' % (vM, RM, RM + 2, RM + 4))
    g.e('v_max3_f32 v%d, v%d, v%d, v%d' % (vM, vM, RM + 6, RM + 8))
    g.e('v_max3_f32 v%d, v%d, v%d, v%d' % (vM, vM, RM + 10, RM + 12))
    g.e('v_max_f32 v%d, v%d, v%d' % (vM, vM, RM + 14))
    for w in range(8):
        g.e('v_sub_f32 v%d, v%d, v%d' % (RM + 2 * w, RM + 2 * w, vM))
    for w in range(8):
        g.e('v_mul_f32 v%d, s%d, v%d' % (RM + 2 * w, sL2E, RM + 2 * w))
    for w in range(8):
        g.e('v_exp_f32 v%d, v%d' % (RM + 2 * w, RM + 2 * w))
    g.e('v_mul_f32 v%d, v%d, v%d' % (vLs, RM, RM + 1))
    for w in range(1, 8):
        g.e('v_fmac_f32 v%d, v%d, v%d' % (vLs, RM + 2 * w, RM + 2 * w + 1))
    g.wait_lgkm(0)
    g.e('v_mul_f32 v%d, v%d, v%d' % (vT2, RM, R))
    g.e('v_mul_f32 v%d, v%d, v%d' % (vT3, RM, R + 1))
    for w in range(1, 8):
        g.e('v_fmac_f32 v%d, v%d, v%d' % (vT2, RM + 2 * w, R + 2 * w))
        g.e('v_fmac_f32 v%d, v%d, v%d' % (vT3, RM + 2 * w, R + 2 * w + 1))
    for r in (vT2, vT3, vM, vLs):
        g.e('v_min_u32 v%d, -2, v%d' % (r, r))
    g.e('s_lshl_b32 s%d, s%d, 3' % (sT0, sKV))
    g.e('s_add_u32 s%d, s%d, s%d' % (sT0, sT0, sW))
    g.e('s_lshl_b32 s%d, s%d, 6' % (sT0, sT0))
    g.e('s_add_u32 s%d, s%d, s%d' % (sT0, sT0, sU))
    g.e('s_lshl_b32 s%d, s%d, 9' % (sT1, sT0))
    g.e('s_add_u32 s%d, s%d, 0x%x' % (sT1, sT1, O_OFF2))
    g.e('s_lshl_b32 s%d, s%d, 3' % (sT2, sT0))
    g.e('s_add_u32 s%d, s%d, 0x%x' % (sT2, sT2, ML_OFF2))
    g.e('v_lshlrev_b32 v%d, 3, v%d' % (vT0, vLane))
    g.e('buffer_store_dwordx2 %s, v%d, %s, s%d offen sc1' % (vr(vT2, 2), vT0, srd('ws'), sT1), 'st')
    g.e('s_mov_b64 exec, 1')
    g.e('buffer_store_dwordx2 %s, v%d, %s, s%d offen sc1' % (vr(vM, 2), vT0, srd('ws'), sT2), 'st')
    g.e('s_mov_b64 exec, -1')

def spin_tail(g, lloop, lok):
    g.e('s_add_u32 s%d, s%d, 1' % (sCNT, sCNT))
    g.e('s_cmp_lt_u32 s%d, %d' % (sCNT, SPIN_MAX))
    g.e('s_cbranch_scc1 %s' % lloop)

def hop1_gather(g):
    g.c('wave 0 polls ml for head h')
    g.e('s_lshl_b32 s%d, s%d, 9' % (sT0, sH))
    g.e('s_add_u32 s%d, s%d, 0x%x' % (sT0, sT0, ML_OFF2))
    g.e('v_lshlrev_b32 v%d, 3, v%d' % (vA0, vLane))
    lsk = g.newlabel('h1skip'); lloop = g.newlabel('h1loop')
    g.e('s_cmp_lg_u32 s%d, %d' % (sW, int(os.environ.get('POLLW', '0'))))
    g.e('s_cbranch_scc1 %s' % lsk)
    g.e('s_mov_b32 s%d, 0' % sCNT)
    g.label(lloop)
    g.e('buffer_load_dwordx2 %s, v%d, %s, s%d offen sc1' % (vr(vPM, 2), vA0, srd('ws'), sT0), 'pp')
    g.e('s_waitcnt vmcnt(0)')
    g.e('v_max_u32 v%d, v%d, v%d' % (vT0, vPM, vPM + 1))
    g.e('v_cmp_eq_u32 vcc, -1, v%d' % vT0)
    g.e('s_cmp_eq_u64 vcc, 0')
    g.e('s_cbranch_scc1 %s' % lsk)
    g.e('s_sleep 1')
    spin_tail(g, lloop, lsk)
    g.label(lsk)
    g.vm.pop()
    g.e('s_barrier')
    stamp(g, 6)
    g.e('s_lshl_b32 s%d, s%d, 15' % (sT1, sH))
    g.e('s_lshl_b32 s%d, s%d, 12' % (sT2, sW))
    g.e('s_add_u32 s%d, s%d, s%d' % (sT1, sT1, sT2))
    g.e('s_add_u32 s%d, s%d, 0x%x' % (sT1, sT1, O_OFF2))
    g.e('v_lshlrev_b32 v%d, 4, v%d' % (vA1, vLane))
    lloop = g.newlabel('h1loop2'); lok = g.newlabel('h1ok')
    g.e('s_mov_b32 s%d, 0' % sCNT)
    g.label(lloop)
    g.e('buffer_load_dwordx2 %s, v%d, %s, s%d offen sc1' % (vr(vPM, 2), vA0, srd('ws'), sT0), 'pm')
    for i in range(4):
        g.e('buffer_load_dwordx4 %s, v%d, %s, s%d offen offset:%d sc1' % (vr(vPO + 4 * i, 4), vA1, srd('ws'), sT1, 1024 * i), 'po')
    g.e('s_waitcnt vmcnt(0)')
    g.e('v_max_u32 v%d, v%d, v%d' % (vT0, vPM, vPM + 1))
    for i in range(8):
        g.e('v_max3_u32 v%d, v%d, v%d, v%d' % (vT0, vT0, vPO + 2 * i, vPO + 2 * i + 1))
    g.e('v_cmp_eq_u32 vcc, -1, v%d' % vT0)
    g.e('s_cmp_eq_u64 vcc, 0')
    g.e('s_cbranch_scc1 %s' % lok)
    g.e('s_sleep 1')
    spin_tail(g, lloop, lok)
    g.label(lok)
    if not os.environ.get('NOST3'): stamp(g, 3)

def tail1_compute2(g):
    vWt = vT4; vLsum = vT5
    g.e('v_mov_b32 v%d, v%d' % (vT2, vPM))
    allreduce_inrow(g, 'v_max_f32', [vT2], [8, 4, 2, 1])
    allreduce_rows(g, 'v_max_f32', [vT2], vT3)
    g.e('v_sub_f32 v%d, v%d, v%d' % (vWt, vPM, vT2))
    g.e('v_mul_f32 v%d, s%d, v%d' % (vWt, sL2E, vWt))
    g.e('v_exp_f32 v%d, v%d' % (vWt, vWt))
    g.e('v_lshrrev_b32 v%d, 5, v%d' % (vT0, vLane))
    g.e('s_lshl_b32 s%d, s%d, 3' % (sT0, sW))
    g.e('v_add_lshl_u32 v%d, v%d, s%d, 2' % (vT0, vT0, sT0))
    W4 = vOD
    for i in range(4):
        if i: g.e('v_add_u32 v%d, 8, v%d' % (vT0, vT0))
        g.e('ds_bpermute_b32 v%d, v%d, v%d' % (W4 + i, vT0, vWt))
    g.e('v_mul_f32 v%d, v%d, v%d' % (vLsum, vWt, vPM + 1))
    allreduce_inrow(g, 'v_add_f32', [vLsum], [8, 4, 2, 1])
    allreduce_rows(g, 'v_add_f32', [vLsum], vT3)
    g.wait_lgkm(0)
    A = vAC
    for k in range(4):
        g.e('v_mul_f32 v%d, v%d, v%d' % (A + k, W4, vPO + k))
    for i in range(1, 4):
        for k in range(4):
            g.e('v_fmac_f32 v%d, v%d, v%d' % (A + k, W4 + i, vPO + 4 * i + k))
    for k in range(4):
        g.e('v_mov_b32 v%d, v%d' % (A + 4 + k, A + k))
    for k in range(4):
        g.e('v_permlane32_swap_b32 v%d, v%d' % (A + k, A + 4 + k))
    for k in range(4):
        g.e('v_add_f32 v%d, v%d, v%d' % (A + k, A + k, A + 4 + k))
    g.e('s_lshl_b32 s%d, s%d, 9' % (sT0, sW))
    g.e('v_lshlrev_b32 v%d, 4, v%d' % (vT0, vLane))
    g.e('v_add_u32 v%d, s%d, v%d' % (vT0, sT0, vT0))
    g.e('s_mov_b64 exec, 0xffffffff')
    g.e('ds_write_b128 v%d, %s offset:%d' % (vT0, vr(A, 4), L_RED))
    g.e('s_mov_b64 exec, -1')
    g.wait_lgkm(0)
    g.e('s_barrier')
    lab = g.newlabel('t1skip')
    g.e('s_cmp_ge_u32 s%d, 2' % sW)
    g.e('s_cbranch_scc1 %s' % lab)
    g.e('v_lshlrev_b32 v%d, 2, v0' % vT0)
    for w in range(8):
        g.e('ds_read_b32 v%d, v%d offset:%d' % (A + w, vT0, L_RED + 512 * w))
    g.e('v_rcp_f32 v%d, v%d' % (vT1, vLsum))
    g.e('v_and_b32 v%d, 0x6c, v0' % vT2)
    g.e('v_bfe_u32 v%d, v0, 1, 1' % vT3)
    g.e('v_lshl_or_b32 v%d, v%d, 4, v%d' % (vT2, vT3, vT2))
    g.e('v_and_b32 v%d, 1, v0' % vT3)
    g.e('v_lshl_or_b32 v%d, v%d, 1, v%d' % (vT2, vT3, vT2))
    g.e('v_bfe_u32 v%d, v0, 4, 1' % vT3)
    g.e('v_or_b32 v%d, v%d, v%d' % (vT2, vT2, vT3))
    g.e('v_lshlrev_b32 v%d, 2, v%d' % (vT2, vT2))
    g.wait_lgkm(0)
    for w in range(1, 8):
        g.e('v_add_f32 v%d, v%d, v%d' % (A, A, A + w))
    g.e('v_mul_f32 v%d, v%d, v%d' % (vT0, A, vT1))
    g.e('v_fma_f32 v%d, -v%d, v%d, v%d' % (vT3, vT0, vLsum, A))
    g.e('v_fma_f32 v%d, v%d, v%d, v%d' % (vT0, vT3, vT1, vT0))
    g.e('v_cvt_pk_bf16_f32 v%d, v%d, v%d' % (vT0, vT0, vT0))
    g.e('ds_write_b32 v%d, v%d offset:%d' % (vT2, vT0, L_OD))
    g.wait_lgkm(0)
    g.label(lab)
    g.e('s_barrier')
    g.e('s_lshl_b32 s%d, s%d, 6' % (sT0, sW))
    g.e('v_lshlrev_b32 v%d, 4, v%d' % (vT0, vG))
    g.e('v_add_u32 v%d, s%d, v%d' % (vT0, sT0, vT0))
    g.e('ds_read_b128 %s, v%d offset:%d' % (vr(vOD, 4), vT0, L_OD))
    g.e('ds_read_b128 %s, v%d offset:%d' % (vr(vHD, 4), vT0, L_HD))
    g.wait_lgkm(0)
    g.c('wave 7: zero h (its wd rows are OOB zeros; avoid NaN*0)')
    g.e('s_cmp_eq_u32 s%d, 7' % sW)
    g.e('s_cselect_b32 s%d, 0, -1' % sT0)
    for jj in range(4):
        g.e('v_and_b32 v%d, s%d, v%d' % (vHD + jj, sT0, vHD + jj))
    for ab, (vec, W) in enumerate(((vOD, vWO), (vHD, vWD))):
        for jj in range(4):
            bb = vB + 2 * (jj & 1)
            g.e('v_and_b32 v%d, v%d, v%d' % (bb, vec + jj, vMask0))
            g.e('v_and_b32 v%d, v%d, v%d' % (bb + 1, vec + jj, vMask1))
            for a in range(2):
                acc = vAC + 8 * ab + 4 * a
                g.e('v_mfma_f32_16x16x16_bf16 %s, %s, %s, %s' % (vr(acc, 4), vr(W + 4 * jj + 2 * a, 2), vr(bb, 2), '0' if jj == 0 else vr(acc, 4)))
    g.e('s_lshl_b32 s%d, s%d, 10' % (sT0, sW))
    g.e('v_lshlrev_b32 v%d, 7, v%d' % (vT0, vG))
    g.e('v_lshl_add_u32 v%d, v%d, 4, v%d' % (vT0, vL15, vT0))
    g.e('v_add_u32 v%d, s%d, v%d' % (vT0, sT0, vT0))
    g.e('v_cmp_gt_u32 vcc, 4, v%d' % vL15)
    g.e('s_and_saveexec_b64 s[%d:%d], vcc' % (sEX, sEX + 1))
    for ab in range(2):
        for a in range(2):
            g.e('ds_write_b128 v%d, %s offset:%d' % (vT0, vr(vAC + 8 * ab + 4 * a, 4), L_RED2 + ab * 512 + a * 64))
    g.e('s_mov_b64 exec, s[%d:%d]' % (sEX, sEX + 1))
    g.wait_lgkm(0)
    g.e('s_barrier')
    g.e('s_cmp_ge_u32 s%d, 4' % sW)
    g.e('s_cbranch_scc1 %s' % g.endlabel2)
    g.e('v_lshlrev_b32 v%d, 2, v0' % vT0)
    for w in range(8):
        g.e('ds_read_b32 v%d, v%d offset:%d' % (vPO + w, vT0, L_RED2 + 1024 * w))
    g.e('v_and_b32 v%d, 0xe0, v0' % vT2)
    g.e('v_and_b32 v%d, 3, v0' % vT3)
    g.e('v_lshl_or_b32 v%d, v%d, 3, v%d' % (vT2, vT3, vT2))
    g.e('v_bfe_u32 v%d, v0, 4, 1' % vT3)
    g.e('v_lshl_or_b32 v%d, v%d, 2, v%d' % (vT2, vT3, vT2))
    g.e('v_bfe_u32 v%d, v0, 2, 2' % vT3)
    g.e('v_or_b32 v%d, v%d, v%d' % (vT2, vT2, vT3))
    g.e('v_lshlrev_b32 v%d, 2, v%d' % (vT2, vT2))
    g.e('s_lshl_b32 s%d, s%d, 5' % (sT0, sB))
    g.e('s_add_u32 s%d, s%d, s%d' % (sT0, sT0, sH))
    g.e('s_lshl_b32 s%d, s%d, 10' % (sT0, sT0))
    g.e('s_add_u32 s%d, s%d, 0x%x' % (sT0, sT0, P2_OFF2))
    g.wait_lgkm(0)
    for w in range(1, 8):
        g.e('v_add_f32 v%d, v%d, v%d' % (vPO, vPO, vPO + w))
    g.e('v_min_u32 v%d, -2, v%d' % (vPO, vPO))
    stamp(g, 4)
    g.e('buffer_store_dword v%d, v%d, %s, s%d offen sc1' % (vPO, vT2, srd('ws'), sT0), 'st')
    g.e('s_cmp_lg_u32 s%d, 0' % sW)
    g.e('s_cbranch_scc1 %s' % g.endlabel2)

def tail2_fused(g):
    tail2_xload(g)
    g.e('v_and_b32 v%d, 31, v%d' % (vT0, vLane))
    g.e('v_lshrrev_b32 v%d, 5, v%d' % (vT1, vLane))
    g.e('v_lshlrev_b32 v%d, 10, v%d' % (vT0, vT0))
    g.e('v_lshl_add_u32 v%d, v%d, 9, v%d' % (vA0, vT1, vT0))
    g.e('s_lshl_b32 s%d, s%d, 15' % (sT0, sB))
    g.e('s_lshl_b32 s%d, s%d, 4' % (sT1, sH))
    g.e('s_add_u32 s%d, s%d, s%d' % (sT0, sT0, sT1))
    g.e('s_add_u32 s%d, s%d, 0x%x' % (sT0, sT0, P2_OFF2))
    lloop = g.newlabel('h2loop'); lok = g.newlabel('h2ok')
    g.e('s_mov_b32 s%d, 0' % sCNT)
    g.label(lloop)
    g.e('buffer_load_dwordx4 %s, v%d, %s, s%d offen sc1' % (vr(64, 4), vA0, srd('ws'), sT0), 'p2')
    g.e('s_waitcnt vmcnt(0)')
    g.e('v_max_u32 v%d, v64, v65' % vT0)
    g.e('v_max3_u32 v%d, v%d, v66, v67' % (vT0, vT0))
    g.e('v_cmp_eq_u32 vcc, -1, v%d' % vT0)
    g.e('s_cmp_eq_u64 vcc, 0')
    g.e('s_cbranch_scc1 %s' % lok)
    g.e('s_sleep 1')
    spin_tail(g, lloop, lok)
    g.label(lok)
    tail2_compute(g)

def fused(g):
    clears(g)
    head2(g)
    poll_counters(g)
    gather_q_h(g)
    stamp(g, 4)
    for T in range(8):
        g.wait_vm('K%d' % T)
        qk_tile(g, T)
        if T > 0: score_tile(g, T - 1)
        if T < 5: load_vtile(g, T + 3, NT)
        if T == 5: wo_loads(g)
        if T == 6: wd_loads(g)
    score_tile(g, 7)
    softmax_all(g)
    for T in range(8):
        g.wait_vm('V%d' % T)
        pv_tile(g, T)
    stamp(g, 5)
    attn_combine2(g)
    hop1_gather(g)
    tail1_compute2(g)
    tail2_fused(g)

def main():
    out = HEADER
    out += '; @launch grid=(256,1,1) block=(512,1,1) lds=%d\n' % LDS_BYTES
    out += '.amdgcn_target "amdgcn-amd-amdhsa--gfx950"\n.text\n'
    t, kd = kernel(NAME + '_kernel', fused, ['x', 'K', 'V', 'wq', 'wo', 'wg', 'wu', 'wd', 'out', 'dbg', 'ws'], 0)
    out += t
    out += '.section .rodata,"a"\n.p2align 6\n' + kd
    path = sys.argv[1] if len(sys.argv) > 1 else 'cdna_kernels/%s.s' % NAME
    open(path, 'w').write(out)
    print('wrote', path, len(out))

if __name__ == '__main__':
    main()
```

```python
import sys, os
sys.path.insert(0, 'gen')
import gen1, gen2
from gen1 import *
from gen2 import *

LOOK = int(os.environ.get('LOOK', '4'))

def clears3(g):
    g.c('---- clear own hand-off slots with sentinel (plain stores; kernel boundary publishes)')
    g.e('v_mov_b32 v%d, -1' % vT2)
    g.e('v_mov_b32 v%d, -1' % vT3)
    g.e('s_lshl_b32 s%d, s%d, 3' % (sT0, sKV))
    g.e('s_add_u32 s%d, s%d, s%d' % (sT0, sT0, sW))
    g.e('s_lshl_b32 s%d, s%d, 6' % (sT0, sT0))
    g.e('s_add_u32 s%d, s%d, s%d' % (sT0, sT0, sU))
    g.e('s_lshl_b32 s%d, s%d, 9' % (sT1, sT0))
    g.e('s_add_u32 s%d, s%d, 0x%x' % (sT1, sT1, O_OFF2))
    g.e('s_lshl_b32 s%d, s%d, 3' % (sT2, sT0))
    g.e('s_add_u32 s%d, s%d, 0x%x' % (sT2, sT2, ML_OFF2))
    g.e('v_lshlrev_b32 v%d, 3, v%d' % (vT0, vLane))
    g.e('buffer_store_dwordx2 %s, v%d, %s, s%d offen' % (vr(vT2, 2), vT0, srd('ws'), sT1), 'st')
    g.e('v_mov_b32 v%d, 0' % vT1)
    g.e('s_mov_b64 exec, 1')
    g.e('buffer_store_dwordx2 %s, v%d, %s, s%d offen' % (vr(vT2, 2), vT1, srd('ws'), sT2), 'st')
    g.e('s_mov_b64 exec, -1')
    g.e('s_lshl_b32 s%d, s%d, 5' % (sT0, sB))
    g.e('s_add_u32 s%d, s%d, s%d' % (sT0, sT0, sH))
    g.e('s_lshl_b32 s%d, s%d, 10' % (sT0, sT0))
    g.e('s_add_u32 s%d, s%d, 0x%x' % (sT0, sT0, P2_OFF2))
    g.e('s_cmp_ge_u32 s%d, 4' % sW)
    g.e('s_cselect_b32 s%d, 0x40000000, s%d' % (sT0, sT0))
    g.e('v_lshlrev_b32 v%d, 2, v0' % vT0)
    g.e('buffer_store_dword v%d, v%d, %s, s%d offen' % (vT2, vT0, srd('ws'), sT0), 'st')

def head3(g):
    vX = 64; vXF = 72; vWQ = 16; vWG = 88; vWU = 104; vACC = 32; vXN = 56
    g.e('s_lshr_b32 s%d, s%d, 2' % (sCBL, sU))
    g.e('s_and_b32 s%d, s%d, 3' % (sKQ, sU))
    g.c('x loads')
    g.e('v_lshlrev_b32 v%d, 5, v%d' % (vA0, vLane))
    g.e('buffer_load_dwordx4 %s, v%d, %s, 0 offen' % (vr(vX, 4), vA0, srd('x')), 'x')
    g.e('buffer_load_dwordx4 %s, v%d, %s, 0 offen offset:16' % (vr(vX + 4, 4), vA0, srd('x')), 'x')
    g.e('v_lshrrev_b32 v%d, 3, v%d' % (vT0, vLane))
    g.e('v_and_b32 v%d, 7, v%d' % (vT1, vLane))
    g.e('v_lshlrev_b32 v%d, 2, v%d' % (vT0, vT0))
    g.e('s_lshl_b32 s%d, s%d, 8' % (sT0, sKQ))
    g.e('s_lshl_b32 s%d, s%d, 5' % (sT1, sW))
    g.e('s_add_u32 s%d, s%d, s%d' % (sT0, sT0, sT1))
    g.e('v_add_u32 v%d, s%d, v%d' % (vT0, sT0, vT0))
    g.e('v_lshlrev_b32 v%d, 4, v%d' % (vT1, vT1))
    g.e('s_lshl_b32 s%d, s%d, 11' % (sT1, sKV))
    g.e('s_lshl_b32 s%d, s%d, 7' % (sT2, sCBL))
    g.e('s_add_u32 s%d, s%d, s%d' % (sT1, sT1, sT2))
    g.e('v_lshlrev_b32 v%d, 13, v%d' % (vA1, vT0))
    g.e('v_add3_u32 v%d, v%d, v%d, s%d' % (vA1, vA1, vT1, sT1))
    for i in range(4):
        g.e('s_mov_b32 s%d, %d' % (sT3, i * 8192))
        g.e('buffer_load_dwordx4 %s, v%d, %s, s%d offen%s' % (vr(vWQ + 4 * i, 4), vA1, srd('wq'), sT3, NT), 'wq')
    g.e('s_cmp_ge_u32 s%d, %d' % (sT1, 56 * 128))
    g.e('s_cselect_b32 s%d, 0x40000000, s%d' % (sT1, sT1))
    g.e('s_mov_b32 s%d, 7168' % sT2)
    g.e('v_mul_lo_u32 v%d, v%d, s%d' % (vA2, vT0, sT2))
    g.e('v_add3_u32 v%d, v%d, v%d, s%d' % (vA2, vA2, vT1, sT1))
    for i in range(4):
        g.e('s_mov_b32 s%d, %d' % (sT3, i * 7168))
        g.e('buffer_load_dwordx4 %s, v%d, %s, s%d offen%s' % (vr(vWG + 4 * i, 4), vA2, srd('wg'), sT3, NT), 'wg')
        g.e('buffer_load_dwordx4 %s, v%d, %s, s%d offen%s' % (vr(vWU + 4 * i, 4), vA2, srd('wu'), sT3, NT), 'wu')
    g.e('v_lshlrev_b32 v%d, 2, v%d' % (vA3, vT0))
    g.e('v_add_u32 v%d, %d, v%d' % (vA3, H_XN, vA3))
    clears3(g)
    stamp(g, 1)
    g.c('---- layernorm')
    g.wait_vm('x')
    for k in range(8):
        g.e('v_lshlrev_b32 v%d, 16, v%d' % (vXF + 2 * k, vX + k))
        g.e('v_and_b32 v%d, s%d, v%d' % (vXF + 2 * k + 1, sHI, vX + k))
    g.e('v_add_f32 v%d, v%d, v%d' % (vT2, vXF, vXF + 1))
    for k in range(2, 16):
        g.e('v_add_f32 v%d, v%d, v%d' % (vT2, vT2, vXF + k))
    allreduce_inrow(g, 'v_add_f32', [vT2], [8, 4, 2, 1])
    allreduce_rows(g, 'v_add_f32', [vT2], vT3)
    g.e('v_mul_f32 v%d, 0x3a800000, v%d' % (vT2, vT2))
    g.e('v_sub_f32 v%d, v%d, v%d' % (vT3, vXF, vT2))
    g.e('v_mul_f32 v%d, v%d, v%d' % (vT4, vT3, vT3))
    for k in range(1, 16):
        g.e('v_sub_f32 v%d, v%d, v%d' % (vT3, vXF + k, vT2))
        g.e('v_fmac_f32 v%d, v%d, v%d' % (vT4, vT3, vT3))
    allreduce_inrow(g, 'v_add_f32', [vT4], [8, 4, 2, 1])
    allreduce_rows(g, 'v_add_f32', [vT4], vT3)
    g.e('v_mul_f32 v%d, 0x3a800000, v%d' % (vT4, vT4))
    round_bf16(g, vT2, vT2)
    round_bf16(g, vT4, vT4)
    g.e('v_add_f32 v%d, 0x3727c5ac, v%d' % (vT4, vT4))
    round_bf16(g, vT4, vT4)
    g.e('v_sqrt_f32 v%d, v%d' % (vT4, vT4))
    round_bf16(g, vT4, vT4)
    g.e('v_rcp_f32 v%d, v%d' % (vT5, vT4))
    for k in range(0, 16, 2):
        a, b = vXF + k, vXF + k + 1
        g.e('v_sub_f32 v%d, v%d, v%d' % (a, a, vT2))
        g.e('v_sub_f32 v%d, v%d, v%d' % (b, b, vT2))
        g.e('v_cvt_pk_bf16_f32 v%d, v%d, v%d' % (vT3, a, b))
        g.e('v_lshlrev_b32 v%d, 16, v%d' % (a, vT3))
        g.e('v_and_b32 v%d, s%d, v%d' % (b, sHI, vT3))
        for r in (a, b):
            g.e('v_mul_f32 v%d, v%d, v%d' % (vT0, r, vT5))
            g.e('v_fma_f32 v%d, -v%d, v%d, v%d' % (vT1, vT0, vT4, r))
            g.e('v_fma_f32 v%d, v%d, v%d, v%d' % (r, vT1, vT5, vT0))
        g.e('v_cvt_pk_bf16_f32 v%d, v%d, v%d' % (vT3, a, b))
        g.e('v_lshlrev_b32 v%d, 16, v%d' % (a, vT3))
        g.e('v_and_b32 v%d, s%d, v%d' % (b, sHI, vT3))
    g.e('v_lshlrev_b32 v%d, 6, v%d' % (vT0, vLane))
    for k in range(4):
        g.e('ds_write_b128 v%d, %s offset:%d' % (vT0, vr(vXF + 4 * k, 4), H_XN + 16 * k))
    g.wait_lgkm(0)
    g.e('ds_read_b128 %s, v%d' % (vr(vXN, 4), vA3))
    g.wait_lgkm(0)
    stamp(g, 2)
    for s_i, (vW, tag) in enumerate(((vWQ, 'wq'), (vWG, 'wg'), (vWU, 'wu'))):
        if tag == 'wq': g.wait_vm('wq')
        if tag == 'wg': g.wait_vm('wu')
        acc = vACC + 8 * s_i
        for i in range(4):
            for k in range(4):
                w = vW + 4 * i + k
                g.e('v_lshlrev_b32 v%d, 16, v%d' % (vT0, w))
                g.e('v_and_b32 v%d, s%d, v%d' % (vT1, sHI, w))
                if i == 0:
                    g.e('v_mul_f32 v%d, v%d, v%d' % (acc + 2 * k, vT0, vXN + i))
                    g.e('v_mul_f32 v%d, v%d, v%d' % (acc + 2 * k + 1, vT1, vXN + i))
                else:
                    g.e('v_fmac_f32 v%d, v%d, v%d' % (acc + 2 * k, vT0, vXN + i))
                    g.e('v_fmac_f32 v%d, v%d, v%d' % (acc + 2 * k + 1, vT1, vXN + i))
    allreduce_inrow(g, 'v_add_f32', list(range(vACC, vACC + 24)), [8])
    g.e('s_lshl_b32 s%d, s%d, 2' % (sT0, sW))
    g.e('v_add_u32 v%d, s%d, v%d' % (vT0, sT0, vG))
    g.e('v_lshlrev_b32 v%d, 8, v%d' % (vT0, vT0))
    g.e('v_and_b32 v%d, 7, v%d' % (vT1, vLane))
    g.e('v_lshl_add_u32 v%d, v%d, 5, v%d' % (vT0, vT1, vT0))
    g.e('v_cmp_gt_u32 vcc, 8, v%d' % vL15)
    g.e('s_and_saveexec_b64 s[%d:%d], vcc' % (sEX, sEX + 1))
    for s_i in range(3):
        for hf in range(2):
            g.e('ds_write_b128 v%d, %s offset:%d' % (vT0, vr(vACC + 8 * s_i + 4 * hf, 4), H_HP + s_i * 8192 + hf * 16))
    g.e('s_mov_b64 exec, s[%d:%d]' % (sEX, sEX + 1))
    g.wait_lgkm(0)
    g.e('s_barrier')
    stamp(g, 3)
    g.c('---- waves 0..2: final reduce of set w: lane(cg=l&15 (4 cols), pg=l>>4 (8 parts))')
    g.e('s_cmp_ge_u32 s%d, 3' % sW)
    g.e('s_cbranch_scc1 %s' % g.endlabel2)
    g.e('v_lshlrev_b32 v%d, 11, v%d' % (vT0, vG))
    g.e('v_lshl_add_u32 v%d, v%d, 4, v%d' % (vT0, vL15, vT0))
    g.e('s_lshl_b32 s%d, s%d, 13' % (sT0, sW))
    g.e('v_add_u32 v%d, s%d, v%d' % (vT0, sT0, vT0))
    R = 64
    for k in range(8):
        g.e('ds_read_b128 %s, v%d offset:%d' % (vr(R + 4 * k, 4), vT0, H_HP + k * 256))
    g.c('dest offset: set0: kq*16384 + cb*256 ; set1/2: GP/UP + kq*14336 + cb*256 (OOB if cb>=56)')
    g.e('s_lshl_b32 s%d, s%d, 4' % (sT0, sKV))
    g.e('s_add_u32 s%d, s%d, s%d' % (sT0, sT0, sCBL))
    g.e('s_lshl_b32 s%d, s%d, 8' % (sT1, sT0))
    g.e('s_lshl_b32 s%d, s%d, 14' % (sT2, sKQ))
    g.e('s_add_u32 s%d, s%d, s%d' % (sT2, sT2, sT1))
    g.e('s_mul_i32 s%d, s%d, %d' % (sT3, sKQ, 3584 * 4))
    g.e('s_add_u32 s%d, s%d, s%d' % (sT3, sT3, sT1))
    g.e('s_lshl_b32 s%d, s%d, 16' % (sT1, sW))
    g.e('s_add_u32 s%d, s%d, s%d' % (sT3, sT3, sT1))
    g.e('s_cmp_ge_u32 s%d, 56' % sT0)
    g.e('s_cselect_b32 s%d, 0x40000000, s%d' % (sT3, sT3))
    g.e('s_cmp_eq_u32 s%d, 0' % sW)
    g.e('s_cselect_b32 s%d, s%d, s%d' % (sT3, sT2, sT3))
    g.wait_lgkm(0)
    for k in range(1, 8):
        for e in range(4):
            g.e('v_add_f32 v%d, v%d, v%d' % (R + e, R + e, R + 4 * k + e))
    allreduce_rows(g, 'v_add_f32', [R + e for e in range(4)], vT1)
    g.e('v_lshlrev_b32 v%d, 4, v%d' % (vT2, vLane))
    g.e('s_mov_b64 exec, 0xffff')
    g.e('buffer_store_dwordx4 %s, v%d, %s, s%d offen' % (vr(R, 4), vT2, srd('ws'), sT3), 'st')
    g.e('s_mov_b64 exec, -1')
assert GP_OFF == 0x10000 and UP_OFF == 0x20000
H_XN = 0
H_HP = 4096

def main_kernel(g):
    G = 32; Hh = 40
    g.c('q gather: QP + (kq*4096 + 1024kv + 2t)*4')
    g.e('s_lshl_b32 s%d, s%d, 12' % (sT0, sKV))
    g.e('v_lshlrev_b32 v%d, 3, v0' % vT0)
    g.e('v_add_u32 v%d, s%d, v%d' % (vT0, sT0, vT0))
    for kq in range(4):
        g.e('s_mov_b32 s%d, %d' % (sT3, QP_OFF + kq * 16384))
        g.e('buffer_load_dwordx2 %s, v%d, %s, s%d offen' % (vr(G + 2 * kq, 2), vT0, srd('ws'), sT3), 'qg')
    g.c('h gather (wave 7 only; OOB otherwise)')
    g.e('s_mul_i32 s%d, s%d, 448' % (sT0, sH))
    g.e('s_cmp_lg_u32 s%d, 7' % sW)
    g.e('s_cselect_b32 s%d, 0x40000000, s%d' % (sT0, sT0))
    g.e('v_lshlrev_b32 v%d, 3, v%d' % (vT1, vLane))
    g.e('v_add_u32 v%d, s%d, v%d' % (vT1, sT0, vT1))
    for kq in range(4):
        g.e('s_mov_b32 s%d, %d' % (sT3, GP_OFF + kq * 3584 * 4))
        g.e('buffer_load_dwordx2 %s, v%d, %s, s%d offen' % (vr(Hh + 2 * kq, 2), vT1, srd('ws'), sT3), 'hg')
        g.e('s_mov_b32 s%d, %d' % (sT3, UP_OFF + kq * 3584 * 4))
        g.e('buffer_load_dwordx2 %s, v%d, %s, s%d offen' % (vr(Hh + 8 + 2 * kq, 2), vT1, srd('ws'), sT3), 'hg')
    attn_addrs(g)
    groups = [('K', T) for T in range(8)] + [('V', T) for T in range(8)] + [('wo', 0), ('wd', 0)]
    gi = [0]
    def issue_next():
        if gi[0] >= len(groups): return
        k, T = groups[gi[0]]; gi[0] += 1
        if k == 'K': load_ktile(g, T, NT)
        elif k == 'V': load_vtile(g, T, NT)
        elif k == 'wo': wo_loads(g)
        else: wd_loads(g)
    for _ in range(LOOK): issue_next()
    make_masks(g)
    g.wait_vm('qg')
    g.e('v_add_f32 v%d, v%d, v%d' % (G, G, G + 2))
    g.e('v_add_f32 v%d, v%d, v%d' % (G + 1, G + 1, G + 3))
    g.e('v_add_f32 v%d, v%d, v%d' % (G + 4, G + 4, G + 6))
    g.e('v_add_f32 v%d, v%d, v%d' % (G + 5, G + 5, G + 7))
    g.e('v_add_f32 v%d, v%d, v%d' % (G, G, G + 4))
    g.e('v_add_f32 v%d, v%d, v%d' % (G + 1, G + 1, G + 5))
    g.e('v_cvt_pk_bf16_f32 v%d, v%d, v%d' % (G, G, G + 1))
    g.e('v_lshlrev_b32 v%d, 2, v0' % vT0)
    g.e('ds_write_b32 v%d, v%d offset:%d' % (vT0, G, L_QL))
    lsk = g.newlabel('nohg')
    g.e('s_cmp_lg_u32 s%d, 7' % sW)
    g.e('s_cbranch_scc1 %s' % lsk)
    g.wait_vm('hg')
    for e in range(2):
        gg = Hh + e; uu = Hh + 8 + e
        g.e('v_add_f32 v%d, v%d, v%d' % (gg, gg, gg + 2))
        g.e('v_add_f32 v%d, v%d, v%d' % (gg + 4, gg + 4, gg + 6))
        g.e('v_add_f32 v%d, v%d, v%d' % (gg, gg, gg + 4))
        g.e('v_add_f32 v%d, v%d, v%d' % (uu, uu, uu + 2))
        g.e('v_add_f32 v%d, v%d, v%d' % (uu + 4, uu + 4, uu + 6))
        g.e('v_add_f32 v%d, v%d, v%d' % (uu, uu, uu + 4))
        round_bf16(g, gg, gg)
        round_bf16(g, uu, uu)
        g.e('v_mul_f32 v%d, v%d, v%d' % (vT2, gg, gg))
        g.e('v_mul_f32 v%d, v%d, v%d' % (vT2, vT2, gg))
        g.e('v_mul_f32 v%d, 0x3d372713, v%d' % (vT2, vT2))
        g.e('v_add_f32 v%d, v%d, v%d' % (vT2, vT2, gg))
        g.e('v_mul_f32 v%d, 0x3f4c422a, v%d' % (vT2, vT2))
        g.e('v_mul_f32 v%d, 0xc038aa3b, v%d' % (vT2, vT2))
        g.e('v_exp_f32 v%d, v%d' % (vT2, vT2))
        g.e('v_add_f32 v%d, 1.0, v%d' % (vT2, vT2))
        g.e('v_rcp_f32 v%d, v%d' % (vT2, vT2))
        g.e('v_mul_f32 v%d, v%d, v%d' % (vT2, vT2, gg))
        round_bf16(g, vT2, vT2)
        g.e('v_mul_f32 v%d, v%d, v%d' % (vT2, vT2, uu))
        g.e('v_cvt_pk_bf16_f32 v%d, v%d, v%d' % (gg, vT2, vT2))
    for e in range(2):
        g.e('v_lshlrev_b32 v%d, 1, v%d' % (vT2, vLane))
        if e: g.e('v_or_b32 v%d, 1, v%d' % (vT2, vT2))
        g.e('v_and_b32 v%d, 0x70, v%d' % (vT3, vT2))
        g.e('v_and_b32 v%d, 3, v%d' % (vT4, vT2))
        g.e('v_lshl_or_b32 v%d, v%d, 2, v%d' % (vT3, vT4, vT3))
        g.e('v_bfe_u32 v%d, v%d, 2, 2' % (vT4, vT2))
        g.e('v_or_b32 v%d, v%d, v%d' % (vT3, vT3, vT4))
        g.e('v_lshlrev_b32 v%d, 2, v%d' % (vT3, vT3))
        g.e('ds_write_b32 v%d, v%d offset:%d' % (vT3, Hh + e, L_HD))
    g.label(lsk)
    g.wait_lgkm(0)
    g.e('s_barrier')
    g.e('v_lshrrev_b32 v%d, 2, v%d' % (vT0, vL15))
    g.e('v_bfe_u32 v%d, v%d, 1, 1' % (vT1, vL15))
    g.e('v_lshl_add_u32 v%d, v%d, 2, v%d' % (vT0, vT1, vT0))
    g.e('v_lshlrev_b32 v%d, 8, v%d' % (vT1, vT0))
    g.e('v_lshl_add_u32 v%d, v%d, 4, v%d' % (vT1, vG, vT1))
    for j in range(4):
        g.e('ds_read_b128 %s, v%d offset:%d' % (vr(vQ + 4 * j, 4), vT1, L_QL + 64 * j))
    g.wait_lgkm(0)
    stamp(g, 1)
    def can_issue(done_qk):
        if gi[0] >= len(groups): return False
        k, T = groups[gi[0]]
        if k == 'V' and T >= 3: return done_qk > T - 3
        if k == 'wo': return done_qk > 5
        if k == 'wd': return done_qk > 6
        return True
    for T in range(8):
        g.wait_vm('K%d' % T)
        qk_tile(g, T)
        if can_issue(T + 1): issue_next()
        if T > 0: score_tile(g, T - 1)
    stamp(g, 2)
    score_tile(g, 7)
    issue_next()
    softmax_all(g)
    for T in range(8):
        g.wait_vm('V%d' % T)
        pv_tile(g, T)
        issue_next()
    while gi[0] < len(groups): issue_next()
    stamp(g, 5)
    attn_combine2(g)
    hop1_gather(g)
    tail1_compute2(g)
    tail2_fused(g)

def main():
    ks = [
        ('head_kernel', head3, ['x', 'wq', 'wg', 'wu', 'ws'], 512, 28672, 128),
        ('main_kernel', main_kernel, ['x', 'K', 'V', 'wo', 'wd', 'out', 'ws'], 512, LDS_BYTES, 256),
    ]
    out = HEADER
    for n, _, _, blk, lds, nv in ks:
        out += '; @launch kernel=%s grid=(256,1,1) block=(%d,1,1) lds=%d\n' % (n, blk, lds)
    out += '.amdgcn_target "amdgcn-amd-amdhsa--gfx950"\n.text\n'
    kds = ''
    for kidx, (n, body, used, blk, lds, nv) in enumerate(ks):
        t, kd = kernel(n, body, used, kidx, nv)
        out += t
        kds += '.p2align 6\n' + kd
    out += '.section .rodata,"a"\n' + kds
    path = sys.argv[1] if len(sys.argv) > 1 else 'cdna_kernels/%s.s' % NAME
    open(path, 'w').write(out)
    print('wrote', path, len(out))

if __name__ == '__main__':
    main()
```

```python
import sys
sys.path.insert(0, 'gen')
from asmgen import Gen

NAME = 'parallel_sum__gqa_block_cached__geglu_ffn__decode'

Q_OFF = 0
H_OFF = 8192
ML_OFF = 16384
O_OFF = 32768
P2_OFF = 0x110000
WS_BYTES = 268435456

L2E = 0x3fb8aa3b
SCALE = 0x3db504f3

sW, sX8, sJ, sKV, sU, sH, sB = 3, 4, 5, 6, 7, 8, 9
sT0, sT1, sT2, sT3 = 10, 11, 12, 13
SRD = dict(x=40, K=44, V=48, wq=52, wo=56, wg=60, wu=64, wd=68, out=72, dbg=76, ws=80)
PTR = dict(x=16, K=18, V=20, wq=22, wo=24, bx=26, wg=28, wu=30, wd=32, out=34, dbg=36, ws=38)
SIZE = dict(x=2048, K=67108864, V=67108864, wq=8388608, wo=8388608, wg=7340032, wu=7340032,
            wd=7340032, out=2048, dbg=256, ws=WS_BYTES)
sL2E, sSCALE, sHI = 84, 85, 86
sEX = 88
sM0 = 90

def srd(n): return 's[%d:%d]' % (SRD[n], SRD[n] + 3)
def vr(a, n): return 'v[%d:%d]' % (a, a + n - 1)

vLane, vL15, vG, vMask0, vMask1 = 1, 2, 3, 4, 5
vA0, vA1, vA2, vA3 = 6, 7, 8, 9
vT0, vT1, vT2, vT3, vT4, vT5 = 10, 11, 12, 13, 14, 15

def prologue(g, used):
    g.e('s_cmp_ge_u32 s2, 256')
    g.e('s_cbranch_scc1 %s' % g.endlabel)
    g.e('s_load_dwordx16 s[16:31], s[0:1], 0')
    g.e('s_load_dwordx8 s[32:39], s[0:1], 64')
    g.e('s_and_b32 s%d, s2, 7' % sX8)
    g.e('s_lshr_b32 s%d, s2, 3' % sJ)
    g.e('s_lshr_b32 s%d, s%d, 3' % (sKV, sJ))
    g.e('s_and_b32 s%d, s%d, 7' % (sB, sJ))
    g.e('s_lshl_b32 s%d, s%d, 3' % (sU, sX8))
    g.e('s_add_u32 s%d, s%d, s%d' % (sU, sU, sB))
    g.e('s_lshl_b32 s%d, s%d, 3' % (sH, sKV))
    g.e('s_add_u32 s%d, s%d, s%d' % (sH, sH, sX8))
    g.e('v_lshrrev_b32 v%d, 6, v0' % vT0)
    g.e('v_and_b32 v%d, 63, v0' % vLane)
    g.e('v_readfirstlane_b32 s%d, v%d' % (sW, vT0))
    g.e('v_and_b32 v%d, 15, v0' % vL15)
    g.e('v_lshrrev_b32 v%d, 4, v%d' % (vG, vLane))
    g.e('s_mov_b32 s%d, 0x%x' % (sL2E, L2E))
    g.e('s_mov_b32 s%d, 0x%x' % (sSCALE, SCALE))
    g.e('s_mov_b32 s%d, 0xffff0000' % sHI)
    g.e('s_waitcnt lgkmcnt(0)')
    for n in used:
        b = SRD[n]; p = PTR[n]
        g.e('s_mov_b32 s%d, s%d' % (b, p))
        g.e('s_and_b32 s%d, s%d, 0xffff' % (b + 1, p + 1))
        g.e('s_mov_b32 s%d, 0x%x' % (b + 2, SIZE[n]))
        g.e('s_mov_b32 s%d, 0x20000' % (b + 3))

STAMP = int(__import__('os').environ.get('STAMP', '0'))
STAMP_OFF = 0x200000
DBGT = int(__import__('os').environ.get('DBGT', '0'))
def stamp(g, idx):
    if not STAMP: return
    g.e('s_memrealtime s[92:93]')
    g.e('s_waitcnt lgkmcnt(0)')
    g.e('s_mov_b32 s%d, s92' % (94 + idx))
def stamp_store(g, kidx):
    if not STAMP: return
    stamp(g, 7)
    for i in range(8):
        g.e('v_mov_b32 v%d, s%d' % (16 + i, 94 + i))
    g.e('s_lshl_b32 s92, s2, 3')
    g.e('s_add_u32 s92, s92, s%d' % sW)
    g.e('s_lshl_b32 s92, s92, 5')
    g.e('s_add_u32 s92, s92, 0x%x' % (STAMP_OFF + kidx * 65536))
    g.e('v_mov_b32 v24, 0')
    g.e('s_mov_b64 exec, 1')
    g.e('buffer_store_dwordx4 v[16:19], v24, %s, s92 offen' % srd('ws'))
    g.e('buffer_store_dwordx4 v[20:23], v24, %s, s92 offen offset:16' % srd('ws'))

def make_masks(g):
    g.e('v_and_b32 v%d, 3, v%d' % (vT0, vLane))
    g.e('v_and_b32 v%d, 1, v%d' % (vT1, vLane))
    g.e('v_lshlrev_b32 v%d, 4, v%d' % (vT1, vT1))
    g.e('v_mov_b32 v%d, 0xffff' % vT2)
    g.e('v_lshlrev_b32 v%d, v%d, v%d' % (vT2, vT1, vT2))
    g.e('v_cmp_gt_u32 vcc, 2, v%d' % vT0)
    g.e('v_cndmask_b32 v%d, 0, v%d, vcc' % (vMask0, vT2))
    g.e('v_cndmask_b32 v%d, v%d, 0, vcc' % (vMask1, vT2))

def allreduce_rows(g, op, regs, tmp):
    for r in regs:
        g.e('v_mov_b32 v%d, v%d' % (tmp, r))
        g.e('v_permlane16_swap_b32 v%d, v%d' % (r, tmp))
        g.e('%s v%d, v%d, v%d' % (op, r, r, tmp))
        g.e('v_mov_b32 v%d, v%d' % (tmp, r))
        g.e('v_permlane32_swap_b32 v%d, v%d' % (r, tmp))
        g.e('%s v%d, v%d, v%d' % (op, r, r, tmp))

def allreduce_inrow(g, op, regs, rors):
    for ro in rors:
        for r in regs:
            g.e('%s_dpp v%d, v%d, v%d row_ror:%d row_mask:0xf bank_mask:0xf' % (op, r, r, r, ro))

def round_bf16(g, dst, src, tmp=None):
    g.e('v_cvt_pk_bf16_f32 v%d, v%d, v%d' % (dst, src, src))
    g.e('v_and_b32 v%d, s%d, v%d' % (dst, sHI, dst))

XN_LDS = 0
HP_LDS = 4096
def head(g):
    vX = 224
    vXF = 232
    vWQ = 16
    vWG = 192
    vWU = 208
    vACC = 32
    vXN = 56
    g.c('x loads')
    g.e('v_lshlrev_b32 v%d, 5, v%d' % (vA0, vLane))
    g.e('buffer_load_dwordx4 %s, v%d, %s, 0 offen' % (vr(vX, 4), vA0, srd('x')), 'x')
    g.e('buffer_load_dwordx4 %s, v%d, %s, 0 offen offset:16' % (vr(vX + 4, 4), vA0, srd('x')), 'x')
    g.c('wq loads: voff = (128w+4rho)*8192 + kv*2048 + u*32 + c*16')
    g.e('v_lshrrev_b32 v%d, 1, v%d' % (vT0, vLane))
    g.e('v_and_b32 v%d, 1, v%d' % (vT1, vLane))
    g.e('v_lshlrev_b32 v%d, 2, v%d' % (vT0, vT0))
    g.e('s_lshl_b32 s%d, s%d, 7' % (sT0, sW))
    g.e('v_add_u32 v%d, s%d, v%d' % (vT0, sT0, vT0))
    g.e('v_lshlrev_b32 v%d, 4, v%d' % (vT1, vT1))
    g.e('s_lshl_b32 s%d, s%d, 11' % (sT1, sKV))
    g.e('s_lshl_b32 s%d, s%d, 5' % (sT2, sU))
    g.e('s_add_u32 s%d, s%d, s%d' % (sT1, sT1, sT2))
    g.e('v_lshlrev_b32 v%d, 13, v%d' % (vA1, vT0))
    g.e('v_add3_u32 v%d, v%d, v%d, s%d' % (vA1, vA1, vT1, sT1))
    for i in range(4):
        g.e('s_mov_b32 s%d, %d' % (sT3, i * 8192))
        g.e('buffer_load_dwordx4 %s, v%d, %s, s%d offen' % (vr(vWQ + 4 * i, 4), vA1, srd('wq'), sT3), 'wq')
    g.c('gate/up loads: voff = row0*7168 + tau*32 + c*16 ; tau = 28*x8 + j (j<28) else OOB')
    g.e('s_mul_i32 s%d, s%d, 28' % (sT1, sX8))
    g.e('s_add_u32 s%d, s%d, s%d' % (sT1, sT1, sJ))
    g.e('s_lshl_b32 s%d, s%d, 5' % (sT1, sT1))
    g.e('s_cmp_ge_u32 s%d, 28' % sJ)
    g.e('s_cselect_b32 s%d, 0x40000000, s%d' % (sT1, sT1))
    g.e('s_mov_b32 s%d, 7168' % sT2)
    g.e('v_mul_lo_u32 v%d, v%d, s%d' % (vA2, vT0, sT2))
    g.e('v_add3_u32 v%d, v%d, v%d, s%d' % (vA2, vA2, vT1, sT1))
    for i in range(4):
        g.e('s_mov_b32 s%d, %d' % (sT3, i * 7168))
        g.e('buffer_load_dwordx4 %s, v%d, %s, s%d offen' % (vr(vWG + 4 * i, 4), vA2, srd('wg'), sT3), 'wg')
        g.e('buffer_load_dwordx4 %s, v%d, %s, s%d offen' % (vr(vWU + 4 * i, 4), vA2, srd('wu'), sT3), 'wu')
    g.e('s_mov_b32 s%d, s%d' % (14, sT1))
    g.c('xn read address')
    g.e('v_lshlrev_b32 v%d, 2, v%d' % (vA3, vT0))
    stamp(g, 1)
    g.c('---- layernorm')
    g.wait_vm('x')
    stamp(g, 2)
    for k in range(8):
        g.e('v_lshlrev_b32 v%d, 16, v%d' % (vXF + 2 * k, vX + k))
        g.e('v_and_b32 v%d, s%d, v%d' % (vXF + 2 * k + 1, sHI, vX + k))
    g.e('v_add_f32 v%d, v%d, v%d' % (vT2, vXF, vXF + 1))
    for k in range(2, 16):
        g.e('v_add_f32 v%d, v%d, v%d' % (vT2, vT2, vXF + k))
    allreduce_inrow(g, 'v_add_f32', [vT2], [8, 4, 2, 1])
    allreduce_rows(g, 'v_add_f32', [vT2], vT3)
    g.e('v_mul_f32 v%d, 0x3a800000, v%d' % (vT2, vT2))
    g.e('v_sub_f32 v%d, v%d, v%d' % (vT3, vXF, vT2))
    g.e('v_mul_f32 v%d, v%d, v%d' % (vT4, vT3, vT3))
    for k in range(1, 16):
        g.e('v_sub_f32 v%d, v%d, v%d' % (vT3, vXF + k, vT2))
        g.e('v_fmac_f32 v%d, v%d, v%d' % (vT4, vT3, vT3))
    allreduce_inrow(g, 'v_add_f32', [vT4], [8, 4, 2, 1])
    allreduce_rows(g, 'v_add_f32', [vT4], vT3)
    g.e('v_mul_f32 v%d, 0x3a800000, v%d' % (vT4, vT4))
    round_bf16(g, vT2, vT2)
    round_bf16(g, vT4, vT4)
    g.e('v_add_f32 v%d, 0x3727c5ac, v%d' % (vT4, vT4))
    round_bf16(g, vT4, vT4)
    g.e('v_sqrt_f32 v%d, v%d' % (vT4, vT4))
    round_bf16(g, vT4, vT4)
    g.e('v_rcp_f32 v%d, v%d' % (vT5, vT4))
    for k in range(0, 16, 2):
        a, b = vXF + k, vXF + k + 1
        g.e('v_sub_f32 v%d, v%d, v%d' % (a, a, vT2))
        g.e('v_sub_f32 v%d, v%d, v%d' % (b, b, vT2))
        g.e('v_cvt_pk_bf16_f32 v%d, v%d, v%d' % (vT3, a, b))
        g.e('v_lshlrev_b32 v%d, 16, v%d' % (a, vT3))
        g.e('v_and_b32 v%d, s%d, v%d' % (b, sHI, vT3))
        for r in (a, b):
            g.e('v_mul_f32 v%d, v%d, v%d' % (vT0, r, vT5))
            g.e('v_fma_f32 v%d, -v%d, v%d, v%d' % (vT1, vT0, vT4, r))
            g.e('v_fma_f32 v%d, v%d, v%d, v%d' % (r, vT1, vT5, vT0))
        g.e('v_cvt_pk_bf16_f32 v%d, v%d, v%d' % (vT3, a, b))
        g.e('v_lshlrev_b32 v%d, 16, v%d' % (a, vT3))
        g.e('v_and_b32 v%d, s%d, v%d' % (b, sHI, vT3))
    g.e('v_lshlrev_b32 v%d, 6, v%d' % (vT0, vLane))
    for k in range(4):
        g.e('ds_write_b128 v%d, %s offset:%d' % (vT0, vr(vXF + 4 * k, 4), XN_LDS + 16 * k))
    g.wait_lgkm(0)
    g.e('ds_read_b128 %s, v%d offset:%d' % (vr(vXN, 4), vA3, XN_LDS))
    g.wait_lgkm(0)
    stamp(g, 3)
    g.c('---- gemv FMAs')
    for s_i, (vW, tag) in enumerate(((vWQ, 'wq'), (vWG, 'wg'), (vWU, 'wu'))):
        if tag != 'wu':
            g.wait_vm('wq' if tag == 'wq' else 'wu')
        acc = vACC + 8 * s_i
        for i in range(4):
            for k in range(4):
                w = vW + 4 * i + k
                g.e('v_lshlrev_b32 v%d, 16, v%d' % (vT0, w))
                g.e('v_and_b32 v%d, s%d, v%d' % (vT1, sHI, w))
                if i == 0:
                    g.e('v_mul_f32 v%d, v%d, v%d' % (acc + 2 * k, vT0, vXN + i))
                    g.e('v_mul_f32 v%d, v%d, v%d' % (acc + 2 * k + 1, vT1, vXN + i))
                else:
                    g.e('v_fmac_f32 v%d, v%d, v%d' % (acc + 2 * k, vT0, vXN + i))
                    g.e('v_fmac_f32 v%d, v%d, v%d' % (acc + 2 * k + 1, vT1, vXN + i))
    stamp(g, 4)
    allreduce_inrow(g, 'v_add_f32', list(range(vACC, vACC + 24)), [8, 4, 2])
    g.c('write partials: addr = ((set*32 + 4w + row)*16 + 8c)*4')
    g.e('s_lshl_b32 s%d, s%d, 2' % (sT0, sW))
    g.e('v_add_u32 v%d, s%d, v%d' % (vT0, sT0, vG))
    g.e('v_lshlrev_b32 v%d, 6, v%d' % (vT0, vT0))
    g.e('v_and_b32 v%d, 1, v%d' % (vT1, vLane))
    g.e('v_lshl_add_u32 v%d, v%d, 5, v%d' % (vT0, vT1, vT0))
    g.e('v_cmp_gt_u32 vcc, 2, v%d' % vL15)
    g.e('s_and_saveexec_b64 s[%d:%d], vcc' % (sEX, sEX + 1))
    for s_i in range(3):
        for hf in range(2):
            g.e('ds_write_b128 v%d, %s offset:%d' % (vT0, vr(vACC + 8 * s_i + 4 * hf, 4), HP_LDS + s_i * 2048 + hf * 16))
    g.e('s_mov_b64 exec, s[%d:%d]' % (sEX, sEX + 1))
    g.wait_lgkm(0)
    stamp(g, 5)
    g.e('s_barrier')
    stamp(g, 6)
    g.e('s_cmp_lg_u32 s%d, 0' % sW)
    g.e('s_cbranch_scc1 %s' % g.endlabel2)
    g.c('---- wave 0: final reduce: lane(col=l&15, pg=l>>4)')
    g.e('v_lshlrev_b32 v%d, 9, v%d' % (vT0, vG))
    g.e('v_lshl_add_u32 v%d, v%d, 2, v%d' % (vT0, vL15, vT0))
    R = 64
    for s_i in range(3):
        for k in range(8):
            g.e('ds_read_b32 v%d, v%d offset:%d' % (R + s_i * 8 + k, vT0, HP_LDS + s_i * 2048 + k * 64))
    g.wait_lgkm(0)
    for s_i in range(3):
        b = R + s_i * 8
        for k in range(1, 8):
            g.e('v_add_f32 v%d, v%d, v%d' % (b, b, b + k))
    allreduce_rows(g, 'v_add_f32', [R, R + 8, R + 16], vT1)
    vq, vg_, vu = R, R + 8, R + 16
    g.e('v_cvt_pk_bf16_f32 v%d, v%d, v%d' % (vq, vq, vq))
    round_bf16(g, vg_, vg_)
    round_bf16(g, vu, vu)
    g.c('gelu(g) = g / (1 + exp(-2*beta*(g + kappa g^3)))')
    g.e('v_mul_f32 v%d, v%d, v%d' % (vT1, vg_, vg_))
    g.e('v_mul_f32 v%d, v%d, v%d' % (vT1, vT1, vg_))
    g.e('v_mul_f32 v%d, 0x3d372713, v%d' % (vT1, vT1))
    g.e('v_add_f32 v%d, v%d, v%d' % (vT1, vT1, vg_))
    g.e('v_mul_f32 v%d, 0x3f4c422a, v%d' % (vT1, vT1))
    g.e('v_mul_f32 v%d, 0xc038aa3b, v%d' % (vT1, vT1))
    g.e('v_exp_f32 v%d, v%d' % (vT1, vT1))
    g.e('v_add_f32 v%d, 1.0, v%d' % (vT1, vT1))
    g.e('v_rcp_f32 v%d, v%d' % (vT1, vT1))
    g.e('v_mul_f32 v%d, v%d, v%d' % (vT1, vT1, vg_))
    round_bf16(g, vT1, vT1)
    g.e('v_mul_f32 v%d, v%d, v%d' % (vT1, vT1, vu))
    g.e('v_cvt_pk_bf16_f32 v%d, v%d, v%d' % (vT1, vT1, vT1))
    g.c('stores (lanes 0..15)')
    g.e('s_lshl_b32 s%d, s%d, 11' % (sT1, sKV))
    g.e('s_lshl_b32 s%d, s%d, 5' % (sT2, sU))
    g.e('s_add_u32 s%d, s%d, s%d' % (sT1, sT1, sT2))
    g.e('v_lshlrev_b32 v%d, 1, v%d' % (vT2, vLane))
    g.e('v_add_u32 v%d, s%d, v%d' % (vT3, sT1, vT2))
    g.e('v_add_u32 v%d, s14, v%d' % (vT4, vT2))
    g.e('v_cmp_gt_u32 vcc, 16, v%d' % vLane)
    g.e('s_and_saveexec_b64 s[%d:%d], vcc' % (sEX, sEX + 1))
    g.e('buffer_store_short v%d, v%d, %s, 0 offen offset:%d' % (vq, vT3, srd('ws'), Q_OFF), 'st')
    g.e('s_mov_b32 s%d, %d' % (sT3, H_OFF))
    g.e('buffer_store_short v%d, v%d, %s, s%d offen' % (vT1, vT4, srd('ws'), sT3), 'st')
    g.e('s_mov_b64 exec, s[%d:%d]' % (sEX, sEX + 1))

OP_LDS = 0
HS = 576
WSTR = 8 * HS
ML_LDS = 8 * WSTR
vQ = 16
vS = 32
vK = 64
vV = 192
vB = 240
vM, vLs, vML = 248, 249, 250

import os
PAT = int(os.environ.get('PAT', '1'))
TSTRIDE = 4096 if PAT == 1 else 4096 * 512
def vtile_reg(T):
    return vV + 16 * T if T < 3 else vK + 16 * (T - 3)

def attn_addrs(g):
    g.c('K addr: kv<<24 + (1024u+128w+l15)*256 + g*16')
    g.e('s_lshl_b32 s%d, s%d, 24' % (sT0, sKV))
    g.e('s_lshl_b32 s%d, s%d, %d' % (sT1, sU, 18 if PAT == 1 else 15))
    g.e('s_add_u32 s%d, s%d, s%d' % (sT0, sT0, sT1))
    g.e('s_lshl_b32 s%d, s%d, %d' % (sT1, sW, 15 if PAT == 1 else 12))
    g.e('s_add_u32 s%d, s%d, s%d' % (sT0, sT0, sT1))
    g.e('v_lshlrev_b32 v%d, 8, v%d' % (vT0, vL15))
    g.e('v_lshl_add_u32 v%d, v%d, 4, v%d' % (vT0, vG, vT0))
    g.e('v_add_u32 v%d, s%d, v%d' % (vA0, sT0, vT0))
    g.e('v_lshlrev_b32 v%d, 10, v%d' % (vT0, vG))
    g.e('v_lshl_add_u32 v%d, v%d, 4, v%d' % (vT0, vL15, vT0))
    g.e('v_add_u32 v%d, s%d, v%d' % (vA1, sT0, vT0))

def load_ktile(g, T, nt=''):
    g.e('s_mov_b32 s%d, %d' % (sT3, T * TSTRIDE))
    for j in range(4):
        g.e('buffer_load_dwordx4 %s, v%d, %s, s%d offen offset:%d%s' % (vr(vK + 16 * T + 4 * j, 4), vA0, srd('K'), sT3, 64 * j, nt), 'K%d' % T)

def load_vtile(g, T, nt=''):
    g.e('s_mov_b32 s%d, %d' % (sT3, T * TSTRIDE))
    b = vtile_reg(T)
    for r in range(4):
        g.e('buffer_load_dwordx4 %s, v%d, %s, s%d offen offset:%d%s' % (vr(b + 4 * r, 4), vA1, srd('V'), sT3, 256 * r, nt), 'V%d' % T)

def load_q(g, flags=''):
    g.c('Q frag: Q_OFF + (kv*1024 + eta(n)*128 + 8g)*2 + 64j ; eta(n) = (n>>2) + 4*((n>>1)&1)')
    g.e('v_lshrrev_b32 v%d, 2, v%d' % (vT0, vL15))
    g.e('v_bfe_u32 v%d, v%d, 1, 1' % (vT1, vL15))
    g.e('v_lshl_add_u32 v%d, v%d, 2, v%d' % (vT0, vT1, vT0))
    g.e('v_lshlrev_b32 v%d, 8, v%d' % (vT1, vT0))
    g.e('v_lshl_add_u32 v%d, v%d, 4, v%d' % (vT1, vG, vT1))
    g.e('s_lshl_b32 s%d, s%d, 11' % (sT1, sKV))
    g.e('v_add_u32 v%d, s%d, v%d' % (vA2, sT1, vT1))
    for j in range(4):
        g.e('buffer_load_dwordx4 %s, v%d, %s, 0 offen offset:%d%s' % (vr(vQ + 4 * j, 4), vA2, srd('ws'), Q_OFF + 64 * j, flags), 'Q')

def qk_tile(g, T):
    s = vS + 4 * T
    for j in range(4):
        g.e('v_mfma_f32_16x16x32_bf16 %s, %s, %s, %s' % (vr(s, 4), vr(vK + 16 * T + 4 * j, 4), vr(vQ + 4 * j, 4), '0' if j == 0 else vr(s, 4)))

def score_tile(g, T):
    s = vS + 4 * T
    g.e('v_cvt_pk_bf16_f32 v%d, v%d, v%d' % (vT0, s, s + 1))
    g.e('v_cvt_pk_bf16_f32 v%d, v%d, v%d' % (vT1, s + 2, s + 3))
    g.e('v_lshlrev_b32 v%d, 16, v%d' % (s, vT0))
    g.e('v_and_b32 v%d, s%d, v%d' % (s + 1, sHI, vT0))
    g.e('v_lshlrev_b32 v%d, 16, v%d' % (s + 2, vT1))
    g.e('v_and_b32 v%d, s%d, v%d' % (s + 3, sHI, vT1))
    for k in range(4):
        g.e('v_mul_f32 v%d, s%d, v%d' % (s + k, sSCALE, s + k))
    g.e('v_cvt_pk_bf16_f32 v%d, v%d, v%d' % (vT0, s, s + 1))
    g.e('v_cvt_pk_bf16_f32 v%d, v%d, v%d' % (vT1, s + 2, s + 3))
    g.e('v_lshlrev_b32 v%d, 16, v%d' % (s, vT0))
    g.e('v_and_b32 v%d, s%d, v%d' % (s + 1, sHI, vT0))
    g.e('v_lshlrev_b32 v%d, 16, v%d' % (s + 2, vT1))
    g.e('v_and_b32 v%d, s%d, v%d' % (s + 3, sHI, vT1))
    if T == 0:
        g.e('v_max_f32 v%d, v%d, v%d' % (vM, s, s + 1))
    else:
        g.e('v_max3_f32 v%d, v%d, v%d, v%d' % (vM, vM, s, s + 1))
    g.e('v_max3_f32 v%d, v%d, v%d, v%d' % (vM, vM, s + 2, s + 3))

def softmax_all(g):
    allreduce_rows(g, 'v_max_f32', [vM], vT0)
    g.e('v_mul_f32 v%d, s%d, v%d' % (vML, sL2E, vM))
    for i in range(32):
        s = vS + i
        g.e('v_fma_f32 v%d, v%d, s%d, -v%d' % (s, s, sL2E, vML))
    for i in range(32):
        s = vS + i
        g.e('v_exp_f32 v%d, v%d' % (s, s))
    g.e('v_add_f32 v%d, v%d, v%d' % (vLs, vS, vS + 1))
    for i in range(2, 32):
        g.e('v_add_f32 v%d, v%d, v%d' % (vLs, vLs, vS + i))
    for i in range(32):
        s = vS + i
        g.e('v_cvt_pk_bf16_f32 v%d, v%d, v%d' % (s, s, s))
    allreduce_rows(g, 'v_add_f32', [vLs], vT0)

def pv_tile(g, T):
    vb = vtile_reg(T)
    for r in range(4):
        p = vS + 4 * T + r
        bb = vB + 4 * (r & 1)
        for u in range(2):
            q = 2 * u
            g.e('v_and_b32_dpp v%d, v%d, v%d quad_perm:[%d,%d,%d,%d] row_mask:0xf bank_mask:0xf' % (bb + 2 * u, p, vMask0, q, q, q, q))
            g.e('v_and_b32_dpp v%d, v%d, v%d quad_perm:[%d,%d,%d,%d] row_mask:0xf bank_mask:0xf' % (bb + 2 * u + 1, p, vMask1, q, q, q, q))
        for u in range(2):
            for a in range(2):
                acc = vQ + 4 * (2 * u + a)
                first = (T == 0 and r == 0)
                g.e('v_mfma_f32_16x16x16_bf16 %s, %s, %s, %s' % (vr(acc, 4), vr(vb + 4 * r + 2 * a, 2), vr(bb + 2 * u, 2), '0' if first else vr(acc, 4)))

def attn_combine(g, stflags=''):
    g.c('write O partials to LDS: w*WSTR + (4u+hq)*HS + ((2g+a)*4+e0)*16')
    g.e('v_lshrrev_b32 v%d, 2, v%d' % (vT0, vL15))
    g.e('v_and_b32 v%d, 3, v%d' % (vT1, vLane))
    g.e('s_mul_i32 s%d, s%d, %d' % (sT0, sW, WSTR))
    g.e('v_mul_u32_u24 v%d, %d, v%d' % (vT0, HS, vT0))
    g.e('v_lshlrev_b32 v%d, 7, v%d' % (vT2, vG))
    g.e('v_lshl_add_u32 v%d, v%d, 4, v%d' % (vT2, vT1, vT2))
    g.e('v_add3_u32 v%d, v%d, v%d, s%d' % (vT0, vT0, vT2, sT0))
    for u in range(2):
        for a in range(2):
            g.e('ds_write_b128 v%d, %s offset:%d' % (vT0, vr(vQ + 4 * (2 * u + a), 4), OP_LDS + u * 4 * HS + a * 64))
    g.c('m,l: lanes g==0 and (n&1)==0 -> ML_LDS + (w*8+eta)*8')
    g.e('v_lshrrev_b32 v%d, 2, v%d' % (vT0, vL15))
    g.e('v_bfe_u32 v%d, v%d, 1, 1' % (vT1, vL15))
    g.e('v_lshl_add_u32 v%d, v%d, 2, v%d' % (vT0, vT1, vT0))
    g.e('s_lshl_b32 s%d, s%d, 6' % (sT0, sW))
    g.e('v_lshlrev_b32 v%d, 3, v%d' % (vT0, vT0))
    g.e('v_add_u32 v%d, s%d, v%d' % (vT0, sT0, vT0))
    g.e('v_and_b32 v%d, 0x31, v%d' % (vT1, vLane))
    g.e('v_cmp_eq_u32 vcc, 0, v%d' % vT1)
    g.e('s_and_saveexec_b64 s[%d:%d], vcc' % (sEX, sEX + 1))
    g.e('ds_write_b64 v%d, %s offset:%d' % (vT0, vr(vM, 2), ML_LDS))
    g.e('s_mov_b64 exec, s[%d:%d]' % (sEX, sEX + 1))
    g.wait_lgkm(0)
    g.e('s_barrier')
    g.c('wave w combines head w')
    R = 64
    RM = 80
    g.e('s_mul_i32 s%d, s%d, %d' % (sT0, sW, HS))
    g.e('v_lshlrev_b32 v%d, 3, v%d' % (vT0, vLane))
    g.e('v_add_u32 v%d, s%d, v%d' % (vT0, sT0, vT0))
    g.e('s_lshl_b32 s%d, s%d, 3' % (sT1, sW))
    g.e('v_mov_b32 v%d, s%d' % (vT1, sT1))
    for w in range(8):
        g.e('ds_read_b64 %s, v%d offset:%d' % (vr(RM + 2 * w, 2), vT1, ML_LDS + w * 64))
    for w in range(8):
        g.e('ds_read_b64 %s, v%d offset:%d' % (vr(R + 2 * w, 2), vT0, OP_LDS + w * WSTR))
    g.wait_lgkm(8)
    g.e('v_max3_f32 v%d, v%d, v%d, v%d' % (vM, RM, RM + 2, RM + 4))
    g.e('v_max3_f32 v%d, v%d, v%d, v%d' % (vM, vM, RM + 6, RM + 8))
    g.e('v_max3_f32 v%d, v%d, v%d, v%d' % (vM, vM, RM + 10, RM + 12))
    g.e('v_max_f32 v%d, v%d, v%d' % (vM, vM, RM + 14))
    for w in range(8):
        g.e('v_sub_f32 v%d, v%d, v%d' % (RM + 2 * w, RM + 2 * w, vM))
    for w in range(8):
        g.e('v_mul_f32 v%d, s%d, v%d' % (RM + 2 * w, sL2E, RM + 2 * w))
    for w in range(8):
        g.e('v_exp_f32 v%d, v%d' % (RM + 2 * w, RM + 2 * w))
    g.e('v_mul_f32 v%d, v%d, v%d' % (vLs, RM, RM + 1))
    for w in range(1, 8):
        g.e('v_fmac_f32 v%d, v%d, v%d' % (vLs, RM + 2 * w, RM + 2 * w + 1))
    g.wait_lgkm(0)
    g.e('v_mul_f32 v%d, v%d, v%d' % (vT2, RM, R))
    g.e('v_mul_f32 v%d, v%d, v%d' % (vT3, RM, R + 1))
    for w in range(1, 8):
        g.e('v_fmac_f32 v%d, v%d, v%d' % (vT2, RM + 2 * w, R + 2 * w))
        g.e('v_fmac_f32 v%d, v%d, v%d' % (vT3, RM + 2 * w, R + 2 * w + 1))
    g.c('store: O_OFF + ((8kv+w)*64+u)*512 + 8l ; ML_OFF + ((8kv+w)*64+u)*8')
    g.e('s_lshl_b32 s%d, s%d, 3' % (sT0, sKV))
    g.e('s_add_u32 s%d, s%d, s%d' % (sT0, sT0, sW))
    g.e('s_lshl_b32 s%d, s%d, 6' % (sT0, sT0))
    g.e('s_add_u32 s%d, s%d, s%d' % (sT0, sT0, sU))
    g.e('s_lshl_b32 s%d, s%d, 9' % (sT1, sT0))
    g.e('s_add_u32 s%d, s%d, %d' % (sT1, sT1, O_OFF))
    g.e('s_lshl_b32 s%d, s%d, 3' % (sT2, sT0))
    g.e('s_add_u32 s%d, s%d, %d' % (sT2, sT2, ML_OFF))
    g.e('v_lshlrev_b32 v%d, 3, v%d' % (vT0, vLane))
    g.e('buffer_store_dwordx2 %s, v%d, %s, s%d offen%s' % (vr(vT2, 2), vT0, srd('ws'), sT1, stflags), 'st')
    g.e('v_cmp_eq_u32 vcc, 0, v%d' % vLane)
    g.e('s_and_saveexec_b64 s[%d:%d], vcc' % (sEX, sEX + 1))
    g.e('buffer_store_dwordx2 %s, v%d, %s, s%d offen%s' % (vr(vM, 2), vT0, srd('ws'), sT2, stflags), 'st')
    g.e('s_mov_b64 exec, s[%d:%d]' % (sEX, sEX + 1))

import os
NT = os.environ.get('NT', '')
def attn(g, nt=None):
    nt = NT
    make_masks(g)
    attn_addrs(g)
    load_q(g)
    for T in range(8): load_ktile(g, T, nt)
    for T in range(3): load_vtile(g, T, nt)
    stamp(g, 1)
    g.wait_vm('Q')
    stamp(g, 2)
    for T in range(8):
        g.wait_vm('K%d' % T)
        if T == 0: stamp(g, 3)
        qk_tile(g, T)
        if T > 0: score_tile(g, T - 1)
        if T < 5:
            load_vtile(g, T + 3, nt)
    stamp(g, 4)
    score_tile(g, 7)
    softmax_all(g)
    stamp(g, 5)
    for T in range(8):
        g.wait_vm('V%d' % T)
        pv_tile(g, T)
    stamp(g, 6)
    attn_combine(g)

RED_LDS = 0
OD_LDS = 4096
RED2_LDS = 8192
vWO = 144
vWD = 160
vHD = 176
vPO = 180
vPM = 196
vOD = 200
vAC = 208

def tail_wloads(g, nt=''):
    g.c('wo: row = 128h+16w+4jj+g ; voff = row*2048 + b*256 + c*16')
    g.e('s_lshl_b32 s%d, s%d, 7' % (sT0, sH))
    g.e('s_lshl_b32 s%d, s%d, 4' % (sT1, sW))
    g.e('s_add_u32 s%d, s%d, s%d' % (sT0, sT0, sT1))
    g.e('s_lshl_b32 s%d, s%d, 11' % (sT0, sT0))
    g.e('s_lshl_b32 s%d, s%d, 8' % (sT2, sB))
    g.e('s_add_u32 s%d, s%d, s%d' % (sT0, sT0, sT2))
    g.e('v_lshlrev_b32 v%d, 11, v%d' % (vT0, vG))
    g.e('v_lshl_add_u32 v%d, v%d, 4, v%d' % (vT0, vL15, vT0))
    g.e('v_add_u32 v%d, s%d, v%d' % (vA2, sT0, vT0))
    for jj in range(4):
        g.e('s_mov_b32 s%d, %d' % (sT3, jj * 8192))
        g.e('buffer_load_dwordx4 %s, v%d, %s, s%d offen%s' % (vr(vWO + 4 * jj, 4), vA2, srd('wo'), sT3, nt), 'wo')
    g.c('wd: row = 112h+16w+4jj+g (w<7)')
    g.e('s_mul_i32 s%d, s%d, 112' % (sT0, sH))
    g.e('s_add_u32 s%d, s%d, s%d' % (sT0, sT0, sT1))
    g.e('s_mov_b32 s15, s%d' % sT0)
    g.e('s_lshl_b32 s%d, s%d, 11' % (sT0, sT0))
    g.e('s_add_u32 s%d, s%d, s%d' % (sT0, sT0, sT2))
    g.e('s_cmp_eq_u32 s%d, 7' % sW)
    g.e('s_cselect_b32 s%d, 0x40000000, s%d' % (sT0, sT0))
    g.e('v_add_u32 v%d, s%d, v%d' % (vA3, sT0, vT0))
    for jj in range(4):
        g.e('s_mov_b32 s%d, %d' % (sT3, jj * 8192))
        g.e('buffer_load_dwordx4 %s, v%d, %s, s%d offen%s' % (vr(vWD + 4 * jj, 4), vA3, srd('wd'), sT3, nt), 'wd')

def tail_hload(g, flags=''):
    g.c('h gather: H_OFF + (112h+16w+g)*2 + 8jj')
    g.e('s_lshl_b32 s%d, s15, 1' % sT0)
    g.e('s_add_u32 s%d, s%d, %d' % (sT0, sT0, H_OFF))
    g.e('s_cmp_eq_u32 s%d, 7' % sW)
    g.e('s_cselect_b32 s%d, 0x40000000, s%d' % (sT0, sT0))
    g.e('v_lshlrev_b32 v%d, 1, v%d' % (vT0, vG))
    g.e('v_add_u32 v%d, s%d, v%d' % (vT0, sT0, vT0))
    for jj in range(4):
        g.e('buffer_load_ushort v%d, v%d, %s, 0 offen offset:%d%s' % (vHD + jj, vT0, srd('ws'), 8 * jj, flags), 'h')

def tail_pload(g, flags=''):
    g.c('ml: ML_OFF + (h*64+lane)*8 ; O: O_OFF + (h*64+8w+(l>>5))*512 + (l&31)*16 + i*1024')
    g.e('s_lshl_b32 s%d, s%d, 9' % (sT0, sH))
    g.e('s_add_u32 s%d, s%d, %d' % (sT0, sT0, ML_OFF))
    g.e('v_lshlrev_b32 v%d, 3, v%d' % (vT0, vLane))
    g.e('buffer_load_dwordx2 %s, v%d, %s, s%d offen%s' % (vr(vPM, 2), vT0, srd('ws'), sT0, flags), 'pm')
    g.e('s_lshl_b32 s%d, s%d, 15' % (sT0, sH))
    g.e('s_lshl_b32 s%d, s%d, 12' % (sT1, sW))
    g.e('s_add_u32 s%d, s%d, s%d' % (sT0, sT0, sT1))
    g.e('s_add_u32 s%d, s%d, %d' % (sT0, sT0, O_OFF))
    g.e('v_lshlrev_b32 v%d, 4, v%d' % (vT1, vLane))
    for i in range(4):
        g.e('buffer_load_dwordx4 %s, v%d, %s, s%d offen offset:%d%s' % (vr(vPO + 4 * i, 4), vT1, srd('ws'), sT0, 1024 * i, flags), 'po')

def tail1_compute(g, stflags=''):
    vWt = vT4; vLsum = vT5
    g.e('v_mov_b32 v%d, v%d' % (vT2, vPM))
    allreduce_inrow(g, 'v_max_f32', [vT2], [8, 4, 2, 1])
    allreduce_rows(g, 'v_max_f32', [vT2], vT3)
    g.e('v_sub_f32 v%d, v%d, v%d' % (vWt, vPM, vT2))
    g.e('v_mul_f32 v%d, s%d, v%d' % (vWt, sL2E, vWt))
    g.e('v_exp_f32 v%d, v%d' % (vWt, vWt))
    g.e('v_mul_f32 v%d, v%d, v%d' % (vLsum, vWt, vPM + 1))
    allreduce_inrow(g, 'v_add_f32', [vLsum], [8, 4, 2, 1])
    allreduce_rows(g, 'v_add_f32', [vLsum], vT3)
    g.c('weights for my splits: idx = (8w + 2i + (l>>5))*4')
    g.e('v_lshrrev_b32 v%d, 5, v%d' % (vT0, vLane))
    g.e('s_lshl_b32 s%d, s%d, 3' % (sT0, sW))
    g.e('v_add_lshl_u32 v%d, v%d, s%d, 2' % (vT0, vT0, sT0))
    W4 = vOD
    for i in range(4):
        if i: g.e('v_add_u32 v%d, 8, v%d' % (vT0, vT0))
        g.e('ds_bpermute_b32 v%d, v%d, v%d' % (W4 + i, vT0, vWt))
    g.wait_lgkm(0)
    g.wait_vm('po')
    stamp(g, 3)
    A = vAC
    for k in range(4):
        g.e('v_mul_f32 v%d, v%d, v%d' % (A + k, W4, vPO + k))
    for i in range(1, 4):
        for k in range(4):
            g.e('v_fmac_f32 v%d, v%d, v%d' % (A + k, W4 + i, vPO + 4 * i + k))
    for k in range(4):
        g.e('v_mov_b32 v%d, v%d' % (vT0, A + k))
        g.e('v_permlane32_swap_b32 v%d, v%d' % (A + k, vT0))
        g.e('v_add_f32 v%d, v%d, v%d' % (A + k, A + k, vT0))
    g.e('s_lshl_b32 s%d, s%d, 9' % (sT0, sW))
    g.e('v_lshlrev_b32 v%d, 4, v%d' % (vT0, vLane))
    g.e('v_add_u32 v%d, s%d, v%d' % (vT0, sT0, vT0))
    g.e('v_cmp_gt_u32 vcc, 32, v%d' % vLane)
    g.e('s_and_saveexec_b64 s[%d:%d], vcc' % (sEX, sEX + 1))
    g.e('ds_write_b128 v%d, %s offset:%d' % (vT0, vr(A, 4), RED_LDS))
    g.e('s_mov_b64 exec, s[%d:%d]' % (sEX, sEX + 1))
    g.wait_lgkm(0)
    g.e('s_barrier')
    lab = g.newlabel('t1skip')
    g.e('s_cmp_ge_u32 s%d, 2' % sW)
    g.e('s_cbranch_scc1 %s' % lab)
    g.c('threads 0..127: p = tid')
    g.e('v_lshlrev_b32 v%d, 2, v0' % vT0)
    for w in range(8):
        g.e('ds_read_b32 v%d, v%d offset:%d' % (A + w, vT0, RED_LDS + 512 * w))
    g.e('v_rcp_f32 v%d, v%d' % (vT1, vLsum))
    g.c('d = 32(p>>5) + 8(p&3) + 4((p>>4)&1) + ((p>>2)&3); pos = 16(d>>4) + 4(d&3) + ((d>>2)&3)')
    g.e('v_and_b32 v%d, 0x6c, v0' % vT2)
    g.e('v_bfe_u32 v%d, v0, 1, 1' % vT3)
    g.e('v_lshl_or_b32 v%d, v%d, 4, v%d' % (vT2, vT3, vT2))
    g.e('v_and_b32 v%d, 1, v0' % vT3)
    g.e('v_lshl_or_b32 v%d, v%d, 1, v%d' % (vT2, vT3, vT2))
    g.e('v_bfe_u32 v%d, v0, 4, 1' % vT3)
    g.e('v_or_b32 v%d, v%d, v%d' % (vT2, vT2, vT3))
    g.e('v_lshlrev_b32 v%d, 2, v%d' % (vT2, vT2))
    g.wait_lgkm(0)
    for w in range(1, 8):
        g.e('v_add_f32 v%d, v%d, v%d' % (A, A, A + w))
    g.e('v_mul_f32 v%d, v%d, v%d' % (vT0, A, vT1))
    g.e('v_fma_f32 v%d, -v%d, v%d, v%d' % (vT3, vT0, vLsum, A))
    g.e('v_fma_f32 v%d, v%d, v%d, v%d' % (vT0, vT3, vT1, vT0))
    g.e('v_cvt_pk_bf16_f32 v%d, v%d, v%d' % (vT0, vT0, vT0))
    g.e('ds_write_b32 v%d, v%d offset:%d' % (vT2, vT0, OD_LDS))
    g.wait_lgkm(0)
    g.label(lab)
    g.e('s_barrier')
    g.e('s_lshl_b32 s%d, s%d, 6' % (sT0, sW))
    g.e('v_lshlrev_b32 v%d, 4, v%d' % (vT0, vG))
    g.e('v_add_u32 v%d, s%d, v%d' % (vT0, sT0, vT0))
    g.e('ds_read_b128 %s, v%d offset:%d' % (vr(vOD, 4), vT0, OD_LDS))
    g.wait_vm('h')
    for jj in range(4):
        g.e('v_lshl_or_b32 v%d, v%d, 16, v%d' % (vHD + jj, vHD + jj, vHD + jj))
    g.wait_vm('wd')
    g.wait_lgkm(0)
    stamp(g, 4)
    for ab, (vec, W) in enumerate(((vOD, vWO), (vHD, vWD))):
        for jj in range(4):
            bb = vB + 2 * (jj & 1)
            g.e('v_and_b32 v%d, v%d, v%d' % (bb, vec + jj, vMask0))
            g.e('v_and_b32 v%d, v%d, v%d' % (bb + 1, vec + jj, vMask1))
            for a in range(2):
                acc = vAC + 8 * ab + 4 * a
                g.e('v_mfma_f32_16x16x16_bf16 %s, %s, %s, %s' % (vr(acc, 4), vr(W + 4 * jj + 2 * a, 2), vr(bb, 2), '0' if jj == 0 else vr(acc, 4)))
    g.c('write red2: (w*2+ab)*512 + ((2g+a)*4+e0)*16, lanes n<4')
    g.e('s_lshl_b32 s%d, s%d, 10' % (sT0, sW))
    g.e('v_lshlrev_b32 v%d, 7, v%d' % (vT0, vG))
    g.e('v_lshl_add_u32 v%d, v%d, 4, v%d' % (vT0, vL15, vT0))
    g.e('v_add_u32 v%d, s%d, v%d' % (vT0, sT0, vT0))
    g.e('v_cmp_gt_u32 vcc, 4, v%d' % vL15)
    g.e('s_and_saveexec_b64 s[%d:%d], vcc' % (sEX, sEX + 1))
    for ab in range(2):
        for a in range(2):
            g.e('ds_write_b128 v%d, %s offset:%d' % (vT0, vr(vAC + 8 * ab + 4 * a, 4), RED2_LDS + ab * 512 + a * 64))
    g.e('s_mov_b64 exec, s[%d:%d]' % (sEX, sEX + 1))
    g.wait_lgkm(0)
    g.e('s_barrier')
    lab2 = g.newlabel('t1skip2')
    g.e('s_cmp_ge_u32 s%d, 4' % sW)
    g.e('s_cbranch_scc1 %s' % lab2)
    g.c('threads 0..255: ab = t>>7, p = t&127')
    g.e('v_lshlrev_b32 v%d, 2, v0' % vT0)
    for w in range(8):
        g.e('ds_read_b32 v%d, v%d offset:%d' % (vPO + w, vT0, RED2_LDS + 1024 * w))
    g.e('v_and_b32 v%d, 0xe0, v0' % vT2)
    g.e('v_and_b32 v%d, 3, v0' % vT3)
    g.e('v_lshl_or_b32 v%d, v%d, 3, v%d' % (vT2, vT3, vT2))
    g.e('v_bfe_u32 v%d, v0, 4, 1' % vT3)
    g.e('v_lshl_or_b32 v%d, v%d, 2, v%d' % (vT2, vT3, vT2))
    g.e('v_bfe_u32 v%d, v0, 2, 2' % vT3)
    g.e('v_or_b32 v%d, v%d, v%d' % (vT2, vT2, vT3))
    g.e('v_lshlrev_b32 v%d, 2, v%d' % (vT2, vT2))
    g.e('s_lshl_b32 s%d, s%d, 5' % (sT0, sB))
    g.e('s_add_u32 s%d, s%d, s%d' % (sT0, sT0, sH))
    g.e('s_lshl_b32 s%d, s%d, 10' % (sT0, sT0))
    g.e('s_add_u32 s%d, s%d, 0x%x' % (sT0, sT0, P2_OFF))
    g.wait_lgkm(0)
    for w in range(1, 8):
        g.e('v_add_f32 v%d, v%d, v%d' % (vPO, vPO, vPO + w))
    g.e('buffer_store_dword v%d, v%d, %s, s%d offen%s' % (vPO, vT2, srd('ws'), sT0, stflags), 'st')
    g.label(lab2)

def tail1(g):
    make_masks(g)
    tail_pload(g)
    tail_wloads(g, NT)
    tail_hload(g)
    stamp(g, 1)
    g.wait_vm('pm')
    stamp(g, 2)
    tail1_compute(g)

def tail2_load(g, flags=''):
    g.c('lane(h2=l&31, ab=l>>5): P2_OFF + (((b*32+h2)*2+ab)*128 + 4h)*4')
    g.e('v_and_b32 v%d, 31, v%d' % (vT0, vLane))
    g.e('v_lshrrev_b32 v%d, 5, v%d' % (vT1, vLane))
    g.e('v_lshlrev_b32 v%d, 10, v%d' % (vT0, vT0))
    g.e('v_lshl_add_u32 v%d, v%d, 9, v%d' % (vA0, vT1, vT0))
    g.e('s_lshl_b32 s%d, s%d, 15' % (sT0, sB))
    g.e('s_lshl_b32 s%d, s%d, 4' % (sT1, sH))
    g.e('s_add_u32 s%d, s%d, s%d' % (sT0, sT0, sT1))
    g.e('s_add_u32 s%d, s%d, 0x%x' % (sT0, sT0, P2_OFF))
    g.e('buffer_load_dwordx4 %s, v%d, %s, s%d offen%s' % (vr(64, 4), vA0, srd('ws'), sT0, flags), 'p2')

def tail2_xload(g):
    g.e('s_lshl_b32 s%d, s%d, 8' % (sT1, sB))
    g.e('s_lshl_b32 s%d, s%d, 3' % (sT2, sH))
    g.e('s_add_u32 s%d, s%d, s%d' % (sT1, sT1, sT2))
    g.e('v_mov_b32 v%d, s%d' % (vA1, sT1))
    g.e('buffer_load_dwordx2 %s, v%d, %s, 0 offen' % (vr(72, 2), vA1, srd('x')), 'x2')

def tail2_compute(g):
    R = 64
    regs = [R, R + 1, R + 2, R + 3]
    allreduce_inrow(g, 'v_add_f32', regs, [8, 4, 2, 1])
    for r in regs:
        g.e('v_mov_b32 v%d, v%d' % (vT0, r))
        g.e('v_permlane16_swap_b32 v%d, v%d' % (r, vT0))
        g.e('v_add_f32 v%d, v%d, v%d' % (r, r, vT0))
    for k, r in enumerate(regs):
        g.e('v_mov_b32 v%d, v%d' % (R + 4 + k, r))
        g.e('v_permlane32_swap_b32 v%d, v%d' % (r, R + 4 + k))
    g.wait_vm('x2')
    X = 76
    g.e('v_lshlrev_b32 v%d, 16, v72' % X)
    g.e('v_and_b32 v%d, s%d, v72' % (X + 1, sHI))
    g.e('v_lshlrev_b32 v%d, 16, v73' % (X + 2))
    g.e('v_and_b32 v%d, s%d, v73' % (X + 3, sHI))
    for k in range(4):
        round_bf16(g, R + k, R + k)
        round_bf16(g, R + 4 + k, R + 4 + k)
        g.e('v_add_f32 v%d, v%d, v%d' % (R + k, R + k, X + k))
        round_bf16(g, R + k, R + k)
        g.e('v_add_f32 v%d, v%d, v%d' % (R + k, R + k, R + 4 + k))
    g.e('v_cvt_pk_bf16_f32 v%d, v%d, v%d' % (X, R, R + 1))
    g.e('v_cvt_pk_bf16_f32 v%d, v%d, v%d' % (X + 1, R + 2, R + 3))
    g.e('v_cmp_eq_u32 vcc, 0, v%d' % vLane)
    g.e('s_and_saveexec_b64 s[%d:%d], vcc' % (sEX, sEX + 1))
    g.e('buffer_store_dwordx2 %s, v%d, %s, 0 offen' % (vr(X, 2), vA1, srd('out')), 'st')
    g.e('s_mov_b64 exec, s[%d:%d]' % (sEX, sEX + 1))

def tail2(g):
    tail2_load(g)
    tail2_xload(g)
    stamp(g, 1)
    g.wait_vm('p2')
    stamp(g, 2)
    tail2_compute(g)

_lab = [0]
def kernel(name, body, used, kidx=0, nvgpr=256):
    g = Gen()
    g.endlabel = 'L_end_' + name
    g.endlabel2 = 'L_end2_' + name
    def newlabel(p):
        _lab[0] += 1
        return 'L_%s_%d' % (p, _lab[0])
    g.newlabel = newlabel
    g.raw('.globl %s' % name)
    g.raw('.p2align 8')
    g.raw('.type %s,@function' % name)
    g.raw('%s:' % name)
    if STAMP or DBGT:
        for i in range(8): g.e('s_mov_b32 s%d, 0' % (94 + i))
        g.e('s_memrealtime s[92:93]')
    prologue(g, used)
    if STAMP or DBGT: g.e('s_mov_b32 s94, s92')
    body(g)
    g.label(g.endlabel2)
    if DBGT:
        g.e('s_cmp_lg_u32 s%d, 0' % sW)
        g.e('s_cbranch_scc1 %s' % g.endlabel)
        g.e('s_memrealtime s[92:93]')
        g.e('s_waitcnt lgkmcnt(0)')
        g.e('v_mov_b32 v16, s92')
        g.e('s_sub_u32 s94, 0, s94')
        g.e('v_mov_b32 v17, s94')
        g.e('v_mov_b32 v18, 16')
        g.e('s_mov_b64 exec, 1')
        g.e('buffer_atomic_umax v16, v18, %s, 0 offen sc1' % srd('dbg'))
        g.e('buffer_atomic_umax v17, v18, %s, 0 offen offset:4 sc1' % srd('dbg'))
    stamp_store(g, kidx)
    g.label(g.endlabel)
    g.e('s_endpgm')
    kd = '''.amdhsa_kernel %s
  .amdhsa_next_free_vgpr %d
  .amdhsa_next_free_sgpr 102
  .amdhsa_accum_offset %d
  .amdhsa_group_segment_fixed_size 0
  .amdhsa_kernarg_size 96
  .amdhsa_user_sgpr_count 2
  .amdhsa_user_sgpr_kernarg_segment_ptr 1
  .amdhsa_system_sgpr_workgroup_id_x 1
  .amdhsa_float_denorm_mode_32 3
  .amdhsa_float_denorm_mode_16_64 3
.end_amdhsa_kernel
''' % (name, nvgpr, nvgpr)
    return g.text(), kd

HEADER = open('cdna_kernels/%s.s.ref' % NAME).read().split('; Override launch')[0]

def main():
    ks = [
        ('head_kernel', head, ['x', 'wq', 'wg', 'wu', 'ws'], 512, 12288),
        ('attn_kernel', attn, ['K', 'V', 'ws'], 512, 40960),
        ('tail1_kernel', tail1, ['wo', 'wd', 'ws'], 512, 20480),
        ('tail2_kernel', tail2, ['x', 'out', 'ws'], 64, 0),
    ]
    out = HEADER
    for n, _, _, blk, lds in ks:
        out += '; @launch kernel=%s grid=(256,1,1) block=(%d,1,1) lds=%d\n' % (n, blk, lds)
    out += '.amdgcn_target "amdgcn-amd-amdhsa--gfx950"\n.text\n'
    kds = ''
    for kidx, (n, body, used, blk, lds) in enumerate(ks):
        t, kd = kernel(n, body, used, kidx)
        out += t
        kds += '.p2align 6\n' + kd
    out += '.section .rodata,"a"\n' + kds
    path = sys.argv[1] if len(sys.argv) > 1 else 'cdna_kernels/%s.s' % NAME
    open(path, 'w').write(out)
    print('wrote', path, len(out))

if __name__ == '__main__':
    main()
```

```python
import sys, os
sys.path.insert(0, 'gen')
import gen1, gen2
from gen1 import *
from gen2 import *

NPRE = int(os.environ.get('NPRE', '2'))

def ln_part(g, vX, vXF):
    for k in range(8):
        g.e('v_lshlrev_b32 v%d, 16, v%d' % (vXF + 2 * k, vX + k))
        g.e('v_and_b32 v%d, s%d, v%d' % (vXF + 2 * k + 1, sHI, vX + k))
    g.e('v_add_f32 v%d, v%d, v%d' % (vT2, vXF, vXF + 1))
    for k in range(2, 16):
        g.e('v_add_f32 v%d, v%d, v%d' % (vT2, vT2, vXF + k))
    allreduce_inrow(g, 'v_add_f32', [vT2], [8, 4, 2, 1])
    allreduce_rows(g, 'v_add_f32', [vT2], vT3)
    g.e('v_mul_f32 v%d, 0x3a800000, v%d' % (vT2, vT2))
    g.e('v_sub_f32 v%d, v%d, v%d' % (vT3, vXF, vT2))
    g.e('v_mul_f32 v%d, v%d, v%d' % (vT4, vT3, vT3))
    for k in range(1, 16):
        g.e('v_sub_f32 v%d, v%d, v%d' % (vT3, vXF + k, vT2))
        g.e('v_fmac_f32 v%d, v%d, v%d' % (vT4, vT3, vT3))
    allreduce_inrow(g, 'v_add_f32', [vT4], [8, 4, 2, 1])
    allreduce_rows(g, 'v_add_f32', [vT4], vT3)
    g.e('v_mul_f32 v%d, 0x3a800000, v%d' % (vT4, vT4))
    round_bf16(g, vT2, vT2)
    round_bf16(g, vT4, vT4)
    g.e('v_add_f32 v%d, 0x3727c5ac, v%d' % (vT4, vT4))
    round_bf16(g, vT4, vT4)
    g.e('v_sqrt_f32 v%d, v%d' % (vT4, vT4))
    round_bf16(g, vT4, vT4)
    g.e('v_rcp_f32 v%d, v%d' % (vT5, vT4))
    for k in range(0, 16, 2):
        a, b = vXF + k, vXF + k + 1
        g.e('v_sub_f32 v%d, v%d, v%d' % (a, a, vT2))
        g.e('v_sub_f32 v%d, v%d, v%d' % (b, b, vT2))
        g.e('v_cvt_pk_bf16_f32 v%d, v%d, v%d' % (vT3, a, b))
        g.e('v_lshlrev_b32 v%d, 16, v%d' % (a, vT3))
        g.e('v_and_b32 v%d, s%d, v%d' % (b, sHI, vT3))
        for r in (a, b):
            g.e('v_mul_f32 v%d, v%d, v%d' % (vT0, r, vT5))
            g.e('v_fma_f32 v%d, -v%d, v%d, v%d' % (vT1, vT0, vT4, r))
            g.e('v_fma_f32 v%d, v%d, v%d, v%d' % (r, vT1, vT5, vT0))
        g.e('v_cvt_pk_bf16_f32 v%d, v%d, v%d' % (vT3, a, b))
        g.e('v_lshlrev_b32 v%d, 16, v%d' % (a, vT3))
        g.e('v_and_b32 v%d, s%d, v%d' % (b, sHI, vT3))

def head4(g):
    vX = 224; vXF = 232; vWQ = 16; vWG = 192; vWU = 208; vACC = 32; vXN = 56
    g.e('s_lshr_b32 s%d, s%d, 2' % (sCBL, sU))
    g.e('s_and_b32 s%d, s%d, 3' % (sKQ, sU))
    g.e('v_lshlrev_b32 v%d, 5, v%d' % (vA0, vLane))
    g.e('buffer_load_dwordx4 %s, v%d, %s, 0 offen' % (vr(vX, 4), vA0, srd('x')), 'x')
    g.e('buffer_load_dwordx4 %s, v%d, %s, 0 offen offset:16' % (vr(vX + 4, 4), vA0, srd('x')), 'x')
    g.e('v_lshrrev_b32 v%d, 3, v%d' % (vT0, vLane))
    g.e('v_and_b32 v%d, 7, v%d' % (vT1, vLane))
    g.e('v_lshlrev_b32 v%d, 2, v%d' % (vT0, vT0))
    g.e('s_lshl_b32 s%d, s%d, 8' % (sT0, sKQ))
    g.e('s_lshl_b32 s%d, s%d, 5' % (sT1, sW))
    g.e('s_add_u32 s%d, s%d, s%d' % (sT0, sT0, sT1))
    g.e('v_add_u32 v%d, s%d, v%d' % (vT0, sT0, vT0))
    g.e('v_lshlrev_b32 v%d, 4, v%d' % (vT1, vT1))
    g.e('s_lshl_b32 s%d, s%d, 11' % (sT1, sKV))
    g.e('s_lshl_b32 s%d, s%d, 7' % (sT2, sCBL))
    g.e('s_add_u32 s%d, s%d, s%d' % (sT1, sT1, sT2))
    g.e('v_lshlrev_b32 v%d, 13, v%d' % (vA1, vT0))
    g.e('v_add3_u32 v%d, v%d, v%d, s%d' % (vA1, vA1, vT1, sT1))
    for i in range(4):
        g.e('s_mov_b32 s%d, %d' % (sT3, i * 8192))
        g.e('buffer_load_dwordx4 %s, v%d, %s, s%d offen%s' % (vr(vWQ + 4 * i, 4), vA1, srd('wq'), sT3, NT), 'wq')
    g.e('s_cmp_ge_u32 s%d, %d' % (sT1, 56 * 128))
    g.e('s_cselect_b32 s%d, 0x40000000, s%d' % (sT1, sT1))
    g.e('s_mov_b32 s%d, 7168' % sT2)
    g.e('v_mul_lo_u32 v%d, v%d, s%d' % (vA2, vT0, sT2))
    g.e('v_add3_u32 v%d, v%d, v%d, s%d' % (vA2, vA2, vT1, sT1))
    for i in range(4):
        g.e('s_mov_b32 s%d, %d' % (sT3, i * 7168))
        g.e('buffer_load_dwordx4 %s, v%d, %s, s%d offen%s' % (vr(vWG + 4 * i, 4), vA2, srd('wg'), sT3, NT), 'wg')
        g.e('buffer_load_dwordx4 %s, v%d, %s, s%d offen%s' % (vr(vWU + 4 * i, 4), vA2, srd('wu'), sT3, NT), 'wu')
    g.e('v_lshlrev_b32 v%d, 2, v%d' % (vA3, vT0))
    g.e('v_add_u32 v%d, %d, v%d' % (vA3, L_XN, vA3))
    clears(g)
    g.c('---- layernorm')
    g.wait_vm('x')
    ln_part(g, vX, vXF)
    g.e('v_lshlrev_b32 v%d, 6, v%d' % (vT0, vLane))
    for k in range(4):
        g.e('ds_write_b128 v%d, %s offset:%d' % (vT0, vr(vXF + 4 * k, 4), L_XN + 16 * k))
    g.wait_lgkm(0)
    g.e('ds_read_b128 %s, v%d' % (vr(vXN, 4), vA3))
    attn_addrs(g)
    make_masks(g)
    g.wait_lgkm(0)
    stamp(g, 1)
    for s_i, (vW, tag) in enumerate(((vWQ, 'wq'), (vWG, 'wg'), (vWU, 'wu'))):
        if tag == 'wq': g.wait_vm('wq')
        if tag == 'wg': g.wait_vm0()
        acc = vACC + 8 * s_i
        for i in range(4):
            for k in range(4):
                w = vW + 4 * i + k
                g.e('v_lshlrev_b32 v%d, 16, v%d' % (vT0, w))
                g.e('v_and_b32 v%d, s%d, v%d' % (vT1, sHI, w))
                if i == 0:
                    g.e('v_mul_f32 v%d, v%d, v%d' % (acc + 2 * k, vT0, vXN + i))
                    g.e('v_mul_f32 v%d, v%d, v%d' % (acc + 2 * k + 1, vT1, vXN + i))
                else:
                    g.e('v_fmac_f32 v%d, v%d, v%d' % (acc + 2 * k, vT0, vXN + i))
                    g.e('v_fmac_f32 v%d, v%d, v%d' % (acc + 2 * k + 1, vT1, vXN + i))
    allreduce_inrow(g, 'v_add_f32', list(range(vACC, vACC + 24)), [8])
    g.e('s_lshl_b32 s%d, s%d, 2' % (sT0, sW))
    g.e('v_add_u32 v%d, s%d, v%d' % (vT0, sT0, vG))
    g.e('v_lshlrev_b32 v%d, 8, v%d' % (vT0, vT0))
    g.e('v_and_b32 v%d, 7, v%d' % (vT1, vLane))
    g.e('v_lshl_add_u32 v%d, v%d, 5, v%d' % (vT0, vT1, vT0))
    g.e('v_cmp_gt_u32 vcc, 8, v%d' % vL15)
    g.e('s_and_saveexec_b64 s[%d:%d], vcc' % (sEX, sEX + 1))
    for s_i in range(3):
        for hf in range(2):
            g.e('ds_write_b128 v%d, %s offset:%d' % (vT0, vr(vACC + 8 * s_i + 4 * hf, 4), L_HP + s_i * 8192 + hf * 16))
    g.e('s_mov_b64 exec, s[%d:%d]' % (sEX, sEX + 1))
    lw0 = g.newlabel('w0path'); ljoin = g.newlabel('join')
    g.e('s_cmp_eq_u32 s%d, 0' % sW)
    g.e('s_cbranch_scc1 %s' % lw0)
    g.c('==== waves 1..7')
    for T in range(NPRE): load_ktile(g, T, NT)
    g.wait_lgkm(0)
    g.e('s_barrier')
    stamp(g, 2)
    for T in range(NPRE, 8): load_ktile(g, T, NT)
    g.e('s_barrier')
    g.e('s_branch %s' % ljoin)
    g.label(lw0)
    g.c('==== wave 0')
    g.wait_lgkm(0)
    g.e('s_barrier')
    stamp(g, 2)
    g.e('v_lshlrev_b32 v%d, 11, v%d' % (vT0, vG))
    g.e('v_lshl_add_u32 v%d, v%d, 4, v%d' % (vT0, vL15, vT0))
    R = 64
    for s_i in range(3):
        for k in range(8):
            g.e('ds_read_b128 %s, v%d offset:%d' % (vr(R + s_i * 32 + 4 * k, 4), vT0, L_HP + s_i * 8192 + k * 256))
    g.e('s_lshl_b32 s%d, s%d, 4' % (sT0, sKV))
    g.e('s_add_u32 s%d, s%d, s%d' % (sT0, sT0, sCBL))
    g.e('s_lshl_b32 s%d, s%d, 8' % (sT1, sT0))
    g.e('s_lshl_b32 s%d, s%d, 14' % (sT2, sKQ))
    g.e('s_add_u32 s%d, s%d, s%d' % (sT2, sT2, sT1))
    g.e('s_mul_i32 s%d, s%d, %d' % (sT3, sKQ, 3584 * 4))
    g.e('s_add_u32 s%d, s%d, s%d' % (sT3, sT3, sT1))
    g.e('s_add_u32 s%d, s%d, 0x%x' % (sT3, sT3, GP_OFF))
    g.e('s_cmp_ge_u32 s%d, 56' % sT0)
    g.e('s_cselect_b32 s%d, 0x40000000, s%d' % (sT3, sT3))
    g.e('s_add_u32 s%d, s%d, 0x%x' % (sT1, sT3, UP_OFF - GP_OFF))
    g.e('v_lshlrev_b32 v%d, 4, v%d' % (vT2, vLane))
    for s_i, so in enumerate((sT2, sT3, sT1)):
        g.wait_lgkm(8 if s_i < 2 else 0)
        b = R + s_i * 32
        for k in range(1, 8):
            for e in range(4):
                g.e('v_add_f32 v%d, v%d, v%d' % (b + e, b + e, b + 4 * k + e))
        allreduce_rows(g, 'v_add_f32', [b + e for e in range(4)], vT1)
        g.e('s_mov_b64 exec, 0xffff')
        g.e('buffer_store_dwordx4 %s, v%d, %s, s%d offen sc1' % (vr(b, 4), vT2, srd('ws'), so), 'st')
        g.e('s_mov_b64 exec, -1')
    g.e('s_lshl_b32 s%d, s%d, 6' % (sT0, sKV))
    g.e('v_mov_b32 v%d, s%d' % (vT2, sT0))
    g.e('v_mov_b32 v%d, 1' % vT3)
    g.e('v_and_b32 v%d, 3, v%d' % (vA2, vLane))
    g.e('v_lshlrev_b32 v%d, 6, v%d' % (vA2, vA2))
    g.e('s_waitcnt vmcnt(0)')
    g.e('s_mov_b64 exec, 1')
    g.e('buffer_atomic_add v%d, v%d, %s, 0 offen sc1' % (vT3, vT2, srd('dbg')), 'st')
    g.e('s_mov_b64 exec, -1')
    stamp(g, 3)
    lok = g.newlabel('pollok'); lloop = g.newlabel('pollloop')
    g.e('s_mov_b32 s%d, 0' % sCNT)
    g.label(lloop)
    g.e('buffer_load_dword v%d, v%d, %s, 0 offen sc1' % (vT5, vA2, srd('dbg')), 'poll')
    g.e('s_waitcnt vmcnt(0)')
    g.e('v_cmp_gt_u32 vcc, 64, v%d' % vT5)
    g.e('s_cmp_eq_u64 vcc, 0')
    g.e('s_cbranch_scc1 %s' % lok)
    g.e('s_sleep 1')
    spin_tail(g, lloop, lok)
    g.label(lok)
    stamp(g, 4)
    g.c('gather q: lane handles 16 cols: QP + (kq*4096 + 1024kv + 16l)*4 ; 4 x dwordx4 per kq')
    g.e('s_lshl_b32 s%d, s%d, 12' % (sT0, sKV))
    g.e('v_lshlrev_b32 v%d, 6, v%d' % (vT0, vLane))
    g.e('v_add_u32 v%d, s%d, v%d' % (vT0, sT0, vT0))
    for kq in range(4):
        g.e('s_mov_b32 s%d, %d' % (sT3, QP_OFF + kq * 16384))
        for i in range(4):
            g.e('buffer_load_dwordx4 %s, v%d, %s, s%d offen offset:%d sc1' % (vr(R + 16 * kq + 4 * i, 4), vT0, srd('ws'), sT3, 16 * i), 'qg')
    g.e('s_waitcnt vmcnt(0)')
    for e in range(16):
        g.e('v_add_f32 v%d, v%d, v%d' % (R + e, R + e, R + 16 + e))
        g.e('v_add_f32 v%d, v%d, v%d' % (R + 32 + e, R + 32 + e, R + 48 + e))
    for e in range(16):
        g.e('v_add_f32 v%d, v%d, v%d' % (R + e, R + e, R + 32 + e))
    for e in range(8):
        g.e('v_cvt_pk_bf16_f32 v%d, v%d, v%d' % (R + 16 + e, R + 2 * e, R + 2 * e + 1))
    g.e('v_lshlrev_b32 v%d, 5, v%d' % (vT0, vLane))
    g.e('ds_write_b128 v%d, %s offset:%d' % (vT0, vr(R + 16, 4), L_QL))
    g.e('ds_write_b128 v%d, %s offset:%d' % (vT0, vr(R + 20, 4), L_QL + 16))
    g.wait_lgkm(0)
    g.e('s_barrier')
    for T in range(8): load_ktile(g, T, NT)
    g.label(ljoin)

def after_join(g):
    Hh = 40
    g.c('h gather (wave 7 only; OOB otherwise)')
    g.e('s_mul_i32 s%d, s%d, 448' % (sT0, sH))
    g.e('s_cmp_lg_u32 s%d, 7' % sW)
    g.e('s_cselect_b32 s%d, 0x40000000, s%d' % (sT0, sT0))
    g.e('v_lshlrev_b32 v%d, 3, v%d' % (vT1, vLane))
    g.e('v_add_u32 v%d, s%d, v%d' % (vT1, sT0, vT1))
    Hh = 48
    for kq in range(4):
        g.e('s_mov_b32 s%d, %d' % (sT3, GP_OFF + kq * 3584 * 4))
        g.e('buffer_load_dwordx2 %s, v%d, %s, s%d offen sc1' % (vr(Hh + 2 * kq, 2), vT1, srd('ws'), sT3), 'hg')
        g.e('s_mov_b32 s%d, %d' % (sT3, UP_OFF + kq * 3584 * 4))
        g.e('buffer_load_dwordx2 %s, v%d, %s, s%d offen sc1' % (vr(Hh + 8 + 2 * kq, 2), vT1, srd('ws'), sT3), 'hg')
    g.e('v_lshrrev_b32 v%d, 2, v%d' % (vT0, vL15))
    g.e('v_bfe_u32 v%d, v%d, 1, 1' % (vT1, vL15))
    g.e('v_lshl_add_u32 v%d, v%d, 2, v%d' % (vT0, vT1, vT0))
    g.e('v_lshlrev_b32 v%d, 8, v%d' % (vT1, vT0))
    g.e('v_lshl_add_u32 v%d, v%d, 4, v%d' % (vT1, vG, vT1))
    for j in range(4):
        g.e('ds_read_b128 %s, v%d offset:%d' % (vr(vQ + 4 * j, 4), vT1, L_QL + 64 * j))
    load_vtile(g, 0, NT)
    load_vtile(g, 1, NT)
    lsk = g.newlabel('nohg')
    g.e('s_cmp_lg_u32 s%d, 7' % sW)
    g.e('s_cbranch_scc1 %s' % lsk)
    g.wait_vm('hg')
    for e in range(2):
        gg = Hh + e; uu = Hh + 8 + e
        g.e('v_add_f32 v%d, v%d, v%d' % (gg, gg, gg + 2))
        g.e('v_add_f32 v%d, v%d, v%d' % (gg + 4, gg + 4, gg + 6))
        g.e('v_add_f32 v%d, v%d, v%d' % (gg, gg, gg + 4))
        g.e('v_add_f32 v%d, v%d, v%d' % (uu, uu, uu + 2))
        g.e('v_add_f32 v%d, v%d, v%d' % (uu + 4, uu + 4, uu + 6))
        g.e('v_add_f32 v%d, v%d, v%d' % (uu, uu, uu + 4))
        round_bf16(g, gg, gg)
        round_bf16(g, uu, uu)
        g.e('v_mul_f32 v%d, v%d, v%d' % (vT2, gg, gg))
        g.e('v_mul_f32 v%d, v%d, v%d' % (vT2, vT2, gg))
        g.e('v_mul_f32 v%d, 0x3d372713, v%d' % (vT2, vT2))
        g.e('v_add_f32 v%d, v%d, v%d' % (vT2, vT2, gg))
        g.e('v_mul_f32 v%d, 0x3f4c422a, v%d' % (vT2, vT2))
        g.e('v_mul_f32 v%d, 0xc038aa3b, v%d' % (vT2, vT2))
        g.e('v_exp_f32 v%d, v%d' % (vT2, vT2))
        g.e('v_add_f32 v%d, 1.0, v%d' % (vT2, vT2))
        g.e('v_rcp_f32 v%d, v%d' % (vT2, vT2))
        g.e('v_mul_f32 v%d, v%d, v%d' % (vT2, vT2, gg))
        round_bf16(g, vT2, vT2)
        g.e('v_mul_f32 v%d, v%d, v%d' % (vT2, vT2, uu))
        g.e('v_cvt_pk_bf16_f32 v%d, v%d, v%d' % (gg, vT2, vT2))
    for e in range(2):
        g.e('v_lshlrev_b32 v%d, 1, v%d' % (vT2, vLane))
        if e: g.e('v_or_b32 v%d, 1, v%d' % (vT2, vT2))
        g.e('v_and_b32 v%d, 0x70, v%d' % (vT3, vT2))
        g.e('v_and_b32 v%d, 3, v%d' % (vT4, vT2))
        g.e('v_lshl_or_b32 v%d, v%d, 2, v%d' % (vT3, vT4, vT3))
        g.e('v_bfe_u32 v%d, v%d, 2, 2' % (vT4, vT2))
        g.e('v_or_b32 v%d, v%d, v%d' % (vT3, vT3, vT4))
        g.e('v_lshlrev_b32 v%d, 2, v%d' % (vT3, vT3))
        g.e('ds_write_b32 v%d, v%d offset:%d' % (vT3, Hh + e, L_HD))
    g.label(lsk)
    g.wait_lgkm(0)
    g.c('hg regs (48..63) are S tiles 4..7: make sure hg landed for all waves before QK4 writes them')

def fused4(g):
    head4(g)
    after_join(g)
    stamp(g, 5)
    groups = [('V', T) for T in range(2, 8)] + [('wo', 0), ('wd', 0)]
    gi = [0]
    def issue_next():
        if gi[0] >= len(groups): return
        k, T = groups[gi[0]]; gi[0] += 1
        if k == 'V': load_vtile(g, T, NT)
        elif k == 'wo': wo_loads(g)
        else: wd_loads(g)
    for T in range(8):
        g.wait_vm('K%d' % T)
        if T == 4: g.wait_vm('hg')
        qk_tile(g, T)
        if T < 7: issue_next()
        if T > 0: score_tile(g, T - 1)
    score_tile(g, 7)
    issue_next()
    softmax_all(g)
    for T in range(8):
        g.wait_vm('V%d' % T)
        pv_tile(g, T)
    attn_combine2(g)
    hop1_gather(g)
    tail1_compute2(g)
    tail2_fused(g)

def main():
    out = HEADER
    out += '; @launch grid=(256,1,1) block=(512,1,1) lds=%d\n' % LDS_BYTES
    out += '.amdgcn_target "amdgcn-amd-amdhsa--gfx950"\n.text\n'
    t, kd = kernel(NAME + '_kernel', fused4, ['x', 'K', 'V', 'wq', 'wo', 'wg', 'wu', 'wd', 'out', 'dbg', 'ws'], 0)
    out += t
    out += '.section .rodata,"a"\n.p2align 6\n' + kd
    path = sys.argv[1] if len(sys.argv) > 1 else 'cdna_kernels/%s.s' % NAME
    open(path, 'w').write(out)
    print('wrote', path, len(out))

if __name__ == '__main__':
    main()
```

```python
import sys, os
sys.path.insert(0, 'gen')
import gen1, gen2
from gen1 import *
from gen2 import *

LOOK = int(os.environ.get('LOOK', '4'))
PFC = int(os.environ.get('PFC', '0'))
PFK = int(os.environ.get('PFK', '0'))
PFN = int(os.environ.get('PFN', '6'))

def clears3(g):
    g.c('---- clear own hand-off slots with sentinel (plain stores; kernel boundary publishes)')
    g.e('v_mov_b32 v%d, -1' % vT2)
    g.e('v_mov_b32 v%d, -1' % vT3)
    g.e('s_lshl_b32 s%d, s%d, 3' % (sT0, sKV))
    g.e('s_add_u32 s%d, s%d, s%d' % (sT0, sT0, sW))
    g.e('s_lshl_b32 s%d, s%d, 6' % (sT0, sT0))
    g.e('s_add_u32 s%d, s%d, s%d' % (sT0, sT0, sU))
    g.e('s_lshl_b32 s%d, s%d, 9' % (sT1, sT0))
    g.e('s_add_u32 s%d, s%d, 0x%x' % (sT1, sT1, O_OFF2))
    g.e('s_lshl_b32 s%d, s%d, 3' % (sT2, sT0))
    g.e('s_add_u32 s%d, s%d, 0x%x' % (sT2, sT2, ML_OFF2))
    g.e('v_lshlrev_b32 v%d, 3, v%d' % (vT0, vLane))
    g.e('buffer_store_dwordx2 %s, v%d, %s, s%d offen' % (vr(vT2, 2), vT0, srd('ws'), sT1), 'st')
    g.e('v_mov_b32 v%d, 0' % vT1)
    g.e('s_mov_b64 exec, 1')
    g.e('buffer_store_dwordx2 %s, v%d, %s, s%d offen' % (vr(vT2, 2), vT1, srd('ws'), sT2), 'st')
    g.e('s_mov_b64 exec, -1')
    g.e('s_lshl_b32 s%d, s%d, 5' % (sT0, sB))
    g.e('s_add_u32 s%d, s%d, s%d' % (sT0, sT0, sH))
    g.e('s_lshl_b32 s%d, s%d, 10' % (sT0, sT0))
    g.e('s_add_u32 s%d, s%d, 0x%x' % (sT0, sT0, P2_OFF2))
    g.e('s_cmp_ge_u32 s%d, 4' % sW)
    g.e('s_cselect_b32 s%d, 0x40000000, s%d' % (sT0, sT0))
    g.e('v_lshlrev_b32 v%d, 2, v0' % vT0)
    g.e('buffer_store_dword v%d, v%d, %s, s%d offen' % (vT2, vT0, srd('ws'), sT0), 'st')

def head3(g):
    vX = 64; vXF = 72; vWQ = 16; vWG = 88; vWU = 104; vACC = 32; vXN = 56
    g.e('s_lshr_b32 s%d, s%d, 2' % (sCBL, sU))
    g.e('s_and_b32 s%d, s%d, 3' % (sKQ, sU))
    g.c('x loads')
    g.e('v_lshlrev_b32 v%d, 5, v%d' % (vA0, vLane))
    g.e('buffer_load_dwordx4 %s, v%d, %s, 0 offen' % (vr(vX, 4), vA0, srd('x')), 'x')
    g.e('buffer_load_dwordx4 %s, v%d, %s, 0 offen offset:16' % (vr(vX + 4, 4), vA0, srd('x')), 'x')
    g.e('v_lshrrev_b32 v%d, 3, v%d' % (vT0, vLane))
    g.e('v_and_b32 v%d, 7, v%d' % (vT1, vLane))
    g.e('v_lshlrev_b32 v%d, 2, v%d' % (vT0, vT0))
    g.e('s_lshl_b32 s%d, s%d, 8' % (sT0, sKQ))
    g.e('s_lshl_b32 s%d, s%d, 5' % (sT1, sW))
    g.e('s_add_u32 s%d, s%d, s%d' % (sT0, sT0, sT1))
    g.e('v_add_u32 v%d, s%d, v%d' % (vT0, sT0, vT0))
    g.e('v_lshlrev_b32 v%d, 4, v%d' % (vT1, vT1))
    g.e('s_lshl_b32 s%d, s%d, 11' % (sT1, sKV))
    g.e('s_lshl_b32 s%d, s%d, 7' % (sT2, sCBL))
    g.e('s_add_u32 s%d, s%d, s%d' % (sT1, sT1, sT2))
    g.e('v_lshlrev_b32 v%d, 13, v%d' % (vA1, vT0))
    g.e('v_add3_u32 v%d, v%d, v%d, s%d' % (vA1, vA1, vT1, sT1))
    for i in range(4):
        g.e('s_mov_b32 s%d, %d' % (sT3, i * 8192))
        g.e('buffer_load_dwordx4 %s, v%d, %s, s%d offen%s' % (vr(vWQ + 4 * i, 4), vA1, srd('wq'), sT3, NT), 'wq')
    g.e('s_cmp_ge_u32 s%d, %d' % (sT1, 56 * 128))
    g.e('s_cselect_b32 s%d, 0x40000000, s%d' % (sT1, sT1))
    g.e('s_mov_b32 s%d, 7168' % sT2)
    g.e('v_mul_lo_u32 v%d, v%d, s%d' % (vA2, vT0, sT2))
    g.e('v_add3_u32 v%d, v%d, v%d, s%d' % (vA2, vA2, vT1, sT1))
    for i in range(4):
        g.e('s_mov_b32 s%d, %d' % (sT3, i * 7168))
        g.e('buffer_load_dwordx4 %s, v%d, %s, s%d offen%s' % (vr(vWG + 4 * i, 4), vA2, srd('wg'), sT3, NT), 'wg')
        g.e('buffer_load_dwordx4 %s, v%d, %s, s%d offen%s' % (vr(vWU + 4 * i, 4), vA2, srd('wu'), sT3, NT), 'wu')
    g.e('v_lshlrev_b32 v%d, 2, v%d' % (vA3, vT0))
    g.e('v_add_u32 v%d, %d, v%d' % (vA3, H_XN, vA3))
    clears3(g)
    if PFC:
        g.c('prefetch main kernel code into L2 (wave 7 of the first 16 workgroups)')
        lsk = g.newlabel('nopf')
        g.e('s_cmp_lg_u32 s%d, 7' % sW)
        g.e('s_cbranch_scc1 %s' % lsk)
        g.e('s_cmp_ge_u32 s2, %d' % PFC)
        g.e('s_cbranch_scc1 %s' % lsk)
        g.e('s_getpc_b64 s[90:91]')
        g.raw('L_pcref:')
        g.e('s_add_u32 s90, s90, main_kernel-L_pcref')
        g.e('s_addc_u32 s91, s91, 0')
        g.e('v_lshlrev_b32 v%d, 6, v%d' % (vT0, vLane))
        saved = list(g.vm)
        for k in range(PFN):
            g.e('global_load_dword v%d, v%d, s[90:91] offset:0' % (120 + (k & 7), vT0))
            g.e('v_add_u32 v%d, 0x1000, v%d' % (vT0, vT0))
        g.e('s_waitcnt vmcnt(0)')
        g.vm = saved
        g.label(lsk)
    stamp(g, 1)
    g.c('---- layernorm')
    g.wait_vm('x')
    for k in range(8):
        g.e('v_lshlrev_b32 v%d, 16, v%d' % (vXF + 2 * k, vX + k))
        g.e('v_and_b32 v%d, s%d, v%d' % (vXF + 2 * k + 1, sHI, vX + k))
    g.e('v_add_f32 v%d, v%d, v%d' % (vT2, vXF, vXF + 1))
    for k in range(2, 16):
        g.e('v_add_f32 v%d, v%d, v%d' % (vT2, vT2, vXF + k))
    allreduce_inrow(g, 'v_add_f32', [vT2], [8, 4, 2, 1])
    allreduce_rows(g, 'v_add_f32', [vT2], vT3)
    g.e('v_mul_f32 v%d, 0x3a800000, v%d' % (vT2, vT2))
    g.e('v_sub_f32 v%d, v%d, v%d' % (vT3, vXF, vT2))
    g.e('v_mul_f32 v%d, v%d, v%d' % (vT4, vT3, vT3))
    for k in range(1, 16):
        g.e('v_sub_f32 v%d, v%d, v%d' % (vT3, vXF + k, vT2))
        g.e('v_fmac_f32 v%d, v%d, v%d' % (vT4, vT3, vT3))
    allreduce_inrow(g, 'v_add_f32', [vT4], [8, 4, 2, 1])
    allreduce_rows(g, 'v_add_f32', [vT4], vT3)
    g.e('v_mul_f32 v%d, 0x3a800000, v%d' % (vT4, vT4))
    round_bf16(g, vT2, vT2)
    round_bf16(g, vT4, vT4)
    g.e('v_add_f32 v%d, 0x3727c5ac, v%d' % (vT4, vT4))
    round_bf16(g, vT4, vT4)
    g.e('v_sqrt_f32 v%d, v%d' % (vT4, vT4))
    round_bf16(g, vT4, vT4)
    g.e('v_rcp_f32 v%d, v%d' % (vT5, vT4))
    for k in range(0, 16, 2):
        a, b = vXF + k, vXF + k + 1
        g.e('v_sub_f32 v%d, v%d, v%d' % (a, a, vT2))
        g.e('v_sub_f32 v%d, v%d, v%d' % (b, b, vT2))
        g.e('v_cvt_pk_bf16_f32 v%d, v%d, v%d' % (vT3, a, b))
        g.e('v_lshlrev_b32 v%d, 16, v%d' % (a, vT3))
        g.e('v_and_b32 v%d, s%d, v%d' % (b, sHI, vT3))
        for r in (a, b):
            g.e('v_mul_f32 v%d, v%d, v%d' % (vT0, r, vT5))
            g.e('v_fma_f32 v%d, -v%d, v%d, v%d' % (vT1, vT0, vT4, r))
            g.e('v_fma_f32 v%d, v%d, v%d, v%d' % (r, vT1, vT5, vT0))
        g.e('v_cvt_pk_bf16_f32 v%d, v%d, v%d' % (vT3, a, b))
        g.e('v_lshlrev_b32 v%d, 16, v%d' % (a, vT3))
        g.e('v_and_b32 v%d, s%d, v%d' % (b, sHI, vT3))
    g.e('v_lshlrev_b32 v%d, 6, v%d' % (vT0, vLane))
    for k in range(4):
        g.e('ds_write_b128 v%d, %s offset:%d' % (vT0, vr(vXF + 4 * k, 4), H_XN + 16 * k))
    g.wait_lgkm(0)
    g.e('ds_read_b128 %s, v%d' % (vr(vXN, 4), vA3))
    g.wait_lgkm(0)
    stamp(g, 2)
    for s_i, (vW, tag) in enumerate(((vWQ, 'wq'), (vWG, 'wg'), (vWU, 'wu'))):
        if tag == 'wq': g.wait_vm('wq')
        if tag == 'wg':
            g.wait_vm('wu')
            if PFK:
                g.c('fire-and-forget prefetch of the first K tiles of the main kernel (into L2 / MALL)')
                attn_addrs(g)
                for T in range(PFK):
                    g.e('s_mov_b32 s%d, %d' % (sT3, T * TSTRIDE))
                    for j in range(4):
                        g.e('buffer_load_dwordx4 %s, v%d, %s, s%d offen offset:%d' % (vr(120 + 4 * (j & 1), 4), vA0, srd('K'), sT3, 64 * j), 'pf')
        acc = vACC + 8 * s_i
        for i in range(4):
            for k in range(4):
                w = vW + 4 * i + k
                g.e('v_lshlrev_b32 v%d, 16, v%d' % (vT0, w))
                g.e('v_and_b32 v%d, s%d, v%d' % (vT1, sHI, w))
                if i == 0:
                    g.e('v_mul_f32 v%d, v%d, v%d' % (acc + 2 * k, vT0, vXN + i))
                    g.e('v_mul_f32 v%d, v%d, v%d' % (acc + 2 * k + 1, vT1, vXN + i))
                else:
                    g.e('v_fmac_f32 v%d, v%d, v%d' % (acc + 2 * k, vT0, vXN + i))
                    g.e('v_fmac_f32 v%d, v%d, v%d' % (acc + 2 * k + 1, vT1, vXN + i))
    allreduce_inrow(g, 'v_add_f32', list(range(vACC, vACC + 24)), [8])
    g.e('s_lshl_b32 s%d, s%d, 2' % (sT0, sW))
    g.e('v_add_u32 v%d, s%d, v%d' % (vT0, sT0, vG))
    g.e('v_lshlrev_b32 v%d, 8, v%d' % (vT0, vT0))
    g.e('v_and_b32 v%d, 7, v%d' % (vT1, vLane))
    g.e('v_lshl_add_u32 v%d, v%d, 5, v%d' % (vT0, vT1, vT0))
    g.e('v_cmp_gt_u32 vcc, 8, v%d' % vL15)
    g.e('s_and_saveexec_b64 s[%d:%d], vcc' % (sEX, sEX + 1))
    for s_i in range(3):
        for hf in range(2):
            g.e('ds_write_b128 v%d, %s offset:%d' % (vT0, vr(vACC + 8 * s_i + 4 * hf, 4), H_HP + s_i * 8192 + hf * 16))
    g.e('s_mov_b64 exec, s[%d:%d]' % (sEX, sEX + 1))
    g.wait_lgkm(0)
    g.e('s_barrier')
    stamp(g, 3)
    g.c('---- waves 0..2: final reduce of set w: lane(cg=l&15 (4 cols), pg=l>>4 (8 parts))')
    g.e('s_cmp_ge_u32 s%d, 3' % sW)
    g.e('s_cbranch_scc1 %s' % g.endlabel2)
    g.e('v_lshlrev_b32 v%d, 11, v%d' % (vT0, vG))
    g.e('v_lshl_add_u32 v%d, v%d, 4, v%d' % (vT0, vL15, vT0))
    g.e('s_lshl_b32 s%d, s%d, 13' % (sT0, sW))
    g.e('v_add_u32 v%d, s%d, v%d' % (vT0, sT0, vT0))
    R = 64
    for k in range(8):
        g.e('ds_read_b128 %s, v%d offset:%d' % (vr(R + 4 * k, 4), vT0, H_HP + k * 256))
    g.c('dest offset: set0: kq*16384 + cb*256 ; set1/2: GP/UP + kq*14336 + cb*256 (OOB if cb>=56)')
    g.e('s_lshl_b32 s%d, s%d, 4' % (sT0, sKV))
    g.e('s_add_u32 s%d, s%d, s%d' % (sT0, sT0, sCBL))
    g.e('s_lshl_b32 s%d, s%d, 8' % (sT1, sT0))
    g.e('s_lshl_b32 s%d, s%d, 14' % (sT2, sKQ))
    g.e('s_add_u32 s%d, s%d, s%d' % (sT2, sT2, sT1))
    g.e('s_mul_i32 s%d, s%d, %d' % (sT3, sKQ, 3584 * 4))
    g.e('s_add_u32 s%d, s%d, s%d' % (sT3, sT3, sT1))
    g.e('s_lshl_b32 s%d, s%d, 16' % (sT1, sW))
    g.e('s_add_u32 s%d, s%d, s%d' % (sT3, sT3, sT1))
    g.e('s_cmp_ge_u32 s%d, 56' % sT0)
    g.e('s_cselect_b32 s%d, 0x40000000, s%d' % (sT3, sT3))
    g.e('s_cmp_eq_u32 s%d, 0' % sW)
    g.e('s_cselect_b32 s%d, s%d, s%d' % (sT3, sT2, sT3))
    g.wait_lgkm(0)
    for k in range(1, 8):
        for e in range(4):
            g.e('v_add_f32 v%d, v%d, v%d' % (R + e, R + e, R + 4 * k + e))
    allreduce_rows(g, 'v_add_f32', [R + e for e in range(4)], vT1)
    g.e('v_lshlrev_b32 v%d, 4, v%d' % (vT2, vLane))
    g.e('s_mov_b64 exec, 0xffff')
    g.e('buffer_store_dwordx4 %s, v%d, %s, s%d offen' % (vr(R, 4), vT2, srd('ws'), sT3), 'st')
    g.e('s_mov_b64 exec, -1')
assert GP_OFF == 0x10000 and UP_OFF == 0x20000
H_XN = 0
H_HP = 4096

def main_kernel(g):
    G = 32; Hh = 40
    g.c('q gather: QP + (kq*4096 + 1024kv + 2t)*4')
    g.e('s_lshl_b32 s%d, s%d, 12' % (sT0, sKV))
    g.e('v_lshlrev_b32 v%d, 3, v0' % vT0)
    g.e('v_add_u32 v%d, s%d, v%d' % (vT0, sT0, vT0))
    for kq in range(4):
        g.e('s_mov_b32 s%d, %d' % (sT3, QP_OFF + kq * 16384))
        g.e('buffer_load_dwordx2 %s, v%d, %s, s%d offen' % (vr(G + 2 * kq, 2), vT0, srd('ws'), sT3), 'qg')
    g.c('h gather (wave 7 only; OOB otherwise)')
    g.e('s_mul_i32 s%d, s%d, 448' % (sT0, sH))
    g.e('s_cmp_lg_u32 s%d, 7' % sW)
    g.e('s_cselect_b32 s%d, 0x40000000, s%d' % (sT0, sT0))
    g.e('v_lshlrev_b32 v%d, 3, v%d' % (vT1, vLane))
    g.e('v_add_u32 v%d, s%d, v%d' % (vT1, sT0, vT1))
    for kq in range(4):
        g.e('s_mov_b32 s%d, %d' % (sT3, GP_OFF + kq * 3584 * 4))
        g.e('buffer_load_dwordx2 %s, v%d, %s, s%d offen' % (vr(Hh + 2 * kq, 2), vT1, srd('ws'), sT3), 'hg')
        g.e('s_mov_b32 s%d, %d' % (sT3, UP_OFF + kq * 3584 * 4))
        g.e('buffer_load_dwordx2 %s, v%d, %s, s%d offen' % (vr(Hh + 8 + 2 * kq, 2), vT1, srd('ws'), sT3), 'hg')
    attn_addrs(g)
    groups = [('K', T) for T in range(8)] + [('V', T) for T in range(8)] + [('wo', 0), ('wd', 0)]
    gi = [0]
    def issue_next():
        if gi[0] >= len(groups): return
        k, T = groups[gi[0]]; gi[0] += 1
        if k == 'K': load_ktile(g, T, NT if T >= PFK else '')
        elif k == 'V': load_vtile(g, T, NT)
        elif k == 'wo': wo_loads(g)
        else: wd_loads(g)
    for _ in range(LOOK): issue_next()
    make_masks(g)
    g.wait_vm('qg')
    g.e('v_add_f32 v%d, v%d, v%d' % (G, G, G + 2))
    g.e('v_add_f32 v%d, v%d, v%d' % (G + 1, G + 1, G + 3))
    g.e('v_add_f32 v%d, v%d, v%d' % (G + 4, G + 4, G + 6))
    g.e('v_add_f32 v%d, v%d, v%d' % (G + 5, G + 5, G + 7))
    g.e('v_add_f32 v%d, v%d, v%d' % (G, G, G + 4))
    g.e('v_add_f32 v%d, v%d, v%d' % (G + 1, G + 1, G + 5))
    g.e('v_cvt_pk_bf16_f32 v%d, v%d, v%d' % (G, G, G + 1))
    g.e('v_lshlrev_b32 v%d, 2, v0' % vT0)
    g.e('ds_write_b32 v%d, v%d offset:%d' % (vT0, G, L_QL))
    lsk = g.newlabel('nohg')
    g.e('s_cmp_lg_u32 s%d, 7' % sW)
    g.e('s_cbranch_scc1 %s' % lsk)
    g.wait_vm('hg')
    for e in range(2):
        gg = Hh + e; uu = Hh + 8 + e
        g.e('v_add_f32 v%d, v%d, v%d' % (gg, gg, gg + 2))
        g.e('v_add_f32 v%d, v%d, v%d' % (gg + 4, gg + 4, gg + 6))
        g.e('v_add_f32 v%d, v%d, v%d' % (gg, gg, gg + 4))
        g.e('v_add_f32 v%d, v%d, v%d' % (uu, uu, uu + 2))
        g.e('v_add_f32 v%d, v%d, v%d' % (uu + 4, uu + 4, uu + 6))
        g.e('v_add_f32 v%d, v%d, v%d' % (uu, uu, uu + 4))
        round_bf16(g, gg, gg)
        round_bf16(g, uu, uu)
        g.e('v_mul_f32 v%d, v%d, v%d' % (vT2, gg, gg))
        g.e('v_mul_f32 v%d, v%d, v%d' % (vT2, vT2, gg))
        g.e('v_mul_f32 v%d, 0x3d372713, v%d' % (vT2, vT2))
        g.e('v_add_f32 v%d, v%d, v%d' % (vT2, vT2, gg))
        g.e('v_mul_f32 v%d, 0x3f4c422a, v%d' % (vT2, vT2))
        g.e('v_mul_f32 v%d, 0xc038aa3b, v%d' % (vT2, vT2))
        g.e('v_exp_f32 v%d, v%d' % (vT2, vT2))
        g.e('v_add_f32 v%d, 1.0, v%d' % (vT2, vT2))
        g.e('v_rcp_f32 v%d, v%d' % (vT2, vT2))
        g.e('v_mul_f32 v%d, v%d, v%d' % (vT2, vT2, gg))
        round_bf16(g, vT2, vT2)
        g.e('v_mul_f32 v%d, v%d, v%d' % (vT2, vT2, uu))
        g.e('v_cvt_pk_bf16_f32 v%d, v%d, v%d' % (gg, vT2, vT2))
    for e in range(2):
        g.e('v_lshlrev_b32 v%d, 1, v%d' % (vT2, vLane))
        if e: g.e('v_or_b32 v%d, 1, v%d' % (vT2, vT2))
        g.e('v_and_b32 v%d, 0x70, v%d' % (vT3, vT2))
        g.e('v_and_b32 v%d, 3, v%d' % (vT4, vT2))
        g.e('v_lshl_or_b32 v%d, v%d, 2, v%d' % (vT3, vT4, vT3))
        g.e('v_bfe_u32 v%d, v%d, 2, 2' % (vT4, vT2))
        g.e('v_or_b32 v%d, v%d, v%d' % (vT3, vT3, vT4))
        g.e('v_lshlrev_b32 v%d, 2, v%d' % (vT3, vT3))
        g.e('ds_write_b32 v%d, v%d offset:%d' % (vT3, Hh + e, L_HD))
    g.label(lsk)
    g.wait_lgkm(0)
    g.e('s_barrier')
    g.e('v_lshrrev_b32 v%d, 2, v%d' % (vT0, vL15))
    g.e('v_bfe_u32 v%d, v%d, 1, 1' % (vT1, vL15))
    g.e('v_lshl_add_u32 v%d, v%d, 2, v%d' % (vT0, vT1, vT0))
    g.e('v_lshlrev_b32 v%d, 8, v%d' % (vT1, vT0))
    g.e('v_lshl_add_u32 v%d, v%d, 4, v%d' % (vT1, vG, vT1))
    for j in range(4):
        g.e('ds_read_b128 %s, v%d offset:%d' % (vr(vQ + 4 * j, 4), vT1, L_QL + 64 * j))
    g.wait_lgkm(0)
    stamp(g, 1)
    def can_issue(done_qk):
        if gi[0] >= len(groups): return False
        k, T = groups[gi[0]]
        if k == 'V' and T >= 3: return done_qk > T - 3
        if k == 'wo': return done_qk > 5
        if k == 'wd': return done_qk > 6
        return True
    for T in range(8):
        g.wait_vm('K%d' % T)
        qk_tile(g, T)
        if can_issue(T + 1): issue_next()
        if T > 0: score_tile(g, T - 1)
    stamp(g, 2)
    score_tile(g, 7)
    issue_next()
    softmax_all(g)
    for T in range(8):
        g.wait_vm('V%d' % T)
        pv_tile(g, T)
        issue_next()
    while gi[0] < len(groups): issue_next()
    stamp(g, 5)
    attn_combine2(g)
    hop1_gather(g)
    tail1_compute2(g)
    tail2_fused(g)

def main():
    ks = [
        ('head_kernel', head3, ['x', 'wq', 'wg', 'wu', 'ws', 'K'], 512, 28672, 128),
        ('main_kernel', main_kernel, ['x', 'K', 'V', 'wo', 'wd', 'out', 'ws'], 512, LDS_BYTES, 256),
    ]
    out = HEADER
    for n, _, _, blk, lds, nv in ks:
        out += '; @launch kernel=%s grid=(256,1,1) block=(%d,1,1) lds=%d\n' % (n, blk, lds)
    out += '.amdgcn_target "amdgcn-amd-amdhsa--gfx950"\n.text\n'
    kds = ''
    for kidx, (n, body, used, blk, lds, nv) in enumerate(ks):
        t, kd = kernel(n, body, used, kidx, nv)
        out += t
        kds += '.p2align 6\n' + kd
    out += '.section .rodata,"a"\n' + kds
    path = sys.argv[1] if len(sys.argv) > 1 else 'cdna_kernels/%s.s' % NAME
    open(path, 'w').write(out)
    print('wrote', path, len(out))

if __name__ == '__main__':
    main()
```

```python
import sys, os
sys.path.insert(0, 'gen')
import gen1, gen2, gen3
from gen1 import *
from gen2 import *
from gen3 import head3, H_XN, H_HP

LOOK = int(os.environ.get('LOOK', '4'))
PRE = int(os.environ.get('PRE', '2'))
WMAP = int(os.environ.get('WMAP', '0'))
TS = 4096 * (256 if WMAP == 3 else 512)
vDB = 240

def attn_addrs5(g):
    g.c('base = kv<<24 + (8u+w)*4096')
    g.e('s_lshl_b32 s%d, s%d, 24' % (sT0, sKV))
    if WMAP == 0:
        g.e('s_lshl_b32 s%d, s%d, 15' % (sT1, sU))
        g.e('s_add_u32 s%d, s%d, s%d' % (sT0, sT0, sT1))
        g.e('s_lshl_b32 s%d, s%d, 12' % (sT1, sW))
        g.e('s_add_u32 s%d, s%d, s%d' % (sT0, sT0, sT1))
    elif WMAP == 1:
        g.e('s_lshl_b32 s%d, s%d, 14' % (sT1, sU))
        g.e('s_add_u32 s%d, s%d, s%d' % (sT0, sT0, sT1))
        g.e('s_and_b32 s%d, s%d, 3' % (sT1, sW))
        g.e('s_lshl_b32 s%d, s%d, 12' % (sT1, sT1))
        g.e('s_add_u32 s%d, s%d, s%d' % (sT0, sT0, sT1))
        g.e('s_lshr_b32 s%d, s%d, 2' % (sT1, sW))
        g.e('s_lshl_b32 s%d, s%d, 20' % (sT1, sT1))
        g.e('s_add_u32 s%d, s%d, s%d' % (sT0, sT0, sT1))
    elif WMAP == 2:
        g.e('s_lshl_b32 s%d, s%d, 12' % (sT1, sU))
        g.e('s_add_u32 s%d, s%d, s%d' % (sT0, sT0, sT1))
        g.e('s_lshl_b32 s%d, s%d, 18' % (sT1, sW))
        g.e('s_add_u32 s%d, s%d, s%d' % (sT0, sT0, sT1))
    elif WMAP == 3:
        g.e('s_lshl_b32 s%d, s%d, 14' % (sT1, sU))
        g.e('s_add_u32 s%d, s%d, s%d' % (sT0, sT0, sT1))
        g.e('s_and_b32 s%d, s%d, 3' % (sT1, sW))
        g.e('s_lshl_b32 s%d, s%d, 12' % (sT1, sT1))
        g.e('s_add_u32 s%d, s%d, s%d' % (sT0, sT0, sT1))
        g.e('s_lshr_b32 s%d, s%d, 2' % (sT1, sW))
        g.e('s_lshl_b32 s%d, s%d, 23' % (sT1, sT1))
        g.e('s_add_u32 s%d, s%d, s%d' % (sT0, sT0, sT1))
    g.c('K lane: (i&3)*1024 + ((i>>2)&1)*256 + (i>>3)*64 + g*16')
    g.e('v_and_b32 v%d, 3, v%d' % (vT0, vL15))
    g.e('v_lshlrev_b32 v%d, 10, v%d' % (vA0, vT0))
    g.e('v_bfe_u32 v%d, v%d, 2, 1' % (vT0, vL15))
    g.e('v_lshl_add_u32 v%d, v%d, 8, v%d' % (vA0, vT0, vA0))
    g.e('v_bfe_u32 v%d, v%d, 3, 1' % (vT0, vL15))
    g.e('v_lshl_add_u32 v%d, v%d, 6, v%d' % (vA0, vT0, vA0))
    g.e('v_lshl_add_u32 v%d, v%d, 4, v%d' % (vA0, vG, vA0))
    g.e('v_add_u32 v%d, s%d, v%d' % (vA0, sT0, vA0))
    g.e('v_lshlrev_b32 v%d, 4, v%d' % (vA1, vLane))
    g.e('v_add_u32 v%d, s%d, v%d' % (vA1, sT0, vA1))

def load_k5(g, T):
    g.e('s_mov_b32 s%d, %d' % (sT3, T * TS))
    for j in range(4):
        g.e('buffer_load_dwordx4 %s, v%d, %s, s%d offen offset:%d%s' % (vr(vK + 16 * T + 4 * j, 4), vA0, srd('K'), sT3, (j >> 1) * 512 + (j & 1) * 128, NT), 'K%d' % T)

def load_v5(g, T):
    g.e('s_mov_b32 s%d, %d' % (sT3, T * TS))
    b = vtile_reg(T)
    for r in range(4):
        g.e('buffer_load_dwordx4 %s, v%d, %s, s%d offen offset:%d%s' % (vr(b + 4 * r, 4), vA1, srd('V'), sT3, 1024 * r, NT), 'V%d' % T)

def qk5(g, T):
    s = vS + 4 * T
    d = vDB + 4 * (T & 1)
    k = vK + 16 * T
    g.e('v_mfma_f32_16x16x32_bf16 %s, %s, %s, 0' % (vr(s, 4), vr(k, 4), vr(vQ, 4)))
    g.e('v_mfma_f32_16x16x32_bf16 %s, %s, %s, 0' % (vr(d, 4), vr(k + 8, 4), vr(vQ, 4)))
    g.e('v_mfma_f32_16x16x32_bf16 %s, %s, %s, %s' % (vr(s, 4), vr(k + 4, 4), vr(vQ + 4, 4), vr(s, 4)))
    g.e('v_mfma_f32_16x16x32_bf16 %s, %s, %s, %s' % (vr(d, 4), vr(k + 12, 4), vr(vQ + 4, 4), vr(d, 4)))

def score5(g, T):
    s = vS + 4 * T
    d = vDB + 4 * (T & 1)
    for r in range(4):
        g.e('v_permlane32_swap_b32 v%d, v%d' % (s + r, d + r))
    for r in range(4):
        g.e('v_add_f32_dpp v%d, v%d, v%d quad_perm:[1,0,3,2] row_mask:0xf bank_mask:0xf' % (s + r, d + r, s + r))
    score_tile(g, T)

def attn_combine5(g):
    g.c('write O partials to LDS: w*WSTR + (4u+hq)*HS + ((2g+a)*4+e0)*16')
    g.e('v_lshrrev_b32 v%d, 2, v%d' % (vT0, vL15))
    g.e('v_and_b32 v%d, 3, v%d' % (vT1, vLane))
    g.e('s_mul_i32 s%d, s%d, %d' % (sT0, sW, WSTR))
    g.e('v_mul_u32_u24 v%d, %d, v%d' % (vT0, HS, vT0))
    g.e('v_lshlrev_b32 v%d, 7, v%d' % (vT2, vG))
    g.e('v_lshl_add_u32 v%d, v%d, 4, v%d' % (vT2, vT1, vT2))
    g.e('v_add3_u32 v%d, v%d, v%d, s%d' % (vT0, vT0, vT2, sT0))
    for u in range(2):
        for a in range(2):
            g.e('ds_write_b128 v%d, %s offset:%d' % (vT0, vr(vQ + 4 * (2 * u + a), 4), L_OP + u * 4 * HS + a * 64))
    g.e('v_lshrrev_b32 v%d, 2, v%d' % (vT0, vL15))
    g.e('v_bfe_u32 v%d, v%d, 1, 1' % (vT1, vL15))
    g.e('v_lshl_add_u32 v%d, v%d, 2, v%d' % (vT0, vT1, vT0))
    g.e('s_lshl_b32 s%d, s%d, 6' % (sT0, sW))
    g.e('v_lshlrev_b32 v%d, 3, v%d' % (vT0, vT0))
    g.e('v_add_u32 v%d, s%d, v%d' % (vT0, sT0, vT0))
    g.e('v_and_b32 v%d, 0x31, v%d' % (vT1, vLane))
    g.e('v_cmp_eq_u32 vcc, 0, v%d' % vT1)
    g.e('s_and_saveexec_b64 s[%d:%d], vcc' % (sEX, sEX + 1))
    g.e('ds_write_b64 v%d, %s offset:%d' % (vT0, vr(vM, 2), L_ML))
    g.e('s_mov_b64 exec, s[%d:%d]' % (sEX, sEX + 1))
    g.c('lane l handles idx 2l,2l+1 : idx = 32a+16(k>>1)+4c+2(k&1)+bq ; pos = 32a+16bq+4c+k')
    g.e('v_and_b32 v%d, 0x30, v%d' % (vT2, vLane))
    g.e('v_lshlrev_b32 v%d, 1, v%d' % (vT2, vT2))
    g.e('v_bfe_u32 v%d, v%d, 1, 2' % (vT3, vLane))
    g.e('v_lshl_or_b32 v%d, v%d, 2, v%d' % (vT2, vT3, vT2))
    g.e('v_bfe_u32 v%d, v%d, 3, 1' % (vT3, vLane))
    g.e('v_lshl_or_b32 v%d, v%d, 1, v%d' % (vT2, vT3, vT2))
    g.e('v_and_b32 v%d, 1, v%d' % (vT3, vLane))
    g.e('v_or_b32 v%d, v%d, v%d' % (vT2, vT2, vT3))
    g.e('s_mul_i32 s%d, s%d, %d' % (sT0, sW, HS))
    g.e('v_lshlrev_b32 v%d, 2, v%d' % (vT2, vT2))
    g.e('v_add_u32 v%d, s%d, v%d' % (vT0, sT0, vT2))
    g.e('s_lshl_b32 s%d, s%d, 3' % (sT1, sW))
    g.e('v_mov_b32 v%d, s%d' % (vT1, sT1))
    g.wait_lgkm(0)
    g.e('s_barrier')
    R = 64; RM = 80
    for w in range(8):
        g.e('ds_read_b64 %s, v%d offset:%d' % (vr(RM + 2 * w, 2), vT1, L_ML + w * 64))
    for w in range(8):
        assert (L_OP + w * WSTR) % 4 == 0
        g.e('v_add_u32 v%d, %d, v%d' % (vT2, L_OP + w * WSTR, vT0) if w else 'v_mov_b32 v%d, v%d' % (vT2, vT0))
        g.e('ds_read2_b32 %s, v%d offset0:0 offset1:16' % (vr(R + 2 * w, 2), vT2))
    g.wait_lgkm(8)
    g.e('v_max3_f32 v%d, v%d, v%d, v%d' % (vM, RM, RM + 2, RM + 4))
    g.e('v_max3_f32 v%d, v%d, v%d, v%d' % (vM, vM, RM + 6, RM + 8))
    g.e('v_max3_f32 v%d, v%d, v%d, v%d' % (vM, vM, RM + 10, RM + 12))
    g.e('v_max_f32 v%d, v%d, v%d' % (vM, vM, RM + 14))
    for w in range(8):
        g.e('v_sub_f32 v%d, v%d, v%d' % (RM + 2 * w, RM + 2 * w, vM))
    for w in range(8):
        g.e('v_mul_f32 v%d, s%d, v%d' % (RM + 2 * w, sL2E, RM + 2 * w))
    for w in range(8):
        g.e('v_exp_f32 v%d, v%d' % (RM + 2 * w, RM + 2 * w))
    g.e('v_mul_f32 v%d, v%d, v%d' % (vLs, RM, RM + 1))
    for w in range(1, 8):
        g.e('v_fmac_f32 v%d, v%d, v%d' % (vLs, RM + 2 * w, RM + 2 * w + 1))
    g.wait_lgkm(0)
    g.e('v_mul_f32 v%d, v%d, v%d' % (vT2, RM, R))
    g.e('v_mul_f32 v%d, v%d, v%d' % (vT3, RM, R + 1))
    for w in range(1, 8):
        g.e('v_fmac_f32 v%d, v%d, v%d' % (vT2, RM + 2 * w, R + 2 * w))
        g.e('v_fmac_f32 v%d, v%d, v%d' % (vT3, RM + 2 * w, R + 2 * w + 1))
    for r in (vT2, vT3, vM, vLs):
        g.e('v_min_u32 v%d, -2, v%d' % (r, r))
    g.e('s_lshl_b32 s%d, s%d, 3' % (sT0, sKV))
    g.e('s_add_u32 s%d, s%d, s%d' % (sT0, sT0, sW))
    g.e('s_lshl_b32 s%d, s%d, 6' % (sT0, sT0))
    g.e('s_add_u32 s%d, s%d, s%d' % (sT0, sT0, sU))
    g.e('s_lshl_b32 s%d, s%d, 9' % (sT1, sT0))
    g.e('s_add_u32 s%d, s%d, 0x%x' % (sT1, sT1, O_OFF2))
    g.e('s_lshl_b32 s%d, s%d, 3' % (sT2, sT0))
    g.e('s_add_u32 s%d, s%d, 0x%x' % (sT2, sT2, ML_OFF2))
    g.e('v_lshlrev_b32 v%d, 3, v%d' % (vT0, vLane))
    g.e('buffer_store_dwordx2 %s, v%d, %s, s%d offen sc1' % (vr(vT2, 2), vT0, srd('ws'), sT1), 'st')
    g.e('s_mov_b64 exec, 1')
    g.e('buffer_store_dwordx2 %s, v%d, %s, s%d offen sc1' % (vr(vM, 2), vT0, srd('ws'), sT2), 'st')
    g.e('s_mov_b64 exec, -1')

def ffn_mfma(g):
    g.e('s_lshl_b32 s%d, s%d, 6' % (sT0, sW))
    g.e('v_lshlrev_b32 v%d, 4, v%d' % (vA3, vG))
    g.e('v_add_u32 v%d, s%d, v%d' % (vA3, sT0, vA3))
    g.e('ds_read_b128 %s, v%d offset:%d' % (vr(vHD, 4), vA3, L_HD))
    g.e('s_cmp_eq_u32 s%d, 7' % sW)
    g.e('s_cselect_b32 s%d, 0, -1' % sT0)
    g.wait_vm('wd')
    g.wait_lgkm(0)
    for jj in range(4):
        g.e('v_and_b32 v%d, s%d, v%d' % (vHD + jj, sT0, vHD + jj))
    for jj in range(4):
        bb = vB + 2 * (jj & 1)
        g.e('v_and_b32 v%d, v%d, v%d' % (bb, vHD + jj, vMask0))
        g.e('v_and_b32 v%d, v%d, v%d' % (bb + 1, vHD + jj, vMask1))
        for a in range(2):
            acc = vAC + 8 + 4 * a
            g.e('v_mfma_f32_16x16x16_bf16 %s, %s, %s, %s' % (vr(acc, 4), vr(vWD + 4 * jj + 2 * a, 2), vr(bb, 2), '0' if jj == 0 else vr(acc, 4)))
    g.c('write B partial to RED2 now')
    g.e('s_lshl_b32 s%d, s%d, 10' % (sT0, sW))
    g.e('v_lshlrev_b32 v%d, 7, v%d' % (vA2, vG))
    g.e('v_lshl_add_u32 v%d, v%d, 4, v%d' % (vA2, vL15, vA2))
    g.e('v_add_u32 v%d, s%d, v%d' % (vA2, sT0, vA2))
    g.e('v_cmp_gt_u32 vcc, 4, v%d' % vL15)
    g.e('s_and_saveexec_b64 s[%d:%d], vcc' % (sEX, sEX + 1))
    g.e('s_mov_b64 s[%d:%d], exec' % (sM0, sM0 + 1))
    for a in range(2):
        g.e('ds_write_b128 v%d, %s offset:%d' % (vA2, vr(vAC + 8 + 4 * a, 4), L_RED2 + 512 + a * 64))
    g.e('s_mov_b64 exec, s[%d:%d]' % (sEX, sEX + 1))

def tail1_compute5(g):
    vWt = vT4; vLsum = vT5
    g.e('v_mov_b32 v%d, v%d' % (vT2, vPM))
    allreduce_inrow(g, 'v_max_f32', [vT2], [8, 4, 2, 1])
    allreduce_rows(g, 'v_max_f32', [vT2], vT3)
    g.e('v_sub_f32 v%d, v%d, v%d' % (vWt, vPM, vT2))
    g.e('v_mul_f32 v%d, s%d, v%d' % (vWt, sL2E, vWt))
    g.e('v_exp_f32 v%d, v%d' % (vWt, vWt))
    g.e('v_lshrrev_b32 v%d, 5, v%d' % (vT0, vLane))
    g.e('s_lshl_b32 s%d, s%d, 3' % (sT0, sW))
    g.e('v_add_lshl_u32 v%d, v%d, s%d, 2' % (vT0, vT0, sT0))
    W4 = vOD
    for i in range(4):
        if i: g.e('v_add_u32 v%d, 8, v%d' % (vT0, vT0))
        g.e('ds_bpermute_b32 v%d, v%d, v%d' % (W4 + i, vT0, vWt))
    g.e('v_mul_f32 v%d, v%d, v%d' % (vLsum, vWt, vPM + 1))
    allreduce_inrow(g, 'v_add_f32', [vLsum], [8, 4, 2, 1])
    allreduce_rows(g, 'v_add_f32', [vLsum], vT3)
    g.e('v_rcp_f32 v%d, v%d' % (vT1, vLsum))
    g.wait_lgkm(0)
    A = vAC
    for k in range(4):
        g.e('v_mul_f32 v%d, v%d, v%d' % (A + k, W4, vPO + k))
    for i in range(1, 4):
        for k in range(4):
            g.e('v_fmac_f32 v%d, v%d, v%d' % (A + k, W4 + i, vPO + 4 * i + k))
    for k in range(4):
        g.e('v_mov_b32 v%d, v%d' % (A + 4 + k, A + k))
    for k in range(4):
        g.e('v_permlane32_swap_b32 v%d, v%d' % (A + k, A + 4 + k))
    for k in range(4):
        g.e('v_add_f32 v%d, v%d, v%d' % (A + k, A + k, A + 4 + k))
    g.e('s_lshl_b32 s%d, s%d, 9' % (sT0, sW))
    g.e('v_lshlrev_b32 v%d, 4, v%d' % (vT0, vLane))
    g.e('v_add_u32 v%d, s%d, v%d' % (vT0, sT0, vT0))
    g.e('s_mov_b64 exec, 0xffffffff')
    g.e('ds_write_b128 v%d, %s offset:%d' % (vT0, vr(A, 4), L_RED))
    g.e('s_mov_b64 exec, -1')
    g.wait_lgkm(0)
    g.e('s_barrier')
    R = 64
    for w in range(8):
        g.e('ds_read_b128 %s, v%d offset:%d' % (vr(R + 4 * w, 4), vA3, L_RED + 512 * w))
    g.wait_lgkm(4)
    for w in range(1, 4):
        for k in range(4):
            g.e('v_add_f32 v%d, v%d, v%d' % (R + k, R + k, R + 4 * w + k))
    g.wait_lgkm(0)
    for w in range(5, 8):
        for k in range(4):
            g.e('v_add_f32 v%d, v%d, v%d' % (R + 16 + k, R + 16 + k, R + 4 * w + k))
    for k in range(4):
        g.e('v_add_f32 v%d, v%d, v%d' % (R + k, R + k, R + 16 + k))
    for k in range(4):
        g.e('v_mul_f32 v%d, v%d, v%d' % (R + 4 + k, R + k, vT1))
    for k in range(4):
        g.e('v_fma_f32 v%d, -v%d, v%d, v%d' % (R + 8 + k, R + 4 + k, vLsum, R + k))
    for k in range(4):
        g.e('v_fma_f32 v%d, v%d, v%d, v%d' % (R + 4 + k, R + 8 + k, vT1, R + 4 + k))
    for k in range(4):
        g.e('v_cvt_pk_bf16_f32 v%d, v%d, v%d' % (R + 4 + k, R + 4 + k, R + 4 + k))
    for jj in range(4):
        g.e('v_and_b32 v%d, v%d, v%d' % (R + 8 + 2 * jj, R + 4 + jj, vMask0))
        g.e('v_and_b32 v%d, v%d, v%d' % (R + 9 + 2 * jj, R + 4 + jj, vMask1))
    g.wait_vm('wo')
    for jj in range(4):
        for a in range(2):
            acc = vAC + 4 * a
            g.e('v_mfma_f32_16x16x16_bf16 %s, %s, %s, %s' % (vr(acc, 4), vr(vWO + 4 * jj + 2 * a, 2), vr(R + 8 + 2 * jj, 2), '0' if jj == 0 else vr(acc, 4)))
    g.e('s_mov_b64 exec, s[%d:%d]' % (sM0, sM0 + 1))
    for a in range(2):
        g.e('ds_write_b128 v%d, %s offset:%d' % (vA2, vr(vAC + 4 * a, 4), L_RED2 + a * 64))
    g.e('s_mov_b64 exec, -1')
    g.e('v_and_b32 v%d, 0xe0, v0' % vT2)
    g.e('v_and_b32 v%d, 3, v0' % vT3)
    g.e('v_lshl_or_b32 v%d, v%d, 3, v%d' % (vT2, vT3, vT2))
    g.e('v_bfe_u32 v%d, v0, 4, 1' % vT3)
    g.e('v_lshl_or_b32 v%d, v%d, 2, v%d' % (vT2, vT3, vT2))
    g.e('v_bfe_u32 v%d, v0, 2, 2' % vT3)
    g.e('v_or_b32 v%d, v%d, v%d' % (vT2, vT2, vT3))
    g.e('v_lshlrev_b32 v%d, 2, v%d' % (vT2, vT2))
    g.e('s_lshl_b32 s%d, s%d, 5' % (sT0, sB))
    g.e('s_add_u32 s%d, s%d, s%d' % (sT0, sT0, sH))
    g.e('s_lshl_b32 s%d, s%d, 10' % (sT0, sT0))
    g.e('s_add_u32 s%d, s%d, 0x%x' % (sT0, sT0, P2_OFF2))
    g.e('v_lshlrev_b32 v%d, 2, v0' % vT0)
    g.wait_lgkm(0)
    g.e('s_barrier')
    g.e('s_cmp_ge_u32 s%d, 4' % sW)
    g.e('s_cbranch_scc1 %s' % g.endlabel2)
    for w in range(8):
        g.e('ds_read_b32 v%d, v%d offset:%d' % (vPO + w, vT0, L_RED2 + 1024 * w))
    g.wait_lgkm(0)
    g.e('v_add_f32 v%d, v%d, v%d' % (vPO, vPO, vPO + 1))
    g.e('v_add_f32 v%d, v%d, v%d' % (vPO + 2, vPO + 2, vPO + 3))
    g.e('v_add_f32 v%d, v%d, v%d' % (vPO + 4, vPO + 4, vPO + 5))
    g.e('v_add_f32 v%d, v%d, v%d' % (vPO + 6, vPO + 6, vPO + 7))
    g.e('v_add_f32 v%d, v%d, v%d' % (vPO, vPO, vPO + 2))
    g.e('v_add_f32 v%d, v%d, v%d' % (vPO + 4, vPO + 4, vPO + 6))
    g.e('v_add_f32 v%d, v%d, v%d' % (vPO, vPO, vPO + 4))
    g.e('v_min_u32 v%d, -2, v%d' % (vPO, vPO))
    stamp(g, 4)
    g.e('buffer_store_dword v%d, v%d, %s, s%d offen sc1' % (vPO, vT2, srd('ws'), sT0), 'st')
    g.e('s_cmp_lg_u32 s%d, 0' % sW)
    g.e('s_cbranch_scc1 %s' % g.endlabel2)

def main_kernel5(g):
    G = 32; Hh = 40
    g.c('q gather: QP + (kq*4096 + 1024kv + 2t)*4')
    g.e('s_lshl_b32 s%d, s%d, 12' % (sT0, sKV))
    g.e('v_lshlrev_b32 v%d, 3, v0' % vT0)
    g.e('v_add_u32 v%d, s%d, v%d' % (vT0, sT0, vT0))
    for kq in range(4):
        g.e('s_mov_b32 s%d, %d' % (sT3, QP_OFF + kq * 16384))
        g.e('buffer_load_dwordx2 %s, v%d, %s, s%d offen' % (vr(G + 2 * kq, 2), vT0, srd('ws'), sT3), 'qg')
    attn_addrs5(g)
    groups = [('K', T) for T in range(8)] + [('V', T) for T in range(8)] + [('wd', 0), ('wo', 0)]
    gi = [0]
    def issue_next():
        if gi[0] >= len(groups): return
        k, T = groups[gi[0]]; gi[0] += 1
        if k == 'K': load_k5(g, T)
        elif k == 'V': load_v5(g, T)
        elif k == 'wo': wo_loads5(g)
        else: wd_loads5(g)
    issue_next()
    g.c('h gather (wave 7 only; OOB otherwise)')
    g.e('s_mul_i32 s%d, s%d, 448' % (sT0, sH))
    g.e('s_cmp_lg_u32 s%d, 7' % sW)
    g.e('s_cselect_b32 s%d, 0x40000000, s%d' % (sT0, sT0))
    g.e('v_lshlrev_b32 v%d, 3, v%d' % (vT1, vLane))
    g.e('v_add_u32 v%d, s%d, v%d' % (vT1, sT0, vT1))
    for kq in range(4):
        g.e('s_mov_b32 s%d, %d' % (sT3, GP_OFF + kq * 3584 * 4))
        g.e('buffer_load_dwordx2 %s, v%d, %s, s%d offen' % (vr(Hh + 2 * kq, 2), vT1, srd('ws'), sT3), 'hg')
        g.e('s_mov_b32 s%d, %d' % (sT3, UP_OFF + kq * 3584 * 4))
        g.e('buffer_load_dwordx2 %s, v%d, %s, s%d offen' % (vr(Hh + 8 + 2 * kq, 2), vT1, srd('ws'), sT3), 'hg')
    for _ in range(PRE - 1): issue_next()
    make_masks(g)
    g.wait_vm('qg')
    g.e('v_add_f32 v%d, v%d, v%d' % (G, G, G + 2))
    g.e('v_add_f32 v%d, v%d, v%d' % (G + 1, G + 1, G + 3))
    g.e('v_add_f32 v%d, v%d, v%d' % (G + 4, G + 4, G + 6))
    g.e('v_add_f32 v%d, v%d, v%d' % (G + 5, G + 5, G + 7))
    g.e('v_add_f32 v%d, v%d, v%d' % (G, G, G + 4))
    g.e('v_add_f32 v%d, v%d, v%d' % (G + 1, G + 1, G + 5))
    g.e('v_cvt_pk_bf16_f32 v%d, v%d, v%d' % (G, G, G + 1))
    g.e('v_lshlrev_b32 v%d, 2, v0' % vT0)
    g.e('ds_write_b32 v%d, v%d offset:%d' % (vT0, G, L_QL))
    lsk = g.newlabel('nohg')
    g.e('s_cmp_lg_u32 s%d, 7' % sW)
    g.e('s_cbranch_scc1 %s' % lsk)
    g.wait_vm('hg')
    for e in range(2):
        gg = Hh + e; uu = Hh + 8 + e
        g.e('v_add_f32 v%d, v%d, v%d' % (gg, gg, gg + 2))
        g.e('v_add_f32 v%d, v%d, v%d' % (gg + 4, gg + 4, gg + 6))
        g.e('v_add_f32 v%d, v%d, v%d' % (gg, gg, gg + 4))
        g.e('v_add_f32 v%d, v%d, v%d' % (uu, uu, uu + 2))
        g.e('v_add_f32 v%d, v%d, v%d' % (uu + 4, uu + 4, uu + 6))
        g.e('v_add_f32 v%d, v%d, v%d' % (uu, uu, uu + 4))
        round_bf16(g, gg, gg)
        round_bf16(g, uu, uu)
        g.e('v_mul_f32 v%d, v%d, v%d' % (vT2, gg, gg))
        g.e('v_mul_f32 v%d, v%d, v%d' % (vT2, vT2, gg))
        g.e('v_mul_f32 v%d, 0x3d372713, v%d' % (vT2, vT2))
        g.e('v_add_f32 v%d, v%d, v%d' % (vT2, vT2, gg))
        g.e('v_mul_f32 v%d, 0x3f4c422a, v%d' % (vT2, vT2))
        g.e('v_mul_f32 v%d, 0xc038aa3b, v%d' % (vT2, vT2))
        g.e('v_exp_f32 v%d, v%d' % (vT2, vT2))
        g.e('v_add_f32 v%d, 1.0, v%d' % (vT2, vT2))
        g.e('v_rcp_f32 v%d, v%d' % (vT2, vT2))
        g.e('v_mul_f32 v%d, v%d, v%d' % (vT2, vT2, gg))
        round_bf16(g, vT2, vT2)
        g.e('v_mul_f32 v%d, v%d, v%d' % (vT2, vT2, uu))
        g.e('v_cvt_pk_bf16_f32 v%d, v%d, v%d' % (gg, vT2, vT2))
    for e in range(2):
        g.e('v_lshlrev_b32 v%d, 1, v%d' % (vT2, vLane))
        if e: g.e('v_or_b32 v%d, 1, v%d' % (vT2, vT2))
        g.e('v_and_b32 v%d, 0x70, v%d' % (vT3, vT2))
        g.e('v_and_b32 v%d, 3, v%d' % (vT4, vT2))
        g.e('v_lshl_or_b32 v%d, v%d, 2, v%d' % (vT3, vT4, vT3))
        g.e('v_bfe_u32 v%d, v%d, 2, 2' % (vT4, vT2))
        g.e('v_or_b32 v%d, v%d, v%d' % (vT3, vT3, vT4))
        g.e('v_lshlrev_b32 v%d, 2, v%d' % (vT3, vT3))
        g.e('ds_write_b32 v%d, v%d offset:%d' % (vT3, Hh + e, L_HD))
    g.label(lsk)
    g.c('Q frag addr: eta*256 + (n&1)*64 + g*16 (+128 jj)')
    g.e('v_lshrrev_b32 v%d, 2, v%d' % (vT0, vL15))
    g.e('v_bfe_u32 v%d, v%d, 1, 1' % (vT1, vL15))
    g.e('v_lshl_add_u32 v%d, v%d, 2, v%d' % (vT0, vT1, vT0))
    g.e('v_lshlrev_b32 v%d, 8, v%d' % (vT1, vT0))
    g.e('v_lshl_add_u32 v%d, v%d, 4, v%d' % (vT1, vG, vT1))
    g.e('v_and_b32 v%d, 1, v%d' % (vT0, vLane))
    g.e('v_lshl_add_u32 v%d, v%d, 6, v%d' % (vT1, vT0, vT1))
    g.wait_lgkm(0)
    g.e('s_barrier')
    for j in range(2):
        g.e('ds_read_b128 %s, v%d offset:%d' % (vr(vQ + 4 * j, 4), vT1, L_QL + 128 * j))
    stamp(g, 1)
    for _ in range(LOOK - PRE): issue_next()
    g.wait_lgkm(0)
    def can_issue(done_qk):
        if gi[0] >= len(groups): return False
        k, T = groups[gi[0]]
        if k == 'V' and T >= 3: return done_qk > T - 3
        if k == 'wo': return done_qk > 5
        if k == 'wd': return done_qk > 6
        return True
    for T in range(8):
        g.wait_vm('K%d' % T)
        if T == 2: g.wait_vm('hg')
        qk5(g, T)
        if can_issue(T + 1): issue_next()
        if T > 0: score5(g, T - 1)
    stamp(g, 2)
    score5(g, 7)
    issue_next()
    softmax_all(g)
    for T in range(8):
        g.wait_vm('V%d' % T)
        pv_tile(g, T)
        issue_next()
    while gi[0] < len(groups): issue_next()
    stamp(g, 5)
    attn_combine5(g)
    ffn_mfma(g)
    hop1_gather(g)
    tail1_compute5(g)
    tail2_fused(g)

def wo_loads5(g):
    g.c('wo: row = 128h+16w+4jj+g ; voff = row*2048 + b*256 + c*16')
    g.e('s_lshl_b32 s%d, s%d, 7' % (sT0, sH))
    g.e('s_lshl_b32 s%d, s%d, 4' % (sT1, sW))
    g.e('s_add_u32 s%d, s%d, s%d' % (sT0, sT0, sT1))
    g.e('s_lshl_b32 s%d, s%d, 11' % (sT0, sT0))
    g.e('s_lshl_b32 s%d, s%d, 8' % (sT2, sB))
    g.e('s_add_u32 s%d, s%d, s%d' % (sT0, sT0, sT2))
    g.e('v_add_u32 v%d, s%d, v%d' % (vA2, sT0, vA3))
    for jj in range(4):
        g.e('s_mov_b32 s%d, %d' % (sT3, jj * 8192))
        g.e('buffer_load_dwordx4 %s, v%d, %s, s%d offen%s' % (vr(vWO + 4 * jj, 4), vA2, srd('wo'), sT3, NT), 'wo')

def wd_loads5(g):
    g.c('wd: row = 112h+16w+4jj+g (w<7)')
    g.e('v_lshlrev_b32 v%d, 11, v%d' % (vA3, vG))
    g.e('v_lshl_add_u32 v%d, v%d, 4, v%d' % (vA3, vL15, vA3))
    g.e('s_mul_i32 s%d, s%d, 112' % (sT0, sH))
    g.e('s_lshl_b32 s%d, s%d, 4' % (sT1, sW))
    g.e('s_add_u32 s%d, s%d, s%d' % (sT0, sT0, sT1))
    g.e('s_lshl_b32 s%d, s%d, 11' % (sT0, sT0))
    g.e('s_lshl_b32 s%d, s%d, 8' % (sT2, sB))
    g.e('s_add_u32 s%d, s%d, s%d' % (sT0, sT0, sT2))
    g.e('s_cmp_eq_u32 s%d, 7' % sW)
    g.e('s_cselect_b32 s%d, 0x40000000, s%d' % (sT0, sT0))
    g.e('v_add_u32 v%d, s%d, v%d' % (vA2, sT0, vA3))
    for jj in range(4):
        g.e('s_mov_b32 s%d, %d' % (sT3, jj * 8192))
        g.e('buffer_load_dwordx4 %s, v%d, %s, s%d offen%s' % (vr(vWD + 4 * jj, 4), vA2, srd('wd'), sT3, NT), 'wd')

def main():
    ks = [
        ('head_kernel', head3, ['x', 'wq', 'wg', 'wu', 'ws', 'K'], 512, 28672, 128),
        ('main_kernel', main_kernel5, ['x', 'K', 'V', 'wo', 'wd', 'out', 'ws'], 512, LDS_BYTES, 256),
    ]
    out = HEADER
    for n, _, _, blk, lds, nv in ks:
        out += '; @launch kernel=%s grid=(256,1,1) block=(%d,1,1) lds=%d\n' % (n, blk, lds)
    out += '.amdgcn_target "amdgcn-amd-amdhsa--gfx950"\n.text\n'
    kds = ''
    for kidx, (n, body, used, blk, lds, nv) in enumerate(ks):
        t, kd = kernel(n, body, used, kidx, nv)
        out += t
        kds += '.p2align 6\n' + kd
    out += '.section .rodata,"a"\n' + kds
    path = sys.argv[1] if len(sys.argv) > 1 else 'cdna_kernels/%s.s' % NAME
    open(path, 'w').write(out)
    print('wrote', path, len(out))

if __name__ == '__main__':
    main()
```

```python
import sys, os
sys.path.insert(0, 'gen')
import gen1, gen2, gen3, gen5
from gen1 import *
from gen2 import *
from gen5 import *
from gen4 import ln_part
L_HP6 = 57344
LDS6 = 73728
CLR = os.environ.get('CLR', '')

def clears6(g):
    g.c('---- clear own hand-off slots with sentinel')
    for r in (vT2, vT3, vT4, vT5): g.e('v_mov_b32 v%d, -1' % r)
    g.e('s_lshl_b32 s%d, s%d, 3' % (sT0, sKV))
    g.e('s_add_u32 s%d, s%d, s%d' % (sT0, sT0, sW))
    g.e('s_lshl_b32 s%d, s%d, 6' % (sT0, sT0))
    g.e('s_add_u32 s%d, s%d, s%d' % (sT0, sT0, sU))
    g.e('s_lshl_b32 s%d, s%d, 9' % (sT1, sT0))
    g.e('s_add_u32 s%d, s%d, 0x%x' % (sT1, sT1, O_OFF2))
    g.e('s_lshl_b32 s%d, s%d, 3' % (sT2, sT0))
    g.e('s_add_u32 s%d, s%d, 0x%x' % (sT2, sT2, ML_OFF2))
    g.e('v_lshlrev_b32 v%d, 3, v%d' % (vT0, vLane))
    g.e('buffer_store_dwordx2 %s, v%d, %s, s%d offen%s' % (vr(vT2, 2), vT0, srd('ws'), sT1, CLR), 'st')
    g.e('v_mov_b32 v%d, 0' % vT1)
    g.e('s_mov_b64 exec, 1')
    g.e('buffer_store_dwordx2 %s, v%d, %s, s%d offen%s' % (vr(vT2, 2), vT1, srd('ws'), sT2, CLR), 'st')
    g.e('s_mov_b64 exec, -1')
    g.e('s_lshl_b32 s%d, s%d, 5' % (sT0, sB))
    g.e('s_add_u32 s%d, s%d, s%d' % (sT0, sT0, sH))
    g.e('s_lshl_b32 s%d, s%d, 10' % (sT0, sT0))
    g.e('s_add_u32 s%d, s%d, 0x%x' % (sT0, sT0, P2_OFF2))
    g.e('s_cmp_ge_u32 s%d, 4' % sW)
    g.e('s_cselect_b32 s%d, 0x40000000, s%d' % (sT0, sT0))
    g.e('v_lshlrev_b32 v%d, 2, v0' % vT0)
    g.e('buffer_store_dword v%d, v%d, %s, s%d offen%s' % (vT2, vT0, srd('ws'), sT0, CLR), 'st')
    g.c('gate/up partial slots: waves 4,5 (lanes 0..15, 16B each)')
    gu_dest(g, 4)
    g.e('v_lshlrev_b32 v%d, 4, v%d' % (vT0, vLane))
    g.e('s_mov_b64 exec, 0xffff')
    g.e('buffer_store_dwordx4 %s, v%d, %s, s%d offen%s' % (vr(vT2, 4), vT0, srd('ws'), sT3, CLR), 'st')
    g.e('s_mov_b64 exec, -1')

def gu_dest(g, w0):
    g.e('s_lshl_b32 s%d, s%d, 4' % (sT0, sKV))
    g.e('s_add_u32 s%d, s%d, s%d' % (sT0, sT0, sCBL))
    g.e('s_lshl_b32 s%d, s%d, 8' % (sT1, sT0))
    g.e('s_mul_i32 s%d, s%d, %d' % (sT3, sKQ, 3584 * 4))
    g.e('s_add_u32 s%d, s%d, s%d' % (sT3, sT3, sT1))
    g.e('s_sub_u32 s%d, s%d, %d' % (sT2, sW, w0))
    g.e('s_add_u32 s%d, s%d, 1' % (sT1, sT2))
    g.e('s_lshl_b32 s%d, s%d, 16' % (sT1, sT1))
    g.e('s_add_u32 s%d, s%d, s%d' % (sT3, sT3, sT1))
    g.e('s_cmp_ge_u32 s%d, 56' % sT0)
    g.e('s_cselect_b32 s%d, 0x40000000, s%d' % (sT3, sT3))
    g.e('s_cmp_ge_u32 s%d, 2' % sT2)
    g.e('s_cselect_b32 s%d, 0x40000000, s%d' % (sT3, sT3))

def gemv_fma(g, vW, acc, vXN):
    for i in range(4):
        for k in range(4):
            w = vW + 4 * i + k
            g.e('v_lshlrev_b32 v%d, 16, v%d' % (vT0, w))
            g.e('v_and_b32 v%d, s%d, v%d' % (vT1, sHI, w))
            if i == 0:
                g.e('v_mul_f32 v%d, v%d, v%d' % (acc + 2 * k, vT0, vXN + i))
                g.e('v_mul_f32 v%d, v%d, v%d' % (acc + 2 * k + 1, vT1, vXN + i))
            else:
                g.e('v_fmac_f32 v%d, v%d, v%d' % (acc + 2 * k, vT0, vXN + i))
                g.e('v_fmac_f32 v%d, v%d, v%d' % (acc + 2 * k + 1, vT1, vXN + i))

def row0_calc(g):
    g.e('v_lshrrev_b32 v%d, 3, v%d' % (vT0, vLane))
    g.e('v_and_b32 v%d, 7, v%d' % (vT1, vLane))
    g.e('v_lshlrev_b32 v%d, 2, v%d' % (vT0, vT0))
    g.e('s_lshl_b32 s%d, s%d, 8' % (sT0, sKQ))
    g.e('s_lshl_b32 s%d, s%d, 5' % (sT1, sW))
    g.e('s_add_u32 s%d, s%d, s%d' % (sT0, sT0, sT1))
    g.e('v_add_u32 v%d, s%d, v%d' % (vT0, sT0, vT0))
    g.e('v_lshlrev_b32 v%d, 4, v%d' % (vT1, vT1))
    g.e('s_lshl_b32 s%d, s%d, 11' % (sT1, sKV))
    g.e('s_lshl_b32 s%d, s%d, 7' % (sT2, sCBL))
    g.e('s_add_u32 s%d, s%d, s%d' % (sT1, sT1, sT2))

def part_addr(g):
    g.e('s_lshl_b32 s%d, s%d, 2' % (sT0, sW))
    g.e('v_add_u32 v%d, s%d, v%d' % (vT0, sT0, vG))
    g.e('v_lshlrev_b32 v%d, 8, v%d' % (vT0, vT0))
    g.e('v_and_b32 v%d, 7, v%d' % (vT1, vLane))
    g.e('v_lshl_add_u32 v%d, v%d, 5, v%d' % (vT0, vT1, vT0))

def head6(g):
    vX = 48; vXF = 56; vWQ = 16; vACC = 32; vXN = 40
    g.e('s_lshr_b32 s%d, s%d, 2' % (sCBL, sU))
    g.e('s_and_b32 s%d, s%d, 3' % (sKQ, sU))
    g.e('v_lshlrev_b32 v%d, 5, v%d' % (vA0, vLane))
    g.e('buffer_load_dwordx4 %s, v%d, %s, 0 offen' % (vr(vX, 4), vA0, srd('x')), 'x')
    g.e('buffer_load_dwordx4 %s, v%d, %s, 0 offen offset:16' % (vr(vX + 4, 4), vA0, srd('x')), 'x')
    row0_calc(g)
    g.e('v_lshlrev_b32 v%d, 13, v%d' % (vA1, vT0))
    g.e('v_add3_u32 v%d, v%d, v%d, s%d' % (vA1, vA1, vT1, sT1))
    for i in range(4):
        g.e('s_mov_b32 s%d, %d' % (sT3, i * 8192))
        g.e('buffer_load_dwordx4 %s, v%d, %s, s%d offen%s' % (vr(vWQ + 4 * i, 4), vA1, srd('wq'), sT3, NT), 'wq')
    g.e('v_lshlrev_b32 v%d, 2, v%d' % (vA3, vT0))
    clears6(g)
    stamp(g, 1)
    g.wait_vm('x')
    ln_part(g, vX, vXF)
    g.e('v_lshlrev_b32 v%d, 6, v%d' % (vT0, vLane))
    for k in range(4):
        g.e('ds_write_b128 v%d, %s offset:%d' % (vT0, vr(vXF + 4 * k, 4), 16 * k))
    g.wait_lgkm(0)
    g.e('ds_read_b128 %s, v%d' % (vr(vXN, 4), vA3))
    g.wait_lgkm(0)
    stamp(g, 2)
    g.wait_vm('wq')
    gemv_fma(g, vWQ, vACC, vXN)
    allreduce_inrow(g, 'v_add_f32', list(range(vACC, vACC + 8)), [8])
    part_addr(g)
    g.e('v_cmp_gt_u32 vcc, 8, v%d' % vL15)
    g.e('s_and_saveexec_b64 s[%d:%d], vcc' % (sEX, sEX + 1))
    for hf in range(2):
        g.e('ds_write_b128 v%d, %s offset:%d' % (vT0, vr(vACC + 4 * hf, 4), 4096 + hf * 16))
    g.e('s_mov_b64 exec, s[%d:%d]' % (sEX, sEX + 1))
    g.e('v_lshlrev_b32 v%d, 11, v%d' % (vT0, vG))
    g.e('v_lshl_add_u32 v%d, v%d, 4, v%d' % (vT0, vL15, vT0))
    g.e('s_lshl_b32 s%d, s%d, 4' % (sT0, sKV))
    g.e('s_add_u32 s%d, s%d, s%d' % (sT0, sT0, sCBL))
    g.e('s_lshl_b32 s%d, s%d, 8' % (sT1, sT0))
    g.e('s_lshl_b32 s%d, s%d, 14' % (sT2, sKQ))
    g.e('s_add_u32 s%d, s%d, s%d' % (sT2, sT2, sT1))
    g.e('v_lshlrev_b32 v%d, 4, v%d' % (vT2, vLane))
    g.wait_lgkm(0)
    g.e('s_barrier')
    stamp(g, 3)
    g.e('s_cmp_lg_u32 s%d, 0' % sW)
    g.e('s_cbranch_scc1 %s' % g.endlabel2)
    R = 16
    for k in range(8):
        g.e('ds_read_b128 %s, v%d offset:%d' % (vr(R + 4 * k, 4), vT0, 4096 + k * 256))
    g.wait_lgkm(0)
    for k in range(1, 8):
        for e in range(4):
            g.e('v_add_f32 v%d, v%d, v%d' % (R + e, R + e, R + 4 * k + e))
    allreduce_rows(g, 'v_add_f32', [R + e for e in range(4)], vT1)
    g.e('s_mov_b64 exec, 0xffff')
    g.e('buffer_store_dwordx4 %s, v%d, %s, s%d offen' % (vr(R, 4), vT2, srd('ws'), sT2), 'st')
    g.e('s_mov_b64 exec, -1')

def h_gather6(g):
    Hh = 64
    lsk = g.newlabel('nohg'); lloop = g.newlabel('hgloop'); lok = g.newlabel('hgok')
    g.e('s_cmp_lg_u32 s%d, 0' % sW)
    g.e('s_cbranch_scc1 %s' % lsk)
    g.e('s_mul_i32 s%d, s%d, 448' % (sT0, sH))
    g.e('v_min_u32 v%d, 55, v%d' % (vT1, vLane))
    g.e('v_lshlrev_b32 v%d, 3, v%d' % (vT1, vT1))
    g.e('v_add_u32 v%d, s%d, v%d' % (vT1, sT0, vT1))
    g.e('s_mov_b32 s%d, 0' % sCNT)
    saved = list(g.vm)
    g.label(lloop)
    for kq in range(4):
        g.e('s_mov_b32 s%d, %d' % (sT3, GP_OFF + kq * 3584 * 4))
        g.e('buffer_load_dwordx2 %s, v%d, %s, s%d offen sc1' % (vr(Hh + 2 * kq, 2), vT1, srd('ws'), sT3), 'hg')
        g.e('s_mov_b32 s%d, %d' % (sT3, UP_OFF + kq * 3584 * 4))
        g.e('buffer_load_dwordx2 %s, v%d, %s, s%d offen sc1' % (vr(Hh + 8 + 2 * kq, 2), vT1, srd('ws'), sT3), 'hg')
    g.e('s_waitcnt vmcnt(0)')
    g.e('v_max_u32 v%d, v%d, v%d' % (vT0, Hh, Hh + 1))
    for i in range(1, 8):
        g.e('v_max3_u32 v%d, v%d, v%d, v%d' % (vT0, vT0, Hh + 2 * i, Hh + 2 * i + 1))
    g.e('v_cmp_eq_u32 vcc, -1, v%d' % vT0)
    g.e('s_cmp_eq_u64 vcc, 0')
    g.e('s_cbranch_scc1 %s' % lok)
    g.e('s_sleep 1')
    spin_tail(g, lloop, lok)
    g.label(lok)
    g.vm = saved
    for e in range(2):
        gg = Hh + e; uu = Hh + 8 + e
        g.e('v_add_f32 v%d, v%d, v%d' % (gg, gg, gg + 2))
        g.e('v_add_f32 v%d, v%d, v%d' % (gg + 4, gg + 4, gg + 6))
        g.e('v_add_f32 v%d, v%d, v%d' % (gg, gg, gg + 4))
        g.e('v_add_f32 v%d, v%d, v%d' % (uu, uu, uu + 2))
        g.e('v_add_f32 v%d, v%d, v%d' % (uu + 4, uu + 4, uu + 6))
        g.e('v_add_f32 v%d, v%d, v%d' % (uu, uu, uu + 4))
        round_bf16(g, gg, gg)
        round_bf16(g, uu, uu)
        g.e('v_mul_f32 v%d, v%d, v%d' % (vT2, gg, gg))
        g.e('v_mul_f32 v%d, v%d, v%d' % (vT2, vT2, gg))
        g.e('v_mul_f32 v%d, 0x3d372713, v%d' % (vT2, vT2))
        g.e('v_add_f32 v%d, v%d, v%d' % (vT2, vT2, gg))
        g.e('v_mul_f32 v%d, 0x3f4c422a, v%d' % (vT2, vT2))
        g.e('v_mul_f32 v%d, 0xc038aa3b, v%d' % (vT2, vT2))
        g.e('v_exp_f32 v%d, v%d' % (vT2, vT2))
        g.e('v_add_f32 v%d, 1.0, v%d' % (vT2, vT2))
        g.e('v_rcp_f32 v%d, v%d' % (vT2, vT2))
        g.e('v_mul_f32 v%d, v%d, v%d' % (vT2, vT2, gg))
        round_bf16(g, vT2, vT2)
        g.e('v_mul_f32 v%d, v%d, v%d' % (vT2, vT2, uu))
        g.e('v_cvt_pk_bf16_f32 v%d, v%d, v%d' % (gg, vT2, vT2))
    for e in range(2):
        g.e('v_lshlrev_b32 v%d, 1, v%d' % (vT2, vLane))
        if e: g.e('v_or_b32 v%d, 1, v%d' % (vT2, vT2))
        g.e('v_and_b32 v%d, 0x70, v%d' % (vT3, vT2))
        g.e('v_and_b32 v%d, 3, v%d' % (vT4, vT2))
        g.e('v_lshl_or_b32 v%d, v%d, 2, v%d' % (vT3, vT4, vT3))
        g.e('v_bfe_u32 v%d, v%d, 2, 2' % (vT4, vT2))
        g.e('v_or_b32 v%d, v%d, v%d' % (vT3, vT3, vT4))
        g.e('v_lshlrev_b32 v%d, 2, v%d' % (vT3, vT3))
        g.e('ds_write_b32 v%d, v%d offset:%d' % (vT3, Hh + e, L_HD))
    g.label(lsk)

def main_kernel6(g):
    G = 32
    vX = 224; vXF = 232; vWG = 192; vWU = 208; vACC = 40; vXN = 56
    g.e('s_lshr_b32 s%d, s%d, 2' % (sCBL, sU))
    g.e('s_and_b32 s%d, s%d, 3' % (sKQ, sU))
    g.c('q gather')
    g.e('s_lshl_b32 s%d, s%d, 12' % (sT0, sKV))
    g.e('v_lshlrev_b32 v%d, 3, v0' % vT0)
    g.e('v_add_u32 v%d, s%d, v%d' % (vT0, sT0, vT0))
    for kq in range(4):
        g.e('s_mov_b32 s%d, %d' % (sT3, QP_OFF + kq * 16384))
        g.e('buffer_load_dwordx2 %s, v%d, %s, s%d offen' % (vr(G + 2 * kq, 2), vT0, srd('ws'), sT3), 'qg')
    g.e('v_lshlrev_b32 v%d, 5, v%d' % (vA0, vLane))
    g.e('buffer_load_dwordx4 %s, v%d, %s, 0 offen' % (vr(vX, 4), vA0, srd('x')), 'x')
    g.e('buffer_load_dwordx4 %s, v%d, %s, 0 offen offset:16' % (vr(vX + 4, 4), vA0, srd('x')), 'x')
    row0_calc(g)
    g.e('s_cmp_ge_u32 s%d, %d' % (sT1, 56 * 128))
    g.e('s_cselect_b32 s%d, 0x40000000, s%d' % (sT1, sT1))
    g.e('s_mov_b32 s%d, 7168' % sT2)
    g.e('v_mul_lo_u32 v%d, v%d, s%d' % (vA2, vT0, sT2))
    g.e('v_add3_u32 v%d, v%d, v%d, s%d' % (vA2, vA2, vT1, sT1))
    for i in range(4):
        g.e('s_mov_b32 s%d, %d' % (sT3, i * 7168))
        g.e('buffer_load_dwordx4 %s, v%d, %s, s%d offen%s' % (vr(vWG + 4 * i, 4), vA2, srd('wg'), sT3, NT), 'wg')
        g.e('buffer_load_dwordx4 %s, v%d, %s, s%d offen%s' % (vr(vWU + 4 * i, 4), vA2, srd('wu'), sT3, NT), 'wu')
    g.e('v_lshlrev_b32 v%d, 2, v%d' % (vA3, vT0))
    g.e('v_add_u32 v%d, %d, v%d' % (vA3, L_XN, vA3))
    attn_addrs5(g)
    groups = [('K', T) for T in range(8)] + [('V', T) for T in range(8)] + [('wd', 0), ('wo', 0)]
    gi = [0]
    def issue_next():
        if gi[0] >= len(groups): return
        k, T = groups[gi[0]]; gi[0] += 1
        if k == 'K': load_k5(g, T)
        elif k == 'V': load_v5(g, T)
        elif k == 'wo': wo_loads5(g)
        else: wd_loads5(g)
    for _ in range(PRE): issue_next()
    make_masks(g)
    g.wait_vm('qg')
    g.e('v_add_f32 v%d, v%d, v%d' % (G, G, G + 2))
    g.e('v_add_f32 v%d, v%d, v%d' % (G + 1, G + 1, G + 3))
    g.e('v_add_f32 v%d, v%d, v%d' % (G + 4, G + 4, G + 6))
    g.e('v_add_f32 v%d, v%d, v%d' % (G + 5, G + 5, G + 7))
    g.e('v_add_f32 v%d, v%d, v%d' % (G, G, G + 4))
    g.e('v_add_f32 v%d, v%d, v%d' % (G + 1, G + 1, G + 5))
    g.e('v_cvt_pk_bf16_f32 v%d, v%d, v%d' % (G, G, G + 1))
    g.e('v_lshlrev_b32 v%d, 2, v0' % vT0)
    g.e('ds_write_b32 v%d, v%d offset:%d' % (vT0, G, L_QL))
    g.wait_vm('x')
    ln_part(g, vX, vXF)
    g.e('v_lshlrev_b32 v%d, 6, v%d' % (vT0, vLane))
    for k in range(4):
        g.e('ds_write_b128 v%d, %s offset:%d' % (vT0, vr(vXF + 4 * k, 4), L_XN + 16 * k))
    g.wait_lgkm(0)
    g.e('ds_read_b128 %s, v%d' % (vr(vXN, 4), vA3))
    g.wait_lgkm(0)
    g.wait_vm('wu')
    gemv_fma(g, vWG, vACC, vXN)
    gemv_fma(g, vWU, vACC + 8, vXN)
    allreduce_inrow(g, 'v_add_f32', list(range(vACC, vACC + 16)), [8])
    part_addr(g)
    g.e('v_add_u32 v%d, %d, v%d' % (vT0, L_HP6, vT0))
    g.e('v_cmp_gt_u32 vcc, 8, v%d' % vL15)
    g.e('s_and_saveexec_b64 s[%d:%d], vcc' % (sEX, sEX + 1))
    for s_i in range(2):
        for hf in range(2):
            g.e('ds_write_b128 v%d, %s offset:%d' % (vT0, vr(vACC + 8 * s_i + 4 * hf, 4), s_i * 8192 + hf * 16))
    g.e('s_mov_b64 exec, s[%d:%d]' % (sEX, sEX + 1))
    g.c('Q frag addr')
    g.e('v_lshrrev_b32 v%d, 2, v%d' % (vT0, vL15))
    g.e('v_bfe_u32 v%d, v%d, 1, 1' % (vT1, vL15))
    g.e('v_lshl_add_u32 v%d, v%d, 2, v%d' % (vT0, vT1, vT0))
    g.e('v_lshlrev_b32 v%d, 8, v%d' % (vT1, vT0))
    g.e('v_lshl_add_u32 v%d, v%d, 4, v%d' % (vT1, vG, vT1))
    g.e('v_and_b32 v%d, 1, v%d' % (vT0, vLane))
    g.e('v_lshl_add_u32 v%d, v%d, 6, v%d' % (vT1, vT0, vT1))
    g.wait_lgkm(0)
    g.e('s_barrier')
    for j in range(2):
        g.e('ds_read_b128 %s, v%d offset:%d' % (vr(vQ + 4 * j, 4), vT1, L_QL + 128 * j))
    stamp(g, 1)
    g.c('waves 0,1: final reduce of gate / up partials and publish')
    lsk = g.newlabel('nored')
    g.e('s_cmp_ge_u32 s%d, 2' % sW)
    g.e('s_cbranch_scc1 %s' % lsk)
    R = 192
    g.e('v_lshlrev_b32 v%d, 11, v%d' % (vT0, vG))
    g.e('v_lshl_add_u32 v%d, v%d, 4, v%d' % (vT0, vL15, vT0))
    g.e('s_lshl_b32 s%d, s%d, 13' % (sT0, sW))
    g.e('s_add_u32 s%d, s%d, %d' % (sT0, sT0, L_HP6))
    g.e('v_add_u32 v%d, s%d, v%d' % (vT0, sT0, vT0))
    for k in range(8):
        g.e('ds_read_b128 %s, v%d offset:%d' % (vr(R + 4 * k, 4), vT0, k * 256))
    gu_dest(g, 0)
    g.wait_lgkm(0)
    for k in range(1, 8):
        for e in range(4):
            g.e('v_add_f32 v%d, v%d, v%d' % (R + e, R + e, R + 4 * k + e))
    allreduce_rows(g, 'v_add_f32', [R + e for e in range(4)], vT1)
    for e in range(4):
        g.e('v_min_u32 v%d, -2, v%d' % (R + e, R + e))
    g.e('v_lshlrev_b32 v%d, 4, v%d' % (vT2, vLane))
    g.e('s_mov_b64 exec, 0xffff')
    saved = list(g.vm)
    g.e('buffer_store_dwordx4 %s, v%d, %s, s%d offen sc1' % (vr(R, 4), vT2, srd('ws'), sT3), 'st')
    g.vm = saved
    g.e('s_mov_b64 exec, -1')
    g.label(lsk)
    for _ in range(LOOK - PRE): issue_next()
    g.wait_lgkm(0)
    def can_issue(done_qk):
        if gi[0] >= len(groups): return False
        k, T = groups[gi[0]]
        if k == 'V' and T >= 3: return done_qk > T - 3
        if k == 'wo': return done_qk > 5
        if k == 'wd': return done_qk > 6
        return True
    for T in range(8):
        g.wait_vm('K%d' % T)
        qk5(g, T)
        if can_issue(T + 1): issue_next()
        if T > 0: score5(g, T - 1)
    stamp(g, 2)
    score5(g, 7)
    issue_next()
    softmax_all(g)
    for T in range(8):
        g.wait_vm('V%d' % T)
        pv_tile(g, T)
        issue_next()
    while gi[0] < len(groups): issue_next()
    stamp(g, 5)
    h_gather6(g)
    attn_combine5(g)
    ffn_mfma(g)
    hop1_gather(g)
    tail1_compute5(g)
    tail2_fused(g)

def main():
    ks = [
        ('head_kernel', head6, ['x', 'wq', 'ws'], 512, 12288, 72),
        ('main_kernel', main_kernel6, ['x', 'K', 'V', 'wo', 'wg', 'wu', 'wd', 'out', 'ws'], 512, LDS6, 256),
    ]
    out = HEADER
    for n, _, _, blk, lds, nv in ks:
        out += '; @launch kernel=%s grid=(256,1,1) block=(%d,1,1) lds=%d\n' % (n, blk, lds)
    out += '.amdgcn_target "amdgcn-amd-amdhsa--gfx950"\n.text\n'
    kds = ''
    for kidx, (n, body, used, blk, lds, nv) in enumerate(ks):
        t, kd = kernel(n, body, used, kidx, nv)
        out += t
        kds += '.p2align 6\n' + kd
    out += '.section .rodata,"a"\n' + kds
    path = sys.argv[1] if len(sys.argv) > 1 else 'cdna_kernels/%s.s' % NAME
    open(path, 'w').write(out)
    print('wrote', path, len(out))

if __name__ == '__main__':
    main()
```

```python
import sys, os
sys.path.insert(0, 'gen')
import gen1, gen2, gen5, gen6
from gen1 import *
from gen2 import *
from gen5 import *
from gen6 import gu_dest, gemv_fma, row0_calc, part_addr, L_HP6, LDS6
from gen4 import ln_part
EARLYGU = int(os.environ.get('EARLYGU', '0'))
NPF = int(os.environ.get('NPF', '8'))
HGW = 1
L_HQ = 0

def clears7(g):
    gen6.CLR = ' sc1'
    gen6.clears6(g)

def h_gather7(g):
    Hh = 64
    lsk = g.newlabel('nohg'); lloop = g.newlabel('hgloop'); lok = g.newlabel('hgok')
    g.e('s_cmp_lg_u32 s%d, %d' % (sW, HGW))
    g.e('s_cbranch_scc1 %s' % lsk)
    g.e('s_mul_i32 s%d, s%d, 448' % (sT0, sH))
    g.e('v_min_u32 v%d, 55, v%d' % (vT1, vLane))
    g.e('v_lshlrev_b32 v%d, 3, v%d' % (vT1, vT1))
    g.e('v_add_u32 v%d, s%d, v%d' % (vT1, sT0, vT1))
    g.e('s_mov_b32 s%d, 0' % sCNT)
    saved = list(g.vm)
    g.label(lloop)
    for kq in range(4):
        g.e('s_mov_b32 s%d, %d' % (sT3, GP_OFF + kq * 3584 * 4))
        g.e('buffer_load_dwordx2 %s, v%d, %s, s%d offen sc1' % (vr(Hh + 2 * kq, 2), vT1, srd('ws'), sT3), 'hg')
        g.e('s_mov_b32 s%d, %d' % (sT3, UP_OFF + kq * 3584 * 4))
        g.e('buffer_load_dwordx2 %s, v%d, %s, s%d offen sc1' % (vr(Hh + 8 + 2 * kq, 2), vT1, srd('ws'), sT3), 'hg')
    g.e('s_waitcnt vmcnt(0)')
    g.e('v_max_u32 v%d, v%d, v%d' % (vT0, Hh, Hh + 1))
    for i in range(1, 8):
        g.e('v_max3_u32 v%d, v%d, v%d, v%d' % (vT0, vT0, Hh + 2 * i, Hh + 2 * i + 1))
    g.e('v_cmp_eq_u32 vcc, -1, v%d' % vT0)
    g.e('s_cmp_eq_u64 vcc, 0')
    g.e('s_cbranch_scc1 %s' % lok)
    g.e('s_sleep 1')
    spin_tail(g, lloop, lok)
    g.label(lok)
    g.vm = saved
    for e in range(2):
        gg = Hh + e; uu = Hh + 8 + e
        g.e('v_add_f32 v%d, v%d, v%d' % (gg, gg, gg + 2))
        g.e('v_add_f32 v%d, v%d, v%d' % (gg + 4, gg + 4, gg + 6))
        g.e('v_add_f32 v%d, v%d, v%d' % (gg, gg, gg + 4))
        g.e('v_add_f32 v%d, v%d, v%d' % (uu, uu, uu + 2))
        g.e('v_add_f32 v%d, v%d, v%d' % (uu + 4, uu + 4, uu + 6))
        g.e('v_add_f32 v%d, v%d, v%d' % (uu, uu, uu + 4))
        round_bf16(g, gg, gg)
        round_bf16(g, uu, uu)
        g.e('v_mul_f32 v%d, v%d, v%d' % (vT2, gg, gg))
        g.e('v_mul_f32 v%d, v%d, v%d' % (vT2, vT2, gg))
        g.e('v_mul_f32 v%d, 0x3d372713, v%d' % (vT2, vT2))
        g.e('v_add_f32 v%d, v%d, v%d' % (vT2, vT2, gg))
        g.e('v_mul_f32 v%d, 0x3f4c422a, v%d' % (vT2, vT2))
        g.e('v_mul_f32 v%d, 0xc038aa3b, v%d' % (vT2, vT2))
        g.e('v_exp_f32 v%d, v%d' % (vT2, vT2))
        g.e('v_add_f32 v%d, 1.0, v%d' % (vT2, vT2))
        g.e('v_rcp_f32 v%d, v%d' % (vT2, vT2))
        g.e('v_mul_f32 v%d, v%d, v%d' % (vT2, vT2, gg))
        round_bf16(g, vT2, vT2)
        g.e('v_mul_f32 v%d, v%d, v%d' % (vT2, vT2, uu))
        g.e('v_cvt_pk_bf16_f32 v%d, v%d, v%d' % (gg, vT2, vT2))
    for e in range(2):
        g.e('v_lshlrev_b32 v%d, 1, v%d' % (vT2, vLane))
        if e: g.e('v_or_b32 v%d, 1, v%d' % (vT2, vT2))
        g.e('v_and_b32 v%d, 0x70, v%d' % (vT3, vT2))
        g.e('v_and_b32 v%d, 3, v%d' % (vT4, vT2))
        g.e('v_lshl_or_b32 v%d, v%d, 2, v%d' % (vT3, vT4, vT3))
        g.e('v_bfe_u32 v%d, v%d, 2, 2' % (vT4, vT2))
        g.e('v_or_b32 v%d, v%d, v%d' % (vT3, vT3, vT4))
        g.e('v_lshlrev_b32 v%d, 2, v%d' % (vT3, vT3))
        g.e('ds_write_b32 v%d, v%d offset:%d' % (vT3, Hh + e, L_HD))
    g.label(lsk)

def fused7(g):
    vX = 224; vXF = 232; vWQ = 16; vWG = 192; vWU = 208; vACC = 32; vXN = 56
    vGU = 60
    g.e('s_lshr_b32 s%d, s%d, 2' % (sCBL, sU))
    g.e('s_and_b32 s%d, s%d, 3' % (sKQ, sU))
    g.e('v_lshlrev_b32 v%d, 5, v%d' % (vA0, vLane))
    g.e('buffer_load_dwordx4 %s, v%d, %s, 0 offen' % (vr(vX, 4), vA0, srd('x')), 'x')
    g.e('buffer_load_dwordx4 %s, v%d, %s, 0 offen offset:16' % (vr(vX + 4, 4), vA0, srd('x')), 'x')
    row0_calc(g)
    g.e('v_lshlrev_b32 v%d, 13, v%d' % (vA1, vT0))
    g.e('v_add3_u32 v%d, v%d, v%d, s%d' % (vA1, vA1, vT1, sT1))
    for i in range(4):
        g.e('s_mov_b32 s%d, %d' % (sT3, i * 8192))
        g.e('buffer_load_dwordx4 %s, v%d, %s, s%d offen%s' % (vr(vWQ + 4 * i, 4), vA1, srd('wq'), sT3, NT), 'wq')
    g.e('s_cmp_ge_u32 s%d, %d' % (sT1, 56 * 128))
    g.e('s_cselect_b32 s%d, 0x40000000, s%d' % (sT1, sT1))
    g.e('s_mov_b32 s%d, 7168' % sT2)
    g.e('v_mul_lo_u32 v%d, v%d, s%d' % (vGU, vT0, sT2))
    g.e('v_add3_u32 v%d, v%d, v%d, s%d' % (vGU, vGU, vT1, sT1))
    g.e('v_lshlrev_b32 v%d, 2, v%d' % (vA3, vT0))
    g.e('v_add_u32 v%d, %d, v%d' % (vA3, L_XN, vA3))
    clears7(g)
    g.wait_vm('x')
    ln_part(g, vX, vXF)
    g.e('v_lshlrev_b32 v%d, 6, v%d' % (vT0, vLane))
    for k in range(4):
        g.e('ds_write_b128 v%d, %s offset:%d' % (vT0, vr(vXF + 4 * k, 4), L_XN + 16 * k))
    g.wait_lgkm(0)
    g.e('ds_read_b128 %s, v%d' % (vr(vXN, 4), vA3))
    attn_addrs5(g)
    make_masks(g)
    g.wait_lgkm(0)
    g.wait_vm('wq')
    gemv_fma(g, vWQ, vACC, vXN)
    allreduce_inrow(g, 'v_add_f32', list(range(vACC, vACC + 8)), [8])
    part_addr(g)
    g.e('v_mov_b32 v%d, v%d' % (vA3, vT0))
    g.e('v_cmp_gt_u32 vcc, 8, v%d' % vL15)
    g.e('s_and_saveexec_b64 s[%d:%d], vcc' % (sEX, sEX + 1))
    for hf in range(2):
        g.e('ds_write_b128 v%d, %s offset:%d' % (vT0, vr(vACC + 4 * hf, 4), L_HQ + hf * 16))
    g.e('s_mov_b64 exec, s[%d:%d]' % (sEX, sEX + 1))
    g.e('s_waitcnt vmcnt(0)')
    def gu_loads():
        for i in range(4):
            g.e('s_mov_b32 s%d, %d' % (sT3, i * 7168))
            g.e('buffer_load_dwordx4 %s, v%d, %s, s%d offen%s' % (vr(vWG + 4 * i, 4), vGU, srd('wg'), sT3, NT), 'wg')
            g.e('buffer_load_dwordx4 %s, v%d, %s, s%d offen%s' % (vr(vWU + 4 * i, 4), vGU, srd('wu'), sT3, NT), 'wu')
    def gu_fma():
        gemv_fma(g, vWG, vACC, vXN)
        gemv_fma(g, vWU, vACC + 8, vXN)
        allreduce_inrow(g, 'v_add_f32', list(range(vACC, vACC + 16)), [8])
        g.e('v_add_u32 v%d, %d, v%d' % (vT0, L_HP6, vA3))
        g.e('v_cmp_gt_u32 vcc, 8, v%d' % vL15)
        g.e('s_and_saveexec_b64 s[%d:%d], vcc' % (sEX, sEX + 1))
        for s_i in range(2):
            for hf in range(2):
                g.e('ds_write_b128 v%d, %s offset:%d' % (vT0, vr(vACC + 8 * s_i + 4 * hf, 4), s_i * 8192 + hf * 16))
        g.e('s_mov_b64 exec, s[%d:%d]' % (sEX, sEX + 1))
    lw0 = g.newlabel('w0path'); ljoin = g.newlabel('join')
    g.e('s_cmp_eq_u32 s%d, 0' % sW)
    g.e('s_cbranch_scc1 %s' % lw0)
    g.c('==== waves 1..7')
    if EARLYGU: gu_loads()
    g.wait_lgkm(0)
    g.e('s_barrier')
    stamp(g, 1)
    g.e('s_barrier')
    if not EARLYGU: gu_loads()
    for T in range(PRE): load_k5(g, T)
    g.wait_vm('wu')
    gu_fma()
    for T in range(PRE, NPF): load_k5(g, T)
    g.wait_lgkm(0)
    g.e('s_barrier')
    for T in range(NPF, 8): load_k5(g, T)
    g.e('s_branch %s' % ljoin)
    g.label(lw0)
    g.c('==== wave 0')
    g.e('v_lshlrev_b32 v%d, 11, v%d' % (vT0, vG))
    g.e('v_lshl_add_u32 v%d, v%d, 4, v%d' % (vT0, vL15, vT0))
    g.e('s_lshl_b32 s%d, s%d, 4' % (sT0, sKV))
    g.e('s_add_u32 s%d, s%d, s%d' % (sT0, sT0, sCBL))
    g.e('s_lshl_b32 s%d, s%d, 8' % (sT1, sT0))
    g.e('s_lshl_b32 s%d, s%d, 14' % (sT2, sKQ))
    g.e('s_add_u32 s%d, s%d, s%d' % (sT2, sT2, sT1))
    g.e('v_lshlrev_b32 v%d, 4, v%d' % (vT2, vLane))
    g.wait_lgkm(0)
    g.e('s_barrier')
    stamp(g, 1)
    R = 64
    for k in range(8):
        g.e('ds_read_b128 %s, v%d offset:%d' % (vr(R + 4 * k, 4), vT0, L_HQ + k * 256))
    g.e('s_lshl_b32 s%d, s%d, 6' % (sT0, sKV))
    g.e('v_mov_b32 v%d, s%d' % (vT4, sT0))
    g.e('v_mov_b32 v%d, 1' % vT3)
    g.e('v_and_b32 v%d, 3, v%d' % (vA2, vLane))
    g.e('v_lshlrev_b32 v%d, 6, v%d' % (vA2, vA2))
    g.wait_lgkm(0)
    for k in range(1, 8):
        for e in range(4):
            g.e('v_add_f32 v%d, v%d, v%d' % (R + e, R + e, R + 4 * k + e))
    allreduce_rows(g, 'v_add_f32', [R + e for e in range(4)], vT1)
    g.e('s_mov_b64 exec, 0xffff')
    g.e('buffer_store_dwordx4 %s, v%d, %s, s%d offen sc1' % (vr(R, 4), vT2, srd('ws'), sT2), 'st')
    g.e('s_waitcnt vmcnt(0)')
    g.e('s_mov_b64 exec, 1')
    g.e('buffer_atomic_add v%d, v%d, %s, 0 offen sc1' % (vT3, vT4, srd('dbg')), 'st')
    g.e('s_mov_b64 exec, -1')
    stamp(g, 2)
    g.e('s_barrier')
    gu_loads()
    g.e('s_waitcnt vmcnt(0)')
    gu_fma()
    lok = g.newlabel('pollok'); lloop = g.newlabel('pollloop')
    g.e('s_mov_b32 s%d, 0' % sCNT)
    g.label(lloop)
    g.e('buffer_load_dword v%d, v%d, %s, 0 offen sc1' % (vT5, vA2, srd('dbg')), 'poll')
    g.e('s_waitcnt vmcnt(0)')
    g.e('v_cmp_gt_u32 vcc, 64, v%d' % vT5)
    g.e('s_cmp_eq_u64 vcc, 0')
    g.e('s_cbranch_scc1 %s' % lok)
    g.e('s_sleep 1')
    spin_tail(g, lloop, lok)
    g.label(lok)
    stamp(g, 3)
    g.e('s_lshl_b32 s%d, s%d, 12' % (sT0, sKV))
    g.e('v_lshlrev_b32 v%d, 6, v%d' % (vT0, vLane))
    g.e('v_add_u32 v%d, s%d, v%d' % (vT0, sT0, vT0))
    for kq in range(4):
        g.e('s_mov_b32 s%d, %d' % (sT3, QP_OFF + kq * 16384))
        for i in range(4):
            g.e('buffer_load_dwordx4 %s, v%d, %s, s%d offen offset:%d sc1' % (vr(R + 16 * kq + 4 * i, 4), vT0, srd('ws'), sT3, 16 * i), 'qg')
    g.e('s_waitcnt vmcnt(0)')
    for e in range(16):
        g.e('v_add_f32 v%d, v%d, v%d' % (R + e, R + e, R + 16 + e))
        g.e('v_add_f32 v%d, v%d, v%d' % (R + 32 + e, R + 32 + e, R + 48 + e))
    for e in range(16):
        g.e('v_add_f32 v%d, v%d, v%d' % (R + e, R + e, R + 32 + e))
    for e in range(8):
        g.e('v_cvt_pk_bf16_f32 v%d, v%d, v%d' % (R + 16 + e, R + 2 * e, R + 2 * e + 1))
    g.e('v_lshlrev_b32 v%d, 5, v%d' % (vT0, vLane))
    g.e('ds_write_b128 v%d, %s offset:%d' % (vT0, vr(R + 16, 4), L_QL))
    g.e('ds_write_b128 v%d, %s offset:%d' % (vT0, vr(R + 20, 4), L_QL + 16))
    g.wait_lgkm(0)
    g.e('s_barrier')
    for T in range(8): load_k5(g, T)
    g.label(ljoin)
    g.c('Q frags')
    g.e('v_lshrrev_b32 v%d, 2, v%d' % (vT0, vL15))
    g.e('v_bfe_u32 v%d, v%d, 1, 1' % (vT1, vL15))
    g.e('v_lshl_add_u32 v%d, v%d, 2, v%d' % (vT0, vT1, vT0))
    g.e('v_lshlrev_b32 v%d, 8, v%d' % (vT1, vT0))
    g.e('v_lshl_add_u32 v%d, v%d, 4, v%d' % (vT1, vG, vT1))
    g.e('v_and_b32 v%d, 1, v%d' % (vT0, vLane))
    g.e('v_lshl_add_u32 v%d, v%d, 6, v%d' % (vT1, vT0, vT1))
    for j in range(2):
        g.e('ds_read_b128 %s, v%d offset:%d' % (vr(vQ + 4 * j, 4), vT1, L_QL + 128 * j))
    g.c('waves 1,2: final reduce of gate / up partials and publish')
    lsk = g.newlabel('nored')
    g.e('s_sub_u32 s%d, s%d, 1' % (sT2, sW))
    g.e('s_cmp_ge_u32 s%d, 2' % sT2)
    g.e('s_cbranch_scc1 %s' % lsk)
    R = 192
    g.e('v_lshlrev_b32 v%d, 11, v%d' % (vT0, vG))
    g.e('v_lshl_add_u32 v%d, v%d, 4, v%d' % (vT0, vL15, vT0))
    g.e('s_lshl_b32 s%d, s%d, 13' % (sT0, sT2))
    g.e('s_add_u32 s%d, s%d, %d' % (sT0, sT0, L_HP6))
    g.e('v_add_u32 v%d, s%d, v%d' % (vT0, sT0, vT0))
    for k in range(8):
        g.e('ds_read_b128 %s, v%d offset:%d' % (vr(R + 4 * k, 4), vT0, k * 256))
    gu_dest(g, 1)
    g.wait_lgkm(0)
    for k in range(1, 8):
        for e in range(4):
            g.e('v_add_f32 v%d, v%d, v%d' % (R + e, R + e, R + 4 * k + e))
    allreduce_rows(g, 'v_add_f32', [R + e for e in range(4)], vT1)
    for e in range(4):
        g.e('v_min_u32 v%d, -2, v%d' % (R + e, R + e))
    g.e('v_lshlrev_b32 v%d, 4, v%d' % (vT2, vLane))
    g.e('s_mov_b64 exec, 0xffff')
    saved = list(g.vm)
    g.e('buffer_store_dwordx4 %s, v%d, %s, s%d offen sc1' % (vr(R, 4), vT2, srd('ws'), sT3), 'st')
    g.vm = saved
    g.e('s_mov_b64 exec, -1')
    g.label(lsk)
    groups = [('V', T) for T in range(8)] + [('wd', 0), ('wo', 0)]
    gi = [0]
    def issue_next():
        if gi[0] >= len(groups): return
        k, T = groups[gi[0]]; gi[0] += 1
        if k == 'V': load_v5(g, T)
        elif k == 'wo': wo_loads5(g)
        else: wd_loads5(g)
    issue_next(); issue_next()
    g.wait_lgkm(0)
    def can_issue(done_qk):
        if gi[0] >= len(groups): return False
        k, T = groups[gi[0]]
        if k == 'V' and T >= 3: return done_qk > T - 3
        if k == 'wo': return done_qk > 5
        if k == 'wd': return done_qk > 6
        return True
    for T in range(8):
        g.wait_vm('K%d' % T)
        qk5(g, T)
        if can_issue(T + 1): issue_next()
        if T > 0: score5(g, T - 1)
    score5(g, 7)
    while gi[0] < len(groups): issue_next()
    softmax_all(g)
    for T in range(8):
        g.wait_vm('V%d' % T)
        pv_tile(g, T)
    stamp(g, 5)
    h_gather7(g)
    attn_combine5(g)
    ffn_mfma(g)
    hop1_gather(g)
    tail1_compute5(g)
    tail2_fused(g)

def main():
    out = HEADER
    out += '; @launch grid=(256,1,1) block=(512,1,1) lds=%d\n' % LDS6
    out += '.amdgcn_target "amdgcn-amd-amdhsa--gfx950"\n.text\n'
    t, kd = kernel(NAME + '_kernel', fused7, ['x', 'K', 'V', 'wq', 'wo', 'wg', 'wu', 'wd', 'out', 'dbg', 'ws'], 0)
    out += t
    out += '.section .rodata,"a"\n.p2align 6\n' + kd
    path = sys.argv[1] if len(sys.argv) > 1 else 'cdna_kernels/%s.s' % NAME
    open(path, 'w').write(out)
    print('wrote', path, len(out))

if __name__ == '__main__':
    main()
```

```python
import sys, os
sys.path.insert(0, 'gen')
import gen1, gen2, gen5, gen6
from gen1 import *
from gen2 import *
from gen5 import *
from gen6 import gu_dest, gemv_fma, row0_calc, part_addr, L_HP6, LDS6
from gen4 import ln_part
EARLYGU = int(os.environ.get('EARLYGU', '0'))
NPF = int(os.environ.get('NPF', '8'))
LATEW = int(os.environ.get('LATEW', '0'))
POLLW = int(os.environ.get('POLLW', '0'))
KEARLY = int(os.environ.get('KEARLY', '0'))
NVPF = int(os.environ.get('NVPF', '0'))
HGW = 1
L_HQ = 0

def clears7(g):
    gen6.CLR = ' sc1'
    gen6.clears6(g)

def h_gather7(g):
    Hh = 64
    lsk = g.newlabel('nohg'); lloop = g.newlabel('hgloop'); lok = g.newlabel('hgok')
    g.e('s_cmp_lg_u32 s%d, %d' % (sW, HGW))
    g.e('s_cbranch_scc1 %s' % lsk)
    g.e('s_mul_i32 s%d, s%d, 448' % (sT0, sH))
    g.e('v_min_u32 v%d, 55, v%d' % (vT1, vLane))
    g.e('v_lshlrev_b32 v%d, 3, v%d' % (vT1, vT1))
    g.e('v_add_u32 v%d, s%d, v%d' % (vT1, sT0, vT1))
    g.e('s_mov_b32 s%d, 0' % sCNT)
    saved = list(g.vm)
    g.label(lloop)
    for kq in range(4):
        g.e('s_mov_b32 s%d, %d' % (sT3, GP_OFF + kq * 3584 * 4))
        g.e('buffer_load_dwordx2 %s, v%d, %s, s%d offen sc1' % (vr(Hh + 2 * kq, 2), vT1, srd('ws'), sT3), 'hg')
        g.e('s_mov_b32 s%d, %d' % (sT3, UP_OFF + kq * 3584 * 4))
        g.e('buffer_load_dwordx2 %s, v%d, %s, s%d offen sc1' % (vr(Hh + 8 + 2 * kq, 2), vT1, srd('ws'), sT3), 'hg')
    g.e('s_waitcnt vmcnt(0)')
    g.e('v_max_u32 v%d, v%d, v%d' % (vT0, Hh, Hh + 1))
    for i in range(1, 8):
        g.e('v_max3_u32 v%d, v%d, v%d, v%d' % (vT0, vT0, Hh + 2 * i, Hh + 2 * i + 1))
    g.e('v_cmp_eq_u32 vcc, -1, v%d' % vT0)
    g.e('s_cmp_eq_u64 vcc, 0')
    g.e('s_cbranch_scc1 %s' % lok)
    g.e('s_sleep 1')
    spin_tail(g, lloop, lok)
    g.label(lok)
    g.vm = saved
    for e in range(2):
        gg = Hh + e; uu = Hh + 8 + e
        g.e('v_add_f32 v%d, v%d, v%d' % (gg, gg, gg + 2))
        g.e('v_add_f32 v%d, v%d, v%d' % (gg + 4, gg + 4, gg + 6))
        g.e('v_add_f32 v%d, v%d, v%d' % (gg, gg, gg + 4))
        g.e('v_add_f32 v%d, v%d, v%d' % (uu, uu, uu + 2))
        g.e('v_add_f32 v%d, v%d, v%d' % (uu + 4, uu + 4, uu + 6))
        g.e('v_add_f32 v%d, v%d, v%d' % (uu, uu, uu + 4))
        round_bf16(g, gg, gg)
        round_bf16(g, uu, uu)
        g.e('v_mul_f32 v%d, v%d, v%d' % (vT2, gg, gg))
        g.e('v_mul_f32 v%d, v%d, v%d' % (vT2, vT2, gg))
        g.e('v_mul_f32 v%d, 0x3d372713, v%d' % (vT2, vT2))
        g.e('v_add_f32 v%d, v%d, v%d' % (vT2, vT2, gg))
        g.e('v_mul_f32 v%d, 0x3f4c422a, v%d' % (vT2, vT2))
        g.e('v_mul_f32 v%d, 0xc038aa3b, v%d' % (vT2, vT2))
        g.e('v_exp_f32 v%d, v%d' % (vT2, vT2))
        g.e('v_add_f32 v%d, 1.0, v%d' % (vT2, vT2))
        g.e('v_rcp_f32 v%d, v%d' % (vT2, vT2))
        g.e('v_mul_f32 v%d, v%d, v%d' % (vT2, vT2, gg))
        round_bf16(g, vT2, vT2)
        g.e('v_mul_f32 v%d, v%d, v%d' % (vT2, vT2, uu))
        g.e('v_cvt_pk_bf16_f32 v%d, v%d, v%d' % (gg, vT2, vT2))
    for e in range(2):
        g.e('v_lshlrev_b32 v%d, 1, v%d' % (vT2, vLane))
        if e: g.e('v_or_b32 v%d, 1, v%d' % (vT2, vT2))
        g.e('v_and_b32 v%d, 0x70, v%d' % (vT3, vT2))
        g.e('v_and_b32 v%d, 3, v%d' % (vT4, vT2))
        g.e('v_lshl_or_b32 v%d, v%d, 2, v%d' % (vT3, vT4, vT3))
        g.e('v_bfe_u32 v%d, v%d, 2, 2' % (vT4, vT2))
        g.e('v_or_b32 v%d, v%d, v%d' % (vT3, vT3, vT4))
        g.e('v_lshlrev_b32 v%d, 2, v%d' % (vT3, vT3))
        g.e('ds_write_b32 v%d, v%d offset:%d' % (vT3, Hh + e, L_HD))
    g.label(lsk)

def hop1_v2(g):
    wd_loads5(g)
    g.e('s_lshl_b32 s%d, s%d, 9' % (sT0, sH))
    g.e('s_add_u32 s%d, s%d, 0x%x' % (sT0, sT0, ML_OFF2))
    g.e('s_mov_b32 s%d, s%d' % (sKQ, sT0))
    g.e('v_lshlrev_b32 v%d, 3, v%d' % (vA0, vLane))
    lsk = g.newlabel('h1skip'); lloop = g.newlabel('h1loop')
    g.e('s_cmp_lg_u32 s%d, 7' % sW)
    g.e('s_cbranch_scc1 %s' % lsk)
    g.e('s_mov_b32 s%d, 0' % sCNT)
    g.label(lloop)
    g.e('buffer_load_dwordx2 %s, v%d, %s, s%d offen sc1' % (vr(vPM, 2), vA0, srd('ws'), sKQ), 'pp')
    g.e('s_waitcnt vmcnt(0)')
    g.e('v_max_u32 v%d, v%d, v%d' % (vT0, vPM, vPM + 1))
    g.e('v_cmp_eq_u32 vcc, -1, v%d' % vT0)
    g.e('s_cmp_eq_u64 vcc, 0')
    g.e('s_cbranch_scc1 %s' % lsk)
    g.e('s_sleep 1')
    spin_tail(g, lloop, lsk)
    g.label(lsk)
    g.vm.pop()
    g.e('s_lshl_b32 s%d, s%d, 15' % (sT1, sH))
    g.e('s_lshl_b32 s%d, s%d, 12' % (sT2, sW))
    g.e('s_add_u32 s%d, s%d, s%d' % (sT1, sT1, sT2))
    g.e('s_add_u32 s%d, s%d, 0x%x' % (sCBL, sT1, O_OFF2))
    g.e('v_lshlrev_b32 v%d, 4, v%d' % (vA1, vLane))
    g.e('s_barrier')
    stamp(g, 6)
    def gl():
        g.e('buffer_load_dwordx2 %s, v%d, %s, s%d offen sc1' % (vr(vPM, 2), vA0, srd('ws'), sKQ), 'pm')
        for i in range(4):
            g.e('buffer_load_dwordx4 %s, v%d, %s, s%d offen offset:%d sc1' % (vr(vPO + 4 * i, 4), vA1, srd('ws'), sCBL, 1024 * i), 'po')
    def chk(lok):
        g.e('v_max_u32 v%d, v%d, v%d' % (vT0, vPM, vPM + 1))
        for i in range(8):
            g.e('v_max3_u32 v%d, v%d, v%d, v%d' % (vT0, vT0, vPO + 2 * i, vPO + 2 * i + 1))
        g.e('v_cmp_eq_u32 vcc, -1, v%d' % vT0)
        g.e('s_cmp_eq_u64 vcc, 0')
        g.e('s_cbranch_scc1 %s' % lok)
    gl()
    wo_loads5(g)
    ffn_mfma(g)
    g.wait_vm('po')
    lloop = g.newlabel('h1loop2'); lok = g.newlabel('h1ok')
    chk(lok)
    g.e('s_mov_b32 s%d, 0' % sCNT)
    saved = list(g.vm)
    g.label(lloop)
    g.e('s_sleep 1')
    gl()
    g.e('s_waitcnt vmcnt(0)')
    chk(lok)
    spin_tail(g, lloop, lok)
    g.label(lok)
    g.vm = saved

def fused7(g):
    vX = 224; vXF = 232; vWQ = 16; vWG = 192; vWU = 208; vACC = 32; vXN = 56
    vGU = 60
    g.e('s_lshr_b32 s%d, s%d, 2' % (sCBL, sU))
    g.e('s_and_b32 s%d, s%d, 3' % (sKQ, sU))
    if EARLYGU == 2: clears7(g)
    g.e('v_lshlrev_b32 v%d, 5, v%d' % (vA0, vLane))
    g.e('buffer_load_dwordx4 %s, v%d, %s, 0 offen' % (vr(vX, 4), vA0, srd('x')), 'x')
    g.e('buffer_load_dwordx4 %s, v%d, %s, 0 offen offset:16' % (vr(vX + 4, 4), vA0, srd('x')), 'x')
    row0_calc(g)
    g.e('v_lshlrev_b32 v%d, 13, v%d' % (vA1, vT0))
    g.e('v_add3_u32 v%d, v%d, v%d, s%d' % (vA1, vA1, vT1, sT1))
    for i in range(4):
        g.e('s_mov_b32 s%d, %d' % (sT3, i * 8192))
        g.e('buffer_load_dwordx4 %s, v%d, %s, s%d offen%s' % (vr(vWQ + 4 * i, 4), vA1, srd('wq'), sT3, NT), 'wq')
    g.e('s_cmp_ge_u32 s%d, %d' % (sT1, 56 * 128))
    g.e('s_cselect_b32 s%d, 0x40000000, s%d' % (sT1, sT1))
    g.e('s_mov_b32 s%d, 7168' % sT2)
    g.e('v_mul_lo_u32 v%d, v%d, s%d' % (vGU, vT0, sT2))
    g.e('v_add3_u32 v%d, v%d, v%d, s%d' % (vGU, vGU, vT1, sT1))
    g.e('v_lshlrev_b32 v%d, 2, v%d' % (vA3, vT0))
    g.e('v_add_u32 v%d, %d, v%d' % (vA3, L_XN, vA3))
    def gu_loads():
        for i in range(4):
            g.e('s_mov_b32 s%d, %d' % (sT3, i * 7168))
            g.e('buffer_load_dwordx4 %s, v%d, %s, s%d offen%s' % (vr(vWG + 4 * i, 4), vGU, srd('wg'), sT3, NT), 'wg')
            g.e('buffer_load_dwordx4 %s, v%d, %s, s%d offen%s' % (vr(vWU + 4 * i, 4), vGU, srd('wu'), sT3, NT), 'wu')
    if EARLYGU == 2: gu_loads()
    else: clears7(g)
    g.wait_vm('x')
    ln_part(g, vX, vXF)
    g.e('v_lshlrev_b32 v%d, 6, v%d' % (vT0, vLane))
    for k in range(4):
        g.e('ds_write_b128 v%d, %s offset:%d' % (vT0, vr(vXF + 4 * k, 4), L_XN + 16 * k))
    g.wait_lgkm(0)
    g.e('ds_read_b128 %s, v%d' % (vr(vXN, 4), vA3))
    attn_addrs5(g)
    make_masks(g)
    g.wait_lgkm(0)
    g.wait_vm('wq')
    gemv_fma(g, vWQ, vACC, vXN)
    allreduce_inrow(g, 'v_add_f32', list(range(vACC, vACC + 8)), [8])
    part_addr(g)
    g.e('v_mov_b32 v%d, v%d' % (vA3, vT0))
    g.e('v_cmp_gt_u32 vcc, 8, v%d' % vL15)
    g.e('s_and_saveexec_b64 s[%d:%d], vcc' % (sEX, sEX + 1))
    for hf in range(2):
        g.e('ds_write_b128 v%d, %s offset:%d' % (vT0, vr(vACC + 4 * hf, 4), L_HQ + hf * 16))
    g.e('s_mov_b64 exec, s[%d:%d]' % (sEX, sEX + 1))
    if EARLYGU != 2: g.e('s_waitcnt vmcnt(0)')
    def gu_fma():
        gemv_fma(g, vWG, vACC, vXN)
        gemv_fma(g, vWU, vACC + 8, vXN)
        allreduce_inrow(g, 'v_add_f32', list(range(vACC, vACC + 16)), [8])
        g.e('v_add_u32 v%d, %d, v%d' % (vT0, L_HP6, vA3))
        g.e('v_cmp_gt_u32 vcc, 8, v%d' % vL15)
        g.e('s_and_saveexec_b64 s[%d:%d], vcc' % (sEX, sEX + 1))
        for s_i in range(2):
            for hf in range(2):
                g.e('ds_write_b128 v%d, %s offset:%d' % (vT0, vr(vACC + 8 * s_i + 4 * hf, 4), s_i * 8192 + hf * 16))
        g.e('s_mov_b64 exec, s[%d:%d]' % (sEX, sEX + 1))
    lw0 = g.newlabel('w0path'); ljoin = g.newlabel('join')
    g.e('s_cmp_eq_u32 s%d, 0' % sW)
    g.e('s_cbranch_scc1 %s' % lw0)
    g.c('==== waves 1..7')
    if EARLYGU == 1: gu_loads()
    g.wait_lgkm(0)
    g.e('s_barrier')
    stamp(g, 1)
    if EARLYGU == 2:
        for T in range(KEARLY): load_k5(g, T)
        g.wait_vm('wu')
        gu_fma()
        g.e('s_barrier')
        for T in range(KEARLY, NPF): load_k5(g, T)
    else:
        g.e('s_barrier')
        if not EARLYGU: gu_loads()
        for T in range(PRE): load_k5(g, T)
        g.wait_vm('wu')
        gu_fma()
        for T in range(PRE, NPF): load_k5(g, T)
    for T in range(NVPF): load_v5(g, T)
    g.wait_lgkm(0)
    g.e('s_barrier')
    assert NPF == 8 or NVPF == 0
    for T in range(NPF, 8): load_k5(g, T)
    g.e('s_branch %s' % ljoin)
    g.label(lw0)
    g.c('==== wave 0')
    g.e('v_lshlrev_b32 v%d, 11, v%d' % (vT0, vG))
    g.e('v_lshl_add_u32 v%d, v%d, 4, v%d' % (vT0, vL15, vT0))
    g.e('s_lshl_b32 s%d, s%d, 4' % (sT0, sKV))
    g.e('s_add_u32 s%d, s%d, s%d' % (sT0, sT0, sCBL))
    g.e('s_lshl_b32 s%d, s%d, 8' % (sT1, sT0))
    g.e('s_lshl_b32 s%d, s%d, 14' % (sT2, sKQ))
    g.e('s_add_u32 s%d, s%d, s%d' % (sT2, sT2, sT1))
    g.e('v_lshlrev_b32 v%d, 4, v%d' % (vT2, vLane))
    g.wait_lgkm(0)
    g.e('s_barrier')
    stamp(g, 1)
    R = 64
    for k in range(8):
        g.e('ds_read_b128 %s, v%d offset:%d' % (vr(R + 4 * k, 4), vT0, L_HQ + k * 256))
    g.e('s_lshl_b32 s%d, s%d, 6' % (sT0, sKV))
    g.e('v_mov_b32 v%d, s%d' % (vT4, sT0))
    g.e('v_mov_b32 v%d, 1' % vT3)
    g.e('v_and_b32 v%d, 3, v%d' % (vA2, vLane))
    g.e('v_lshlrev_b32 v%d, 6, v%d' % (vA2, vA2))
    g.wait_lgkm(0)
    for k in range(1, 8):
        for e in range(4):
            g.e('v_add_f32 v%d, v%d, v%d' % (R + e, R + e, R + 4 * k + e))
    allreduce_rows(g, 'v_add_f32', [R + e for e in range(4)], vT1)
    g.e('s_mov_b64 exec, 0xffff')
    g.e('buffer_store_dwordx4 %s, v%d, %s, s%d offen sc1' % (vr(R, 4), vT2, srd('ws'), sT2), 'st')
    g.e('s_waitcnt vmcnt(0)')
    g.e('s_mov_b64 exec, 1')
    g.e('buffer_atomic_add v%d, v%d, %s, 0 offen sc1' % (vT3, vT4, srd('dbg')), 'st')
    g.e('s_mov_b64 exec, -1')
    stamp(g, 2)
    g.e('s_barrier')
    if EARLYGU != 2:
        gu_loads()
        g.e('s_waitcnt vmcnt(0)')
    gu_fma()
    lok = g.newlabel('pollok'); lloop = g.newlabel('pollloop')
    g.e('s_mov_b32 s%d, 0' % sCNT)
    g.label(lloop)
    g.e('buffer_load_dword v%d, v%d, %s, 0 offen sc1' % (vT5, vA2, srd('dbg')), 'poll')
    g.e('s_waitcnt vmcnt(0)')
    g.e('v_cmp_gt_u32 vcc, 64, v%d' % vT5)
    g.e('s_cmp_eq_u64 vcc, 0')
    g.e('s_cbranch_scc1 %s' % lok)
    g.e('s_sleep 1')
    spin_tail(g, lloop, lok)
    g.label(lok)
    stamp(g, 3)
    g.e('s_lshl_b32 s%d, s%d, 12' % (sT0, sKV))
    g.e('v_lshlrev_b32 v%d, 6, v%d' % (vT0, vLane))
    g.e('v_add_u32 v%d, s%d, v%d' % (vT0, sT0, vT0))
    for kq in range(4):
        g.e('s_mov_b32 s%d, %d' % (sT3, QP_OFF + kq * 16384))
        for i in range(4):
            g.e('buffer_load_dwordx4 %s, v%d, %s, s%d offen offset:%d sc1' % (vr(R + 16 * kq + 4 * i, 4), vT0, srd('ws'), sT3, 16 * i), 'qg')
    g.e('s_waitcnt vmcnt(0)')
    for e in range(16):
        g.e('v_add_f32 v%d, v%d, v%d' % (R + e, R + e, R + 16 + e))
        g.e('v_add_f32 v%d, v%d, v%d' % (R + 32 + e, R + 32 + e, R + 48 + e))
    for e in range(16):
        g.e('v_add_f32 v%d, v%d, v%d' % (R + e, R + e, R + 32 + e))
    for e in range(8):
        g.e('v_cvt_pk_bf16_f32 v%d, v%d, v%d' % (R + 16 + e, R + 2 * e, R + 2 * e + 1))
    g.e('v_lshlrev_b32 v%d, 5, v%d' % (vT0, vLane))
    g.e('ds_write_b128 v%d, %s offset:%d' % (vT0, vr(R + 16, 4), L_QL))
    g.e('ds_write_b128 v%d, %s offset:%d' % (vT0, vr(R + 20, 4), L_QL + 16))
    g.wait_lgkm(0)
    g.e('s_barrier')
    for T in range(8): load_k5(g, T)
    for T in range(NVPF): load_v5(g, T)
    g.label(ljoin)
    g.c('Q frags')
    g.e('v_lshrrev_b32 v%d, 2, v%d' % (vT0, vL15))
    g.e('v_bfe_u32 v%d, v%d, 1, 1' % (vT1, vL15))
    g.e('v_lshl_add_u32 v%d, v%d, 2, v%d' % (vT0, vT1, vT0))
    g.e('v_lshlrev_b32 v%d, 8, v%d' % (vT1, vT0))
    g.e('v_lshl_add_u32 v%d, v%d, 4, v%d' % (vT1, vG, vT1))
    g.e('v_and_b32 v%d, 1, v%d' % (vT0, vLane))
    g.e('v_lshl_add_u32 v%d, v%d, 6, v%d' % (vT1, vT0, vT1))
    for j in range(2):
        g.e('ds_read_b128 %s, v%d offset:%d' % (vr(vQ + 4 * j, 4), vT1, L_QL + 128 * j))
    g.c('waves 1,2: final reduce of gate / up partials and publish')
    lsk = g.newlabel('nored')
    g.e('s_sub_u32 s%d, s%d, 1' % (sT2, sW))
    g.e('s_cmp_ge_u32 s%d, 2' % sT2)
    g.e('s_cbranch_scc1 %s' % lsk)
    R = 32
    g.e('v_lshlrev_b32 v%d, 11, v%d' % (vT0, vG))
    g.e('v_lshl_add_u32 v%d, v%d, 4, v%d' % (vT0, vL15, vT0))
    g.e('s_lshl_b32 s%d, s%d, 13' % (sT0, sT2))
    g.e('s_add_u32 s%d, s%d, %d' % (sT0, sT0, L_HP6))
    g.e('v_add_u32 v%d, s%d, v%d' % (vT0, sT0, vT0))
    for k in range(8):
        g.e('ds_read_b128 %s, v%d offset:%d' % (vr(R + 4 * k, 4), vT0, k * 256))
    gu_dest(g, 1)
    g.wait_lgkm(0)
    for k in range(1, 8):
        for e in range(4):
            g.e('v_add_f32 v%d, v%d, v%d' % (R + e, R + e, R + 4 * k + e))
    allreduce_rows(g, 'v_add_f32', [R + e for e in range(4)], vT1)
    for e in range(4):
        g.e('v_min_u32 v%d, -2, v%d' % (R + e, R + e))
    g.e('v_lshlrev_b32 v%d, 4, v%d' % (vT2, vLane))
    g.e('s_mov_b64 exec, 0xffff')
    saved = list(g.vm)
    g.e('buffer_store_dwordx4 %s, v%d, %s, s%d offen sc1' % (vr(R, 4), vT2, srd('ws'), sT3), 'st')
    g.vm = saved
    g.e('s_mov_b64 exec, -1')
    g.label(lsk)
    groups = [('V', T) for T in range(NVPF, 8)] + ([] if LATEW else [('wd', 0), ('wo', 0)])
    gi = [0]
    def issue_next():
        if gi[0] >= len(groups): return
        k, T = groups[gi[0]]; gi[0] += 1
        if k == 'V': load_v5(g, T)
        elif k == 'wo': wo_loads5(g)
        else: wd_loads5(g)
    for _ in range(max(0, 2 - NVPF)): issue_next()
    g.wait_lgkm(0)
    def can_issue(done_qk):
        if gi[0] >= len(groups): return False
        k, T = groups[gi[0]]
        if k == 'V' and T >= 3: return done_qk > T - 3
        if k == 'wo': return done_qk > 5
        if k == 'wd': return done_qk > 6
        return True
    for T in range(8):
        g.wait_vm('K%d' % T)
        qk5(g, T)
        if can_issue(T + 1): issue_next()
        if T > 0: score5(g, T - 1)
    score5(g, 7)
    while gi[0] < len(groups): issue_next()
    softmax_all(g)
    for T in range(8):
        g.wait_vm('V%d' % T)
        pv_tile(g, T)
    stamp(g, 5)
    h_gather7(g)
    if LATEW == 1 and POLLW:
        l1 = g.newlabel('pw')
        g.e('s_cmp_lg_u32 s%d, %d' % (sW, POLLW))
        g.e('s_cbranch_scc1 %s' % l1)
        saved = list(g.vm)
        wd_loads5(g)
        wo_loads5(g)
        g.vm = saved
        g.label(l1)
    attn_combine5(g)
    if LATEW == 1:
        l2 = g.newlabel('pw')
        if POLLW:
            g.e('s_cmp_eq_u32 s%d, %d' % (sW, POLLW))
            g.e('s_cbranch_scc1 %s' % l2)
        wd_loads5(g)
        wo_loads5(g)
        g.label(l2)
    if LATEW != 2:
        ffn_mfma(g)
        hop1_gather(g)
    else:
        hop1_v2(g)
    tail1_compute5(g)
    tail2_fused(g)

def main():
    out = HEADER
    out += '; @launch grid=(256,1,1) block=(512,1,1) lds=%d\n' % LDS6
    out += '.amdgcn_target "amdgcn-amd-amdhsa--gfx950"\n.text\n'
    t, kd = kernel(NAME + '_kernel', fused7, ['x', 'K', 'V', 'wq', 'wo', 'wg', 'wu', 'wd', 'out', 'dbg', 'ws'], 0)
    out += t
    out += '.section .rodata,"a"\n.p2align 6\n' + kd
    path = sys.argv[1] if len(sys.argv) > 1 else 'cdna_kernels/%s.s' % NAME
    open(path, 'w').write(out)
    print('wrote', path, len(out))

if __name__ == '__main__':
    main()
```

```python
import re

TRANS = ('v_exp_f32', 'v_rcp_f32', 'v_rsq_f32', 'v_sqrt_f32', 'v_log_f32', 'v_sin_f32', 'v_cos_f32')

def _regs(tok):
    tok = tok.strip()
    tok = tok.lstrip('-')
    m = re.fullmatch(r'abs\((.*)\)', tok)
    if m: tok = m.group(1)
    m = re.fullmatch(r'\|(.*)\|', tok)
    if m: tok = m.group(1)
    m = re.fullmatch(r'([vs])(\d+)', tok)
    if m: return m.group(1), {int(m.group(2))}
    m = re.fullmatch(r'([vs])\[(\d+):(\d+)\]', tok)
    if m: return m.group(1), set(range(int(m.group(2)), int(m.group(3)) + 1))
    if tok == 'vcc': return 's', {106, 107}
    if tok == 'exec': return 's', {126, 127}
    return None, set()

class Ins:
    def __init__(self, text):
        self.text = text
        t = text.split(';')[0].strip()
        parts = t.split(None, 1)
        self.op = parts[0]
        rest = parts[1] if len(parts) > 1 else ''
        ops = []
        depth = 0; cur = ''
        for ch in rest:
            if ch == '[': depth += 1
            if ch == ']': depth -= 1
            if ch == ',' and depth == 0:
                ops.append(cur); cur = ''
            else:
                cur += ch
        ops.append(cur)
        mods = ''
        if ops:
            last = ops[-1].strip().split(None, 1)
            if last:
                ops[-1] = last[0]
                mods = last[1] if len(last) > 1 else ''
        self.ops = [o.strip() for o in ops if o.strip()]
        self.mods = mods
        op = self.op
        self.is_mfma = op.startswith('v_mfma')
        self.is_valu = op.startswith('v_') and not self.is_mfma
        self.is_trans = any(op.startswith(x) for x in TRANS)
        self.is_dpp = op.endswith('_dpp')
        self.is_perm = op.startswith('v_permlane')
        self.is_rdl = op.startswith('v_readfirstlane') or op.startswith('v_readlane')
        self.is_vmem = op.startswith('buffer_') or op.startswith('global_')
        self.is_ds = op.startswith('ds_')
        self.is_salu = op.startswith('s_')
        self.states = 1
        if op == 's_nop':
            self.states = int(self.ops[0], 0) + 1
        self.vw = set(); self.vr = set(); self.sw = set(); self.sr = set()
        self.mfma_c = set(); self.mfma_ab = set()
        self.store_wide = set()
        self.load_dst = set()
        P = [_regs(o) for o in self.ops]
        def addr(k, r, wr):
            if k == 'v': (self.vw if wr else self.vr).update(r)
            elif k == 's': (self.sw if wr else self.sr).update(r)
        if self.is_mfma:
            addr(*P[0], True)
            for i in (1, 2):
                addr(*P[i], False); self.mfma_ab |= P[i][1] if P[i][0] == 'v' else set()
            addr(*P[3], False)
            if P[3][0] == 'v': self.mfma_c = P[3][1]
        elif self.is_perm:
            for p in P[:2]:
                addr(*p, True); addr(*p, False)
        elif self.is_valu:
            ndst = 1
            if op.startswith(('v_add_co', 'v_sub_co', 'v_addc_co', 'v_subb_co', 'v_div_scale', 'v_mad_u64')):
                ndst = 2
            for p in P[:ndst]: addr(*p, True)
            for p in P[ndst:]: addr(*p, False)
            if op.startswith(('v_fmac', 'v_pk_fmac', 'v_dot2c')): addr(*P[0], False)
            if self.is_dpp: addr(*P[0], False)
            if op.startswith('v_cndmask') and len(P) == 3: self.sr |= {106, 107}
            if op.startswith('v_writelane'): addr(*P[0], False)
        elif self.is_vmem:
            if '_load' in op:
                if P[0][0] == 'v': self.load_dst = P[0][1]
                for p in P[1:]: addr(*p, False)
            else:
                for p in P: addr(*p, False)
                if 'dwordx4' in op or 'dwordx3' in op:
                    self.store_wide = P[0][1] if op.startswith('buffer') else P[1][1]
                if 'atomic' in op and 'sc0' in mods: self.load_dst = P[0][1]
        elif self.is_ds:
            if op.startswith(('ds_read', 'ds_bpermute', 'ds_permute', 'ds_swizzle')):
                self.load_dst = P[0][1]
                for p in P[1:]: addr(*p, False)
            else:
                for p in P: addr(*p, False)
        elif self.is_salu:
            if op.startswith(('s_cmp', 's_cbranch', 's_branch', 's_waitcnt', 's_nop', 's_barrier', 's_endpgm', 's_sleep', 's_setprio')):
                for p in P: addr(*p, False)
            else:
                if P: addr(*P[0], True)
                for p in P[1:]: addr(*p, False)

def required(prod, cons):
    n = 0
    pv = prod.is_valu
    if pv and prod.vw:
        if cons.is_dpp and (prod.vw & cons.vr): n = max(n, 2)
        if cons.is_perm and (prod.vw & cons.vr): n = max(n, 2)
        if cons.is_mfma and (prod.vw & cons.vr): n = max(n, 2)
        if cons.is_rdl and (prod.vw & cons.vr): n = max(n, 1)
        if prod.is_trans and cons.is_valu and not cons.is_trans and (prod.vw & cons.vr): n = max(n, 1)
        if prod.is_trans and (cons.is_vmem or cons.is_ds) and (prod.vw & cons.vr): n = max(n, 1)
    if pv and prod.sw:
        if cons.is_valu and (prod.sw & cons.sr): n = max(n, 4 if cons.op.startswith(('v_readlane', 'v_writelane')) else 2)
        if cons.is_vmem and (prod.sw & cons.sr): n = max(n, 5)
        if cons.is_salu and (prod.sw & cons.sr): n = max(n, 2)
    if prod.is_mfma:
        D = prod.vw
        if cons.is_mfma:
            if D & cons.mfma_ab: n = max(n, 8)
            if D & cons.mfma_c:
                if not (cons.mfma_c == D and cons.op == prod.op): n = max(n, 6)
            if (D & cons.vw) and not (cons.mfma_c == D and cons.op == prod.op): n = max(n, 8)
        else:
            if D & (cons.vr | cons.vw | cons.load_dst): n = max(n, 8)
            if cons.is_valu and (prod.mfma_c & cons.vw): n = max(n, 3)
    if prod.store_wide:
        if cons.is_valu and (prod.store_wide & cons.vw): n = max(n, 2)
        if prod.store_wide & (cons.load_dst | cons.vw): n = max(n, 1)
    return n

class Gen:
    def __init__(self):
        self.out = []
        self.hist = []
        self.vm = []
    def raw(self, s):
        self.out.append(s)
    def label(self, l):
        self.out.append(l + ':')
        self.flush_hazards()
    def flush_hazards(self):
        need = 0; dist = 0
        for p in reversed(self.hist):
            w = 8 if p.is_mfma else (5 if (p.is_valu and p.sw) else (2 if (p.is_valu or p.store_wide) else 0))
            need = max(need, w - dist)
            dist += p.states
            if dist >= 8: break
        if need > 0:
            self._emit('s_nop %d' % (need - 1))
        self.hist = []
    def _emit(self, s):
        i = Ins(s)
        self.out.append('    ' + s)
        self.hist.append(i)
        if len(self.hist) > 24: self.hist.pop(0)
    def e(self, s, tag=None):
        i = Ins(s)
        if i.op.startswith(('s_cbranch', 's_branch')):
            need = 0; dist = 1
            for p in reversed(self.hist):
                w = 8 if p.is_mfma else (5 if (p.is_valu and p.sw) else (2 if (p.is_valu or p.store_wide) else 0))
                need = max(need, w - dist)
                dist += p.states
                if dist >= 9: break
            if need > 0:
                self._emit('s_nop %d' % (need - 1))
        need = 0; dist = 0
        for p in reversed(self.hist):
            r = required(p, i)
            if r - dist > need: need = r - dist
            dist += p.states
            if dist >= 12: break
        if need > 0:
            self._emit('s_nop %d' % (need - 1))
        self._emit(s)
        if i.is_vmem and not i.op.startswith(('buffer_wbl2', 'buffer_inv')):
            self.vm.append(tag)
        if i.op.startswith(('s_cbranch', 's_branch')):
            pass
    def c(self, s):
        self.out.append('    ; ' + s)
    def wait_vm(self, tag):
        last = max(i for i, t in enumerate(self.vm) if t == tag)
        n = len(self.vm) - 1 - last
        assert n <= 63, n
        self.e('s_waitcnt vmcnt(%d)' % n)
    def wait_vm0(self):
        self.e('s_waitcnt vmcnt(0)')
    def wait_lgkm(self, n=0):
        self.e('s_waitcnt lgkmcnt(%d)' % n)
    def text(self):
        return '\n'.join(self.out) + '\n'
```

```python
import sys, os
sys.path.insert(0, 'gen')
import gen1, gen2, gen3
from gen1 import *
from gen2 import *
from gen3 import head3, H_XN, H_HP

LOOK = int(os.environ.get('LOOK', '4'))
PRE = int(os.environ.get('PRE', '2'))
WMAP = int(os.environ.get('WMAP', '0'))
TS = 4096 * (256 if WMAP == 3 else (64 if WMAP in (4, 6) else 512))
def toff(T):
    if WMAP == 7: return (T >> 1) * 2 * TS + (T & 1) * 4096
    if WMAP == 8: return (T >> 2) * 4 * TS + (T & 3) * 4096
    return T * TS
vDB = 240

def attn_addrs5(g):
    g.c('base = kv<<24 + (8u+w)*4096')
    g.e('s_lshl_b32 s%d, s%d, 24' % (sT0, sKV))
    if WMAP == 0:
        g.e('s_lshl_b32 s%d, s%d, 15' % (sT1, sU))
        g.e('s_add_u32 s%d, s%d, s%d' % (sT0, sT0, sT1))
        g.e('s_lshl_b32 s%d, s%d, 12' % (sT1, sW))
        g.e('s_add_u32 s%d, s%d, s%d' % (sT0, sT0, sT1))
    elif WMAP == 1:
        g.e('s_lshl_b32 s%d, s%d, 14' % (sT1, sU))
        g.e('s_add_u32 s%d, s%d, s%d' % (sT0, sT0, sT1))
        g.e('s_and_b32 s%d, s%d, 3' % (sT1, sW))
        g.e('s_lshl_b32 s%d, s%d, 12' % (sT1, sT1))
        g.e('s_add_u32 s%d, s%d, s%d' % (sT0, sT0, sT1))
        g.e('s_lshr_b32 s%d, s%d, 2' % (sT1, sW))
        g.e('s_lshl_b32 s%d, s%d, 20' % (sT1, sT1))
        g.e('s_add_u32 s%d, s%d, s%d' % (sT0, sT0, sT1))
    elif WMAP == 2:
        g.e('s_lshl_b32 s%d, s%d, 12' % (sT1, sU))
        g.e('s_add_u32 s%d, s%d, s%d' % (sT0, sT0, sT1))
        g.e('s_lshl_b32 s%d, s%d, 18' % (sT1, sW))
        g.e('s_add_u32 s%d, s%d, s%d' % (sT0, sT0, sT1))
    elif WMAP == 3:
        g.e('s_lshl_b32 s%d, s%d, 14' % (sT1, sU))
        g.e('s_add_u32 s%d, s%d, s%d' % (sT0, sT0, sT1))
        g.e('s_and_b32 s%d, s%d, 3' % (sT1, sW))
        g.e('s_lshl_b32 s%d, s%d, 12' % (sT1, sT1))
        g.e('s_add_u32 s%d, s%d, s%d' % (sT0, sT0, sT1))
        g.e('s_lshr_b32 s%d, s%d, 2' % (sT1, sW))
        g.e('s_lshl_b32 s%d, s%d, 23' % (sT1, sT1))
        g.e('s_add_u32 s%d, s%d, s%d' % (sT0, sT0, sT1))
    elif WMAP in (7, 8):
        sh = 13 if WMAP == 7 else 14
        g.e('s_lshl_b32 s%d, s%d, %d' % (sT1, sU, sh))
        g.e('s_add_u32 s%d, s%d, s%d' % (sT0, sT0, sT1))
        g.e('s_lshl_b32 s%d, s%d, %d' % (sT1, sW, sh + 6))
        g.e('s_add_u32 s%d, s%d, s%d' % (sT0, sT0, sT1))
    elif WMAP == 4:
        g.e('s_lshl_b32 s%d, s%d, 12' % (sT1, sU))
        g.e('s_add_u32 s%d, s%d, s%d' % (sT0, sT0, sT1))
        g.e('s_lshl_b32 s%d, s%d, 21' % (sT1, sW))
        g.e('s_add_u32 s%d, s%d, s%d' % (sT0, sT0, sT1))
    elif WMAP == 5:
        g.e('s_lshl_b32 s%d, s%d, 3' % (sT1, sB))
        g.e('s_add_u32 s%d, s%d, s%d' % (sT1, sT1, sX8))
        g.e('s_lshl_b32 s%d, s%d, 12' % (sT1, sT1))
        g.e('s_add_u32 s%d, s%d, s%d' % (sT0, sT0, sT1))
        g.e('s_lshl_b32 s%d, s%d, 18' % (sT1, sW))
        g.e('s_add_u32 s%d, s%d, s%d' % (sT0, sT0, sT1))
    elif WMAP == 6:
        g.e('s_lshl_b32 s%d, s%d, 3' % (sT1, sB))
        g.e('s_add_u32 s%d, s%d, s%d' % (sT1, sT1, sX8))
        g.e('s_lshl_b32 s%d, s%d, 12' % (sT1, sT1))
        g.e('s_add_u32 s%d, s%d, s%d' % (sT0, sT0, sT1))
        g.e('s_lshl_b32 s%d, s%d, 21' % (sT1, sW))
        g.e('s_add_u32 s%d, s%d, s%d' % (sT0, sT0, sT1))
    g.c('K lane: (i&3)*1024 + ((i>>2)&1)*256 + (i>>3)*64 + g*16')
    g.e('v_and_b32 v%d, 3, v%d' % (vT0, vL15))
    g.e('v_lshlrev_b32 v%d, 10, v%d' % (vA0, vT0))
    g.e('v_bfe_u32 v%d, v%d, 2, 1' % (vT0, vL15))
    g.e('v_lshl_add_u32 v%d, v%d, 8, v%d' % (vA0, vT0, vA0))
    g.e('v_bfe_u32 v%d, v%d, 3, 1' % (vT0, vL15))
    g.e('v_lshl_add_u32 v%d, v%d, 6, v%d' % (vA0, vT0, vA0))
    g.e('v_lshl_add_u32 v%d, v%d, 4, v%d' % (vA0, vG, vA0))
    g.e('v_add_u32 v%d, s%d, v%d' % (vA0, sT0, vA0))
    g.e('v_lshlrev_b32 v%d, 4, v%d' % (vA1, vLane))
    g.e('v_add_u32 v%d, s%d, v%d' % (vA1, sT0, vA1))

def load_k5(g, T):
    g.e('s_mov_b32 s%d, %d' % (sT3, toff(T)))
    for j in range(4):
        g.e('buffer_load_dwordx4 %s, v%d, %s, s%d offen offset:%d%s' % (vr(vK + 16 * T + 4 * j, 4), vA0, srd('K'), sT3, (j >> 1) * 512 + (j & 1) * 128, NT), 'K%d' % T)

def load_v5(g, T):
    g.e('s_mov_b32 s%d, %d' % (sT3, toff(T)))
    b = vtile_reg(T)
    for r in range(4):
        g.e('buffer_load_dwordx4 %s, v%d, %s, s%d offen offset:%d%s' % (vr(b + 4 * r, 4), vA1, srd('V'), sT3, 1024 * r, NT), 'V%d' % T)

def qk5(g, T):
    s = vS + 4 * T
    d = vDB + 4 * (T & 1)
    k = vK + 16 * T
    g.e('v_mfma_f32_16x16x32_bf16 %s, %s, %s, 0' % (vr(s, 4), vr(k, 4), vr(vQ, 4)))
    g.e('v_mfma_f32_16x16x32_bf16 %s, %s, %s, 0' % (vr(d, 4), vr(k + 8, 4), vr(vQ, 4)))
    g.e('v_mfma_f32_16x16x32_bf16 %s, %s, %s, %s' % (vr(s, 4), vr(k + 4, 4), vr(vQ + 4, 4), vr(s, 4)))
    g.e('v_mfma_f32_16x16x32_bf16 %s, %s, %s, %s' % (vr(d, 4), vr(k + 12, 4), vr(vQ + 4, 4), vr(d, 4)))

def score5(g, T):
    s = vS + 4 * T
    d = vDB + 4 * (T & 1)
    for r in range(4):
        g.e('v_permlane32_swap_b32 v%d, v%d' % (s + r, d + r))
    for r in range(4):
        g.e('v_add_f32_dpp v%d, v%d, v%d quad_perm:[1,0,3,2] row_mask:0xf bank_mask:0xf' % (s + r, d + r, s + r))
    score_tile(g, T)

def attn_combine5(g):
    g.c('write O partials to LDS: w*WSTR + (4u+hq)*HS + ((2g+a)*4+e0)*16')
    g.e('v_lshrrev_b32 v%d, 2, v%d' % (vT0, vL15))
    g.e('v_and_b32 v%d, 3, v%d' % (vT1, vLane))
    g.e('s_mul_i32 s%d, s%d, %d' % (sT0, sW, WSTR))
    g.e('v_mul_u32_u24 v%d, %d, v%d' % (vT0, HS, vT0))
    g.e('v_lshlrev_b32 v%d, 7, v%d' % (vT2, vG))
    g.e('v_lshl_add_u32 v%d, v%d, 4, v%d' % (vT2, vT1, vT2))
    g.e('v_add3_u32 v%d, v%d, v%d, s%d' % (vT0, vT0, vT2, sT0))
    for u in range(2):
        for a in range(2):
            g.e('ds_write_b128 v%d, %s offset:%d' % (vT0, vr(vQ + 4 * (2 * u + a), 4), L_OP + u * 4 * HS + a * 64))
    g.e('v_lshrrev_b32 v%d, 2, v%d' % (vT0, vL15))
    g.e('v_bfe_u32 v%d, v%d, 1, 1' % (vT1, vL15))
    g.e('v_lshl_add_u32 v%d, v%d, 2, v%d' % (vT0, vT1, vT0))
    g.e('s_lshl_b32 s%d, s%d, 6' % (sT0, sW))
    g.e('v_lshlrev_b32 v%d, 3, v%d' % (vT0, vT0))
    g.e('v_add_u32 v%d, s%d, v%d' % (vT0, sT0, vT0))
    g.e('v_and_b32 v%d, 0x31, v%d' % (vT1, vLane))
    g.e('v_cmp_eq_u32 vcc, 0, v%d' % vT1)
    g.e('s_and_saveexec_b64 s[%d:%d], vcc' % (sEX, sEX + 1))
    g.e('ds_write_b64 v%d, %s offset:%d' % (vT0, vr(vM, 2), L_ML))
    g.e('s_mov_b64 exec, s[%d:%d]' % (sEX, sEX + 1))
    g.c('lane l handles idx 2l,2l+1 : idx = 32a+16(k>>1)+4c+2(k&1)+bq ; pos = 32a+16bq+4c+k')
    g.e('v_and_b32 v%d, 0x30, v%d' % (vT2, vLane))
    g.e('v_lshlrev_b32 v%d, 1, v%d' % (vT2, vT2))
    g.e('v_bfe_u32 v%d, v%d, 1, 2' % (vT3, vLane))
    g.e('v_lshl_or_b32 v%d, v%d, 2, v%d' % (vT2, vT3, vT2))
    g.e('v_bfe_u32 v%d, v%d, 3, 1' % (vT3, vLane))
    g.e('v_lshl_or_b32 v%d, v%d, 1, v%d' % (vT2, vT3, vT2))
    g.e('v_and_b32 v%d, 1, v%d' % (vT3, vLane))
    g.e('v_or_b32 v%d, v%d, v%d' % (vT2, vT2, vT3))
    g.e('s_mul_i32 s%d, s%d, %d' % (sT0, sW, HS))
    g.e('v_lshlrev_b32 v%d, 2, v%d' % (vT2, vT2))
    g.e('v_add_u32 v%d, s%d, v%d' % (vT0, sT0, vT2))
    g.e('s_lshl_b32 s%d, s%d, 3' % (sT1, sW))
    g.e('v_mov_b32 v%d, s%d' % (vT1, sT1))
    g.wait_lgkm(0)
    g.e('s_barrier')
    R = 64; RM = 80
    for w in range(8):
        g.e('ds_read_b64 %s, v%d offset:%d' % (vr(RM + 2 * w, 2), vT1, L_ML + w * 64))
    for w in range(8):
        assert (L_OP + w * WSTR) % 4 == 0
        g.e('v_add_u32 v%d, %d, v%d' % (vT2, L_OP + w * WSTR, vT0) if w else 'v_mov_b32 v%d, v%d' % (vT2, vT0))
        g.e('ds_read2_b32 %s, v%d offset0:0 offset1:16' % (vr(R + 2 * w, 2), vT2))
    g.wait_lgkm(8)
    g.e('v_max3_f32 v%d, v%d, v%d, v%d' % (vM, RM, RM + 2, RM + 4))
    g.e('v_max3_f32 v%d, v%d, v%d, v%d' % (vM, vM, RM + 6, RM + 8))
    g.e('v_max3_f32 v%d, v%d, v%d, v%d' % (vM, vM, RM + 10, RM + 12))
    g.e('v_max_f32 v%d, v%d, v%d' % (vM, vM, RM + 14))
    for w in range(8):
        g.e('v_sub_f32 v%d, v%d, v%d' % (RM + 2 * w, RM + 2 * w, vM))
    for w in range(8):
        g.e('v_mul_f32 v%d, s%d, v%d' % (RM + 2 * w, sL2E, RM + 2 * w))
    for w in range(8):
        g.e('v_exp_f32 v%d, v%d' % (RM + 2 * w, RM + 2 * w))
    g.e('v_mul_f32 v%d, v%d, v%d' % (vLs, RM, RM + 1))
    for w in range(1, 8):
        g.e('v_fmac_f32 v%d, v%d, v%d' % (vLs, RM + 2 * w, RM + 2 * w + 1))
    g.wait_lgkm(0)
    g.e('v_mul_f32 v%d, v%d, v%d' % (vT2, RM, R))
    g.e('v_mul_f32 v%d, v%d, v%d' % (vT3, RM, R + 1))
    for w in range(1, 8):
        g.e('v_fmac_f32 v%d, v%d, v%d' % (vT2, RM + 2 * w, R + 2 * w))
        g.e('v_fmac_f32 v%d, v%d, v%d' % (vT3, RM + 2 * w, R + 2 * w + 1))
    for r in (vT2, vT3, vM, vLs):
        g.e('v_min_u32 v%d, -2, v%d' % (r, r))
    g.e('s_lshl_b32 s%d, s%d, 3' % (sT0, sKV))
    g.e('s_add_u32 s%d, s%d, s%d' % (sT0, sT0, sW))
    g.e('s_lshl_b32 s%d, s%d, 6' % (sT0, sT0))
    g.e('s_add_u32 s%d, s%d, s%d' % (sT0, sT0, sU))
    g.e('s_lshl_b32 s%d, s%d, 9' % (sT1, sT0))
    g.e('s_add_u32 s%d, s%d, 0x%x' % (sT1, sT1, O_OFF2))
    g.e('s_lshl_b32 s%d, s%d, 3' % (sT2, sT0))
    g.e('s_add_u32 s%d, s%d, 0x%x' % (sT2, sT2, ML_OFF2))
    g.e('v_lshlrev_b32 v%d, 3, v%d' % (vT0, vLane))
    g.e('buffer_store_dwordx2 %s, v%d, %s, s%d offen sc1' % (vr(vT2, 2), vT0, srd('ws'), sT1), 'st')
    g.e('s_mov_b64 exec, 1')
    g.e('buffer_store_dwordx2 %s, v%d, %s, s%d offen sc1' % (vr(vM, 2), vT0, srd('ws'), sT2), 'st')
    g.e('s_mov_b64 exec, -1')

def ffn_mfma(g):
    g.e('s_lshl_b32 s%d, s%d, 6' % (sT0, sW))
    g.e('v_lshlrev_b32 v%d, 4, v%d' % (vA3, vG))
    g.e('v_add_u32 v%d, s%d, v%d' % (vA3, sT0, vA3))
    g.e('ds_read_b128 %s, v%d offset:%d' % (vr(vHD, 4), vA3, L_HD))
    g.e('s_cmp_eq_u32 s%d, 7' % sW)
    g.e('s_cselect_b32 s%d, 0, -1' % sT0)
    g.wait_vm('wd')
    g.wait_lgkm(0)
    for jj in range(4):
        g.e('v_and_b32 v%d, s%d, v%d' % (vHD + jj, sT0, vHD + jj))
    for jj in range(4):
        bb = vB + 2 * (jj & 1)
        g.e('v_and_b32 v%d, v%d, v%d' % (bb, vHD + jj, vMask0))
        g.e('v_and_b32 v%d, v%d, v%d' % (bb + 1, vHD + jj, vMask1))
        for a in range(2):
            acc = vAC + 8 + 4 * a
            g.e('v_mfma_f32_16x16x16_bf16 %s, %s, %s, %s' % (vr(acc, 4), vr(vWD + 4 * jj + 2 * a, 2), vr(bb, 2), '0' if jj == 0 else vr(acc, 4)))
    g.c('write B partial to RED2 now')
    g.e('s_lshl_b32 s%d, s%d, 10' % (sT0, sW))
    g.e('v_lshlrev_b32 v%d, 7, v%d' % (vA2, vG))
    g.e('v_lshl_add_u32 v%d, v%d, 4, v%d' % (vA2, vL15, vA2))
    g.e('v_add_u32 v%d, s%d, v%d' % (vA2, sT0, vA2))
    g.e('v_cmp_gt_u32 vcc, 4, v%d' % vL15)
    g.e('s_and_saveexec_b64 s[%d:%d], vcc' % (sEX, sEX + 1))
    g.e('s_mov_b64 s[%d:%d], exec' % (sM0, sM0 + 1))
    for a in range(2):
        g.e('ds_write_b128 v%d, %s offset:%d' % (vA2, vr(vAC + 8 + 4 * a, 4), L_RED2 + 512 + a * 64))
    g.e('s_mov_b64 exec, s[%d:%d]' % (sEX, sEX + 1))

def tail1_compute5(g):
    vWt = vT4; vLsum = vT5
    g.e('v_mov_b32 v%d, v%d' % (vT2, vPM))
    allreduce_inrow(g, 'v_max_f32', [vT2], [8, 4, 2, 1])
    allreduce_rows(g, 'v_max_f32', [vT2], vT3)
    g.e('v_sub_f32 v%d, v%d, v%d' % (vWt, vPM, vT2))
    g.e('v_mul_f32 v%d, s%d, v%d' % (vWt, sL2E, vWt))
    g.e('v_exp_f32 v%d, v%d' % (vWt, vWt))
    g.e('v_lshrrev_b32 v%d, 5, v%d' % (vT0, vLane))
    g.e('s_lshl_b32 s%d, s%d, 3' % (sT0, sW))
    g.e('v_add_lshl_u32 v%d, v%d, s%d, 2' % (vT0, vT0, sT0))
    W4 = vOD
    for i in range(4):
        if i: g.e('v_add_u32 v%d, 8, v%d' % (vT0, vT0))
        g.e('ds_bpermute_b32 v%d, v%d, v%d' % (W4 + i, vT0, vWt))
    g.e('v_mul_f32 v%d, v%d, v%d' % (vLsum, vWt, vPM + 1))
    allreduce_inrow(g, 'v_add_f32', [vLsum], [8, 4, 2, 1])
    allreduce_rows(g, 'v_add_f32', [vLsum], vT3)
    g.e('v_rcp_f32 v%d, v%d' % (vT1, vLsum))
    g.wait_lgkm(0)
    A = vAC
    for k in range(4):
        g.e('v_mul_f32 v%d, v%d, v%d' % (A + k, W4, vPO + k))
    for i in range(1, 4):
        for k in range(4):
            g.e('v_fmac_f32 v%d, v%d, v%d' % (A + k, W4 + i, vPO + 4 * i + k))
    for k in range(4):
        g.e('v_mov_b32 v%d, v%d' % (A + 4 + k, A + k))
    for k in range(4):
        g.e('v_permlane32_swap_b32 v%d, v%d' % (A + k, A + 4 + k))
    for k in range(4):
        g.e('v_add_f32 v%d, v%d, v%d' % (A + k, A + k, A + 4 + k))
    g.e('s_lshl_b32 s%d, s%d, 9' % (sT0, sW))
    g.e('v_lshlrev_b32 v%d, 4, v%d' % (vT0, vLane))
    g.e('v_add_u32 v%d, s%d, v%d' % (vT0, sT0, vT0))
    g.e('s_mov_b64 exec, 0xffffffff')
    g.e('ds_write_b128 v%d, %s offset:%d' % (vT0, vr(A, 4), L_RED))
    g.e('s_mov_b64 exec, -1')
    g.wait_lgkm(0)
    g.e('s_barrier')
    R = 64
    for w in range(8):
        g.e('ds_read_b128 %s, v%d offset:%d' % (vr(R + 4 * w, 4), vA3, L_RED + 512 * w))
    g.wait_lgkm(4)
    for w in range(1, 4):
        for k in range(4):
            g.e('v_add_f32 v%d, v%d, v%d' % (R + k, R + k, R + 4 * w + k))
    g.wait_lgkm(0)
    for w in range(5, 8):
        for k in range(4):
            g.e('v_add_f32 v%d, v%d, v%d' % (R + 16 + k, R + 16 + k, R + 4 * w + k))
    for k in range(4):
        g.e('v_add_f32 v%d, v%d, v%d' % (R + k, R + k, R + 16 + k))
    for k in range(4):
        g.e('v_mul_f32 v%d, v%d, v%d' % (R + 4 + k, R + k, vT1))
    for k in range(4):
        g.e('v_fma_f32 v%d, -v%d, v%d, v%d' % (R + 8 + k, R + 4 + k, vLsum, R + k))
    for k in range(4):
        g.e('v_fma_f32 v%d, v%d, v%d, v%d' % (R + 4 + k, R + 8 + k, vT1, R + 4 + k))
    for k in range(4):
        g.e('v_cvt_pk_bf16_f32 v%d, v%d, v%d' % (R + 4 + k, R + 4 + k, R + 4 + k))
    for jj in range(4):
        g.e('v_and_b32 v%d, v%d, v%d' % (R + 8 + 2 * jj, R + 4 + jj, vMask0))
        g.e('v_and_b32 v%d, v%d, v%d' % (R + 9 + 2 * jj, R + 4 + jj, vMask1))
    g.wait_vm('wo')
    for jj in range(4):
        for a in range(2):
            acc = vAC + 4 * a
            g.e('v_mfma_f32_16x16x16_bf16 %s, %s, %s, %s' % (vr(acc, 4), vr(vWO + 4 * jj + 2 * a, 2), vr(R + 8 + 2 * jj, 2), '0' if jj == 0 else vr(acc, 4)))
    g.e('s_mov_b64 exec, s[%d:%d]' % (sM0, sM0 + 1))
    for a in range(2):
        g.e('ds_write_b128 v%d, %s offset:%d' % (vA2, vr(vAC + 4 * a, 4), L_RED2 + a * 64))
    g.e('s_mov_b64 exec, -1')
    g.e('v_and_b32 v%d, 0xe0, v0' % vT2)
    g.e('v_and_b32 v%d, 3, v0' % vT3)
    g.e('v_lshl_or_b32 v%d, v%d, 3, v%d' % (vT2, vT3, vT2))
    g.e('v_bfe_u32 v%d, v0, 4, 1' % vT3)
    g.e('v_lshl_or_b32 v%d, v%d, 2, v%d' % (vT2, vT3, vT2))
    g.e('v_bfe_u32 v%d, v0, 2, 2' % vT3)
    g.e('v_or_b32 v%d, v%d, v%d' % (vT2, vT2, vT3))
    g.e('v_lshlrev_b32 v%d, 2, v%d' % (vT2, vT2))
    g.e('s_lshl_b32 s%d, s%d, 5' % (sT0, sB))
    g.e('s_add_u32 s%d, s%d, s%d' % (sT0, sT0, sH))
    g.e('s_lshl_b32 s%d, s%d, 10' % (sT0, sT0))
    g.e('s_add_u32 s%d, s%d, 0x%x' % (sT0, sT0, P2_OFF2))
    g.e('v_lshlrev_b32 v%d, 2, v0' % vT0)
    g.wait_lgkm(0)
    g.e('s_barrier')
    g.e('s_cmp_ge_u32 s%d, 4' % sW)
    g.e('s_cbranch_scc1 %s' % g.endlabel2)
    for w in range(8):
        g.e('ds_read_b32 v%d, v%d offset:%d' % (vPO + w, vT0, L_RED2 + 1024 * w))
    g.wait_lgkm(0)
    g.e('v_add_f32 v%d, v%d, v%d' % (vPO, vPO, vPO + 1))
    g.e('v_add_f32 v%d, v%d, v%d' % (vPO + 2, vPO + 2, vPO + 3))
    g.e('v_add_f32 v%d, v%d, v%d' % (vPO + 4, vPO + 4, vPO + 5))
    g.e('v_add_f32 v%d, v%d, v%d' % (vPO + 6, vPO + 6, vPO + 7))
    g.e('v_add_f32 v%d, v%d, v%d' % (vPO, vPO, vPO + 2))
    g.e('v_add_f32 v%d, v%d, v%d' % (vPO + 4, vPO + 4, vPO + 6))
    g.e('v_add_f32 v%d, v%d, v%d' % (vPO, vPO, vPO + 4))
    g.e('v_min_u32 v%d, -2, v%d' % (vPO, vPO))
    stamp(g, 4)
    g.e('buffer_store_dword v%d, v%d, %s, s%d offen sc1' % (vPO, vT2, srd('ws'), sT0), 'st')
    g.e('s_cmp_lg_u32 s%d, 0' % sW)
    g.e('s_cbranch_scc1 %s' % g.endlabel2)

def main_kernel5(g):
    G = 32; Hh = 40
    g.c('q gather: QP + (kq*4096 + 1024kv + 2t)*4')
    g.e('s_lshl_b32 s%d, s%d, 12' % (sT0, sKV))
    g.e('v_lshlrev_b32 v%d, 3, v0' % vT0)
    g.e('v_add_u32 v%d, s%d, v%d' % (vT0, sT0, vT0))
    for kq in range(4):
        g.e('s_mov_b32 s%d, %d' % (sT3, QP_OFF + kq * 16384))
        g.e('buffer_load_dwordx2 %s, v%d, %s, s%d offen' % (vr(G + 2 * kq, 2), vT0, srd('ws'), sT3), 'qg')
    attn_addrs5(g)
    groups = [('K', T) for T in range(8)] + [('V', T) for T in range(8)] + [('wd', 0), ('wo', 0)]
    gi = [0]
    def issue_next():
        if gi[0] >= len(groups): return
        k, T = groups[gi[0]]; gi[0] += 1
        if k == 'K': load_k5(g, T)
        elif k == 'V': load_v5(g, T)
        elif k == 'wo': wo_loads5(g)
        else: wd_loads5(g)
    issue_next()
    g.c('h gather (wave 7 only; OOB otherwise)')
    g.e('s_mul_i32 s%d, s%d, 448' % (sT0, sH))
    g.e('s_cmp_lg_u32 s%d, 7' % sW)
    g.e('s_cselect_b32 s%d, 0x40000000, s%d' % (sT0, sT0))
    g.e('v_lshlrev_b32 v%d, 3, v%d' % (vT1, vLane))
    g.e('v_add_u32 v%d, s%d, v%d' % (vT1, sT0, vT1))
    for kq in range(4):
        g.e('s_mov_b32 s%d, %d' % (sT3, GP_OFF + kq * 3584 * 4))
        g.e('buffer_load_dwordx2 %s, v%d, %s, s%d offen' % (vr(Hh + 2 * kq, 2), vT1, srd('ws'), sT3), 'hg')
        g.e('s_mov_b32 s%d, %d' % (sT3, UP_OFF + kq * 3584 * 4))
        g.e('buffer_load_dwordx2 %s, v%d, %s, s%d offen' % (vr(Hh + 8 + 2 * kq, 2), vT1, srd('ws'), sT3), 'hg')
    for _ in range(PRE - 1): issue_next()
    make_masks(g)
    g.wait_vm('qg')
    g.e('v_add_f32 v%d, v%d, v%d' % (G, G, G + 2))
    g.e('v_add_f32 v%d, v%d, v%d' % (G + 1, G + 1, G + 3))
    g.e('v_add_f32 v%d, v%d, v%d' % (G + 4, G + 4, G + 6))
    g.e('v_add_f32 v%d, v%d, v%d' % (G + 5, G + 5, G + 7))
    g.e('v_add_f32 v%d, v%d, v%d' % (G, G, G + 4))
    g.e('v_add_f32 v%d, v%d, v%d' % (G + 1, G + 1, G + 5))
    g.e('v_cvt_pk_bf16_f32 v%d, v%d, v%d' % (G, G, G + 1))
    g.e('v_lshlrev_b32 v%d, 2, v0' % vT0)
    g.e('ds_write_b32 v%d, v%d offset:%d' % (vT0, G, L_QL))
    lsk = g.newlabel('nohg')
    g.e('s_cmp_lg_u32 s%d, 7' % sW)
    g.e('s_cbranch_scc1 %s' % lsk)
    g.wait_vm('hg')
    for e in range(2):
        gg = Hh + e; uu = Hh + 8 + e
        g.e('v_add_f32 v%d, v%d, v%d' % (gg, gg, gg + 2))
        g.e('v_add_f32 v%d, v%d, v%d' % (gg + 4, gg + 4, gg + 6))
        g.e('v_add_f32 v%d, v%d, v%d' % (gg, gg, gg + 4))
        g.e('v_add_f32 v%d, v%d, v%d' % (uu, uu, uu + 2))
        g.e('v_add_f32 v%d, v%d, v%d' % (uu + 4, uu + 4, uu + 6))
        g.e('v_add_f32 v%d, v%d, v%d' % (uu, uu, uu + 4))
        round_bf16(g, gg, gg)
        round_bf16(g, uu, uu)
        g.e('v_mul_f32 v%d, v%d, v%d' % (vT2, gg, gg))
        g.e('v_mul_f32 v%d, v%d, v%d' % (vT2, vT2, gg))
        g.e('v_mul_f32 v%d, 0x3d372713, v%d' % (vT2, vT2))
        g.e('v_add_f32 v%d, v%d, v%d' % (vT2, vT2, gg))
        g.e('v_mul_f32 v%d, 0x3f4c422a, v%d' % (vT2, vT2))
        g.e('v_mul_f32 v%d, 0xc038aa3b, v%d' % (vT2, vT2))
        g.e('v_exp_f32 v%d, v%d' % (vT2, vT2))
        g.e('v_add_f32 v%d, 1.0, v%d' % (vT2, vT2))
        g.e('v_rcp_f32 v%d, v%d' % (vT2, vT2))
        g.e('v_mul_f32 v%d, v%d, v%d' % (vT2, vT2, gg))
        round_bf16(g, vT2, vT2)
        g.e('v_mul_f32 v%d, v%d, v%d' % (vT2, vT2, uu))
        g.e('v_cvt_pk_bf16_f32 v%d, v%d, v%d' % (gg, vT2, vT2))
    for e in range(2):
        g.e('v_lshlrev_b32 v%d, 1, v%d' % (vT2, vLane))
        if e: g.e('v_or_b32 v%d, 1, v%d' % (vT2, vT2))
        g.e('v_and_b32 v%d, 0x70, v%d' % (vT3, vT2))
        g.e('v_and_b32 v%d, 3, v%d' % (vT4, vT2))
        g.e('v_lshl_or_b32 v%d, v%d, 2, v%d' % (vT3, vT4, vT3))
        g.e('v_bfe_u32 v%d, v%d, 2, 2' % (vT4, vT2))
        g.e('v_or_b32 v%d, v%d, v%d' % (vT3, vT3, vT4))
        g.e('v_lshlrev_b32 v%d, 2, v%d' % (vT3, vT3))
        g.e('ds_write_b32 v%d, v%d offset:%d' % (vT3, Hh + e, L_HD))
    g.label(lsk)
    g.c('Q frag addr: eta*256 + (n&1)*64 + g*16 (+128 jj)')
    g.e('v_lshrrev_b32 v%d, 2, v%d' % (vT0, vL15))
    g.e('v_bfe_u32 v%d, v%d, 1, 1' % (vT1, vL15))
    g.e('v_lshl_add_u32 v%d, v%d, 2, v%d' % (vT0, vT1, vT0))
    g.e('v_lshlrev_b32 v%d, 8, v%d' % (vT1, vT0))
    g.e('v_lshl_add_u32 v%d, v%d, 4, v%d' % (vT1, vG, vT1))
    g.e('v_and_b32 v%d, 1, v%d' % (vT0, vLane))
    g.e('v_lshl_add_u32 v%d, v%d, 6, v%d' % (vT1, vT0, vT1))
    g.wait_lgkm(0)
    g.e('s_barrier')
    for j in range(2):
        g.e('ds_read_b128 %s, v%d offset:%d' % (vr(vQ + 4 * j, 4), vT1, L_QL + 128 * j))
    stamp(g, 1)
    for _ in range(LOOK - PRE): issue_next()
    g.wait_lgkm(0)
    def can_issue(done_qk):
        if gi[0] >= len(groups): return False
        k, T = groups[gi[0]]
        if k == 'V' and T >= 3: return done_qk > T - 3
        if k == 'wo': return done_qk > 5
        if k == 'wd': return done_qk > 6
        return True
    for T in range(8):
        g.wait_vm('K%d' % T)
        if T == 2: g.wait_vm('hg')
        qk5(g, T)
        if can_issue(T + 1): issue_next()
        if T > 0: score5(g, T - 1)
    stamp(g, 2)
    score5(g, 7)
    issue_next()
    softmax_all(g)
    for T in range(8):
        g.wait_vm('V%d' % T)
        pv_tile(g, T)
        issue_next()
    while gi[0] < len(groups): issue_next()
    stamp(g, 5)
    attn_combine5(g)
    ffn_mfma(g)
    hop1_gather(g)
    tail1_compute5(g)
    tail2_fused(g)

def wo_loads5(g):
    g.c('wo: row = 128h+16w+4jj+g ; voff = row*2048 + b*256 + c*16')
    g.e('v_lshlrev_b32 v%d, 11, v%d' % (vA3, vG))
    g.e('v_lshl_add_u32 v%d, v%d, 4, v%d' % (vA3, vL15, vA3))
    g.e('s_lshl_b32 s%d, s%d, 7' % (sT0, sH))
    g.e('s_lshl_b32 s%d, s%d, 4' % (sT1, sW))
    g.e('s_add_u32 s%d, s%d, s%d' % (sT0, sT0, sT1))
    g.e('s_lshl_b32 s%d, s%d, 11' % (sT0, sT0))
    g.e('s_lshl_b32 s%d, s%d, 8' % (sT2, sB))
    g.e('s_add_u32 s%d, s%d, s%d' % (sT0, sT0, sT2))
    g.e('v_add_u32 v%d, s%d, v%d' % (vA2, sT0, vA3))
    for jj in range(4):
        g.e('s_mov_b32 s%d, %d' % (sT3, jj * 8192))
        g.e('buffer_load_dwordx4 %s, v%d, %s, s%d offen%s' % (vr(vWO + 4 * jj, 4), vA2, srd('wo'), sT3, NT), 'wo')

def wd_loads5(g):
    g.c('wd: row = 112h+16w+4jj+g (w<7)')
    g.e('v_lshlrev_b32 v%d, 11, v%d' % (vA3, vG))
    g.e('v_lshl_add_u32 v%d, v%d, 4, v%d' % (vA3, vL15, vA3))
    g.e('s_mul_i32 s%d, s%d, 112' % (sT0, sH))
    g.e('s_lshl_b32 s%d, s%d, 4' % (sT1, sW))
    g.e('s_add_u32 s%d, s%d, s%d' % (sT0, sT0, sT1))
    g.e('s_lshl_b32 s%d, s%d, 11' % (sT0, sT0))
    g.e('s_lshl_b32 s%d, s%d, 8' % (sT2, sB))
    g.e('s_add_u32 s%d, s%d, s%d' % (sT0, sT0, sT2))
    g.e('s_cmp_eq_u32 s%d, 7' % sW)
    g.e('s_cselect_b32 s%d, 0x40000000, s%d' % (sT0, sT0))
    g.e('v_add_u32 v%d, s%d, v%d' % (vA2, sT0, vA3))
    for jj in range(4):
        g.e('s_mov_b32 s%d, %d' % (sT3, jj * 8192))
        g.e('buffer_load_dwordx4 %s, v%d, %s, s%d offen%s' % (vr(vWD + 4 * jj, 4), vA2, srd('wd'), sT3, NT), 'wd')

def main():
    ks = [
        ('head_kernel', head3, ['x', 'wq', 'wg', 'wu', 'ws', 'K'], 512, 28672, 128),
        ('main_kernel', main_kernel5, ['x', 'K', 'V', 'wo', 'wd', 'out', 'ws'], 512, LDS_BYTES, 256),
    ]
    out = HEADER
    for n, _, _, blk, lds, nv in ks:
        out += '; @launch kernel=%s grid=(256,1,1) block=(%d,1,1) lds=%d\n' % (n, blk, lds)
    out += '.amdgcn_target "amdgcn-amd-amdhsa--gfx950"\n.text\n'
    kds = ''
    for kidx, (n, body, used, blk, lds, nv) in enumerate(ks):
        t, kd = kernel(n, body, used, kidx, nv)
        out += t
        kds += '.p2align 6\n' + kd
    out += '.section .rodata,"a"\n' + kds
    path = sys.argv[1] if len(sys.argv) > 1 else 'cdna_kernels/%s.s' % NAME
    open(path, 'w').write(out)
    print('wrote', path, len(out))

if __name__ == '__main__':
    main()
```

```python
import sys, os
sys.path.insert(0, 'gen')
import gen1, gen2, gen5, gen6
from gen1 import *
from gen2 import *
from gen5 import *
from gen6 import gu_dest, gemv_fma, row0_calc, part_addr, L_HP6, LDS6
from gen4 import ln_part
EARLYGU = int(os.environ.get('EARLYGU', '0'))
NPF = int(os.environ.get('NPF', '8'))
LATEW = int(os.environ.get('LATEW', '0'))
POLLW = int(os.environ.get('POLLW', '0'))
KEARLY = int(os.environ.get('KEARLY', '0'))
NVPF = int(os.environ.get('NVPF', '0'))
HGW = 1
L_HQ = 0

def clears7(g):
    gen6.CLR = ' sc1'
    gen6.clears6(g)

def h_gather7(g):
    Hh = 64
    lsk = g.newlabel('nohg'); lloop = g.newlabel('hgloop'); lok = g.newlabel('hgok')
    g.e('s_cmp_lg_u32 s%d, %d' % (sW, HGW))
    g.e('s_cbranch_scc1 %s' % lsk)
    if EARLYGU == 3:
        lp = g.newlabel('cb'); lq = g.newlabel('cbok')
        g.e('v_and_b32 v%d, 3, v%d' % (vT1, vLane))
        g.e('v_lshlrev_b32 v%d, 6, v%d' % (vT1, vT1))
        g.e('s_mov_b32 s%d, 0' % sCNT)
        sv = list(g.vm)
        g.label(lp)
        g.e('buffer_load_dword v%d, v%d, %s, 0 offen offset:4 sc1' % (vT5, vT1, srd('dbg')), 'poll')
        g.e('s_waitcnt vmcnt(0)')
        g.e('v_cmp_gt_u32 vcc, 64, v%d' % vT5)
        g.e('s_cmp_eq_u64 vcc, 0')
        g.e('s_cbranch_scc1 %s' % lq)
        g.e('s_sleep 1')
        spin_tail(g, lp, lq)
        g.label(lq)
        g.vm = sv
    g.e('s_mul_i32 s%d, s%d, 448' % (sT0, sH))
    g.e('v_min_u32 v%d, 55, v%d' % (vT1, vLane))
    g.e('v_lshlrev_b32 v%d, 3, v%d' % (vT1, vT1))
    g.e('v_add_u32 v%d, s%d, v%d' % (vT1, sT0, vT1))
    g.e('s_mov_b32 s%d, 0' % sCNT)
    saved = list(g.vm)
    g.label(lloop)
    for kq in range(4):
        g.e('s_mov_b32 s%d, %d' % (sT3, GP_OFF + kq * 3584 * 4))
        g.e('buffer_load_dwordx2 %s, v%d, %s, s%d offen sc1' % (vr(Hh + 2 * kq, 2), vT1, srd('ws'), sT3), 'hg')
        g.e('s_mov_b32 s%d, %d' % (sT3, UP_OFF + kq * 3584 * 4))
        g.e('buffer_load_dwordx2 %s, v%d, %s, s%d offen sc1' % (vr(Hh + 8 + 2 * kq, 2), vT1, srd('ws'), sT3), 'hg')
    g.e('s_waitcnt vmcnt(0)')
    g.e('v_max_u32 v%d, v%d, v%d' % (vT0, Hh, Hh + 1))
    for i in range(1, 8):
        g.e('v_max3_u32 v%d, v%d, v%d, v%d' % (vT0, vT0, Hh + 2 * i, Hh + 2 * i + 1))
    g.e('v_cmp_eq_u32 vcc, -1, v%d' % vT0)
    g.e('s_cmp_eq_u64 vcc, 0')
    g.e('s_cbranch_scc1 %s' % lok)
    g.e('s_sleep 1')
    spin_tail(g, lloop, lok)
    g.label(lok)
    g.vm = saved
    for e in range(2):
        gg = Hh + e; uu = Hh + 8 + e
        g.e('v_add_f32 v%d, v%d, v%d' % (gg, gg, gg + 2))
        g.e('v_add_f32 v%d, v%d, v%d' % (gg + 4, gg + 4, gg + 6))
        g.e('v_add_f32 v%d, v%d, v%d' % (gg, gg, gg + 4))
        g.e('v_add_f32 v%d, v%d, v%d' % (uu, uu, uu + 2))
        g.e('v_add_f32 v%d, v%d, v%d' % (uu + 4, uu + 4, uu + 6))
        g.e('v_add_f32 v%d, v%d, v%d' % (uu, uu, uu + 4))
        round_bf16(g, gg, gg)
        round_bf16(g, uu, uu)
        g.e('v_mul_f32 v%d, v%d, v%d' % (vT2, gg, gg))
        g.e('v_mul_f32 v%d, v%d, v%d' % (vT2, vT2, gg))
        g.e('v_mul_f32 v%d, 0x3d372713, v%d' % (vT2, vT2))
        g.e('v_add_f32 v%d, v%d, v%d' % (vT2, vT2, gg))
        g.e('v_mul_f32 v%d, 0x3f4c422a, v%d' % (vT2, vT2))
        g.e('v_mul_f32 v%d, 0xc038aa3b, v%d' % (vT2, vT2))
        g.e('v_exp_f32 v%d, v%d' % (vT2, vT2))
        g.e('v_add_f32 v%d, 1.0, v%d' % (vT2, vT2))
        g.e('v_rcp_f32 v%d, v%d' % (vT2, vT2))
        g.e('v_mul_f32 v%d, v%d, v%d' % (vT2, vT2, gg))
        round_bf16(g, vT2, vT2)
        g.e('v_mul_f32 v%d, v%d, v%d' % (vT2, vT2, uu))
        g.e('v_cvt_pk_bf16_f32 v%d, v%d, v%d' % (gg, vT2, vT2))
    for e in range(2):
        g.e('v_lshlrev_b32 v%d, 1, v%d' % (vT2, vLane))
        if e: g.e('v_or_b32 v%d, 1, v%d' % (vT2, vT2))
        g.e('v_and_b32 v%d, 0x70, v%d' % (vT3, vT2))
        g.e('v_and_b32 v%d, 3, v%d' % (vT4, vT2))
        g.e('v_lshl_or_b32 v%d, v%d, 2, v%d' % (vT3, vT4, vT3))
        g.e('v_bfe_u32 v%d, v%d, 2, 2' % (vT4, vT2))
        g.e('v_or_b32 v%d, v%d, v%d' % (vT3, vT3, vT4))
        g.e('v_lshlrev_b32 v%d, 2, v%d' % (vT3, vT3))
        g.e('ds_write_b32 v%d, v%d offset:%d' % (vT3, Hh + e, L_HD))
    g.label(lsk)

def hop1_v2(g):
    wd_loads5(g)
    g.e('s_lshl_b32 s%d, s%d, 9' % (sT0, sH))
    g.e('s_add_u32 s%d, s%d, 0x%x' % (sT0, sT0, ML_OFF2))
    g.e('s_mov_b32 s%d, s%d' % (sKQ, sT0))
    g.e('v_lshlrev_b32 v%d, 3, v%d' % (vA0, vLane))
    lsk = g.newlabel('h1skip'); lloop = g.newlabel('h1loop')
    g.e('s_cmp_lg_u32 s%d, 7' % sW)
    g.e('s_cbranch_scc1 %s' % lsk)
    g.e('s_mov_b32 s%d, 0' % sCNT)
    g.label(lloop)
    g.e('buffer_load_dwordx2 %s, v%d, %s, s%d offen sc1' % (vr(vPM, 2), vA0, srd('ws'), sKQ), 'pp')
    g.e('s_waitcnt vmcnt(0)')
    g.e('v_max_u32 v%d, v%d, v%d' % (vT0, vPM, vPM + 1))
    g.e('v_cmp_eq_u32 vcc, -1, v%d' % vT0)
    g.e('s_cmp_eq_u64 vcc, 0')
    g.e('s_cbranch_scc1 %s' % lsk)
    g.e('s_sleep 1')
    spin_tail(g, lloop, lsk)
    g.label(lsk)
    g.vm.pop()
    g.e('s_lshl_b32 s%d, s%d, 15' % (sT1, sH))
    g.e('s_lshl_b32 s%d, s%d, 12' % (sT2, sW))
    g.e('s_add_u32 s%d, s%d, s%d' % (sT1, sT1, sT2))
    g.e('s_add_u32 s%d, s%d, 0x%x' % (sCBL, sT1, O_OFF2))
    g.e('v_lshlrev_b32 v%d, 4, v%d' % (vA1, vLane))
    g.e('s_barrier')
    stamp(g, 6)
    def gl():
        g.e('buffer_load_dwordx2 %s, v%d, %s, s%d offen sc1' % (vr(vPM, 2), vA0, srd('ws'), sKQ), 'pm')
        for i in range(4):
            g.e('buffer_load_dwordx4 %s, v%d, %s, s%d offen offset:%d sc1' % (vr(vPO + 4 * i, 4), vA1, srd('ws'), sCBL, 1024 * i), 'po')
    def chk(lok):
        g.e('v_max_u32 v%d, v%d, v%d' % (vT0, vPM, vPM + 1))
        for i in range(8):
            g.e('v_max3_u32 v%d, v%d, v%d, v%d' % (vT0, vT0, vPO + 2 * i, vPO + 2 * i + 1))
        g.e('v_cmp_eq_u32 vcc, -1, v%d' % vT0)
        g.e('s_cmp_eq_u64 vcc, 0')
        g.e('s_cbranch_scc1 %s' % lok)
    gl()
    wo_loads5(g)
    ffn_mfma(g)
    g.wait_vm('po')
    lloop = g.newlabel('h1loop2'); lok = g.newlabel('h1ok')
    chk(lok)
    g.e('s_mov_b32 s%d, 0' % sCNT)
    saved = list(g.vm)
    g.label(lloop)
    g.e('s_sleep 1')
    gl()
    g.e('s_waitcnt vmcnt(0)')
    chk(lok)
    spin_tail(g, lloop, lok)
    g.label(lok)
    g.vm = saved

def fused7(g):
    vX = 224; vXF = 232; vWQ = 16; vWG = 192; vWU = 208; vACC = 32; vXN = 56
    vGU = 60
    g.e('s_lshr_b32 s%d, s%d, 2' % (sCBL, sU))
    g.e('s_and_b32 s%d, s%d, 3' % (sKQ, sU))
    if EARLYGU == 2: clears7(g)
    g.e('v_lshlrev_b32 v%d, 5, v%d' % (vA0, vLane))
    g.e('buffer_load_dwordx4 %s, v%d, %s, 0 offen' % (vr(vX, 4), vA0, srd('x')), 'x')
    g.e('buffer_load_dwordx4 %s, v%d, %s, 0 offen offset:16' % (vr(vX + 4, 4), vA0, srd('x')), 'x')
    row0_calc(g)
    g.e('v_lshlrev_b32 v%d, 13, v%d' % (vA1, vT0))
    g.e('v_add3_u32 v%d, v%d, v%d, s%d' % (vA1, vA1, vT1, sT1))
    for i in range(4):
        g.e('s_mov_b32 s%d, %d' % (sT3, i * 8192))
        g.e('buffer_load_dwordx4 %s, v%d, %s, s%d offen%s' % (vr(vWQ + 4 * i, 4), vA1, srd('wq'), sT3, NT), 'wq')
    g.e('s_cmp_ge_u32 s%d, %d' % (sT1, 56 * 128))
    g.e('s_cselect_b32 s%d, 0x40000000, s%d' % (sT1, sT1))
    g.e('s_mov_b32 s%d, 7168' % sT2)
    g.e('v_mul_lo_u32 v%d, v%d, s%d' % (vGU, vT0, sT2))
    g.e('v_add3_u32 v%d, v%d, v%d, s%d' % (vGU, vGU, vT1, sT1))
    g.e('v_lshlrev_b32 v%d, 2, v%d' % (vA3, vT0))
    g.e('v_add_u32 v%d, %d, v%d' % (vA3, L_XN, vA3))
    def gu_loads():
        for i in range(4):
            g.e('s_mov_b32 s%d, %d' % (sT3, i * 7168))
            g.e('buffer_load_dwordx4 %s, v%d, %s, s%d offen%s' % (vr(vWG + 4 * i, 4), vGU, srd('wg'), sT3, NT), 'wg')
            g.e('buffer_load_dwordx4 %s, v%d, %s, s%d offen%s' % (vr(vWU + 4 * i, 4), vGU, srd('wu'), sT3, NT), 'wu')
    if EARLYGU in (2, 3): gu_loads()
    else: clears7(g)
    g.wait_vm('x')
    ln_part(g, vX, vXF)
    g.e('v_lshlrev_b32 v%d, 6, v%d' % (vT0, vLane))
    for k in range(4):
        g.e('ds_write_b128 v%d, %s offset:%d' % (vT0, vr(vXF + 4 * k, 4), L_XN + 16 * k))
    g.wait_lgkm(0)
    g.e('ds_read_b128 %s, v%d' % (vr(vXN, 4), vA3))
    attn_addrs5(g)
    make_masks(g)
    g.wait_lgkm(0)
    g.wait_vm('wq')
    gemv_fma(g, vWQ, vACC, vXN)
    allreduce_inrow(g, 'v_add_f32', list(range(vACC, vACC + 8)), [8])
    part_addr(g)
    g.e('v_mov_b32 v%d, v%d' % (vA3, vT0))
    g.e('v_cmp_gt_u32 vcc, 8, v%d' % vL15)
    g.e('s_and_saveexec_b64 s[%d:%d], vcc' % (sEX, sEX + 1))
    for hf in range(2):
        g.e('ds_write_b128 v%d, %s offset:%d' % (vT0, vr(vACC + 4 * hf, 4), L_HQ + hf * 16))
    g.e('s_mov_b64 exec, s[%d:%d]' % (sEX, sEX + 1))
    if EARLYGU not in (2, 3): g.e('s_waitcnt vmcnt(0)')
    def gu_fma():
        gemv_fma(g, vWG, vACC, vXN)
        gemv_fma(g, vWU, vACC + 8, vXN)
        allreduce_inrow(g, 'v_add_f32', list(range(vACC, vACC + 16)), [8])
        g.e('v_add_u32 v%d, %d, v%d' % (vT0, L_HP6, vA3))
        g.e('v_cmp_gt_u32 vcc, 8, v%d' % vL15)
        g.e('s_and_saveexec_b64 s[%d:%d], vcc' % (sEX, sEX + 1))
        for s_i in range(2):
            for hf in range(2):
                g.e('ds_write_b128 v%d, %s offset:%d' % (vT0, vr(vACC + 8 * s_i + 4 * hf, 4), s_i * 8192 + hf * 16))
        g.e('s_mov_b64 exec, s[%d:%d]' % (sEX, sEX + 1))
    lw0 = g.newlabel('w0path'); ljoin = g.newlabel('join')
    g.e('s_cmp_eq_u32 s%d, 0' % sW)
    g.e('s_cbranch_scc1 %s' % lw0)
    g.c('==== waves 1..7')
    if EARLYGU == 1: gu_loads()
    g.wait_lgkm(0)
    g.e('s_barrier')
    stamp(g, 1)
    if EARLYGU in (2, 3):
        for T in range(KEARLY): load_k5(g, T)
        g.wait_vm('wu')
        gu_fma()
        g.e('s_barrier')
        if EARLYGU == 3: clears7(g)
        for T in range(KEARLY, NPF): load_k5(g, T)
        if EARLYGU == 3: g.wait_vm('st')
    else:
        for T in range(KEARLY): load_k5(g, T)
        g.e('s_barrier')
        if not EARLYGU: gu_loads()
        for T in range(KEARLY, PRE): load_k5(g, T)
        g.wait_vm('wu')
        gu_fma()
        for T in range(PRE, NPF): load_k5(g, T)
    for T in range(NVPF): load_v5(g, T)
    g.wait_lgkm(0)
    g.e('s_barrier')
    assert NPF == 8 or NVPF == 0
    for T in range(NPF, 8): load_k5(g, T)
    g.e('s_branch %s' % ljoin)
    g.label(lw0)
    g.c('==== wave 0')
    g.e('v_lshlrev_b32 v%d, 11, v%d' % (vT0, vG))
    g.e('v_lshl_add_u32 v%d, v%d, 4, v%d' % (vT0, vL15, vT0))
    g.e('s_lshl_b32 s%d, s%d, 4' % (sT0, sKV))
    g.e('s_add_u32 s%d, s%d, s%d' % (sT0, sT0, sCBL))
    g.e('s_lshl_b32 s%d, s%d, 8' % (sT1, sT0))
    g.e('s_lshl_b32 s%d, s%d, 14' % (sT2, sKQ))
    g.e('s_add_u32 s%d, s%d, s%d' % (sT2, sT2, sT1))
    g.e('v_lshlrev_b32 v%d, 4, v%d' % (vT2, vLane))
    g.wait_lgkm(0)
    g.e('s_barrier')
    stamp(g, 1)
    R = 64
    for k in range(8):
        g.e('ds_read_b128 %s, v%d offset:%d' % (vr(R + 4 * k, 4), vT0, L_HQ + k * 256))
    g.e('s_lshl_b32 s%d, s%d, 6' % (sT0, sKV))
    g.e('v_mov_b32 v%d, s%d' % (vT4, sT0))
    g.e('v_mov_b32 v%d, 1' % vT3)
    g.e('v_and_b32 v%d, 3, v%d' % (vA2, vLane))
    g.e('v_lshlrev_b32 v%d, 6, v%d' % (vA2, vA2))
    g.wait_lgkm(0)
    for k in range(1, 8):
        for e in range(4):
            g.e('v_add_f32 v%d, v%d, v%d' % (R + e, R + e, R + 4 * k + e))
    allreduce_rows(g, 'v_add_f32', [R + e for e in range(4)], vT1)
    g.e('s_mov_b64 exec, 0xffff')
    g.e('buffer_store_dwordx4 %s, v%d, %s, s%d offen sc1' % (vr(R, 4), vT2, srd('ws'), sT2), 'st')
    g.e('s_waitcnt vmcnt(0)')
    g.e('s_mov_b64 exec, 1')
    g.e('buffer_atomic_add v%d, v%d, %s, 0 offen sc1' % (vT3, vT4, srd('dbg')), 'st')
    g.e('s_mov_b64 exec, -1')
    stamp(g, 2)
    g.e('s_barrier')
    if EARLYGU not in (2, 3):
        gu_loads()
        g.e('s_waitcnt vmcnt(0)')
    gu_fma()
    if EARLYGU == 3: clears7(g)
    lok = g.newlabel('pollok'); lloop = g.newlabel('pollloop')
    g.e('s_mov_b32 s%d, 0' % sCNT)
    g.label(lloop)
    g.e('buffer_load_dword v%d, v%d, %s, 0 offen sc1' % (vT5, vA2, srd('dbg')), 'poll')
    g.e('s_waitcnt vmcnt(0)')
    g.e('v_cmp_gt_u32 vcc, 64, v%d' % vT5)
    g.e('s_cmp_eq_u64 vcc, 0')
    g.e('s_cbranch_scc1 %s' % lok)
    g.e('s_sleep 1')
    spin_tail(g, lloop, lok)
    g.label(lok)
    stamp(g, 3)
    g.e('s_lshl_b32 s%d, s%d, 12' % (sT0, sKV))
    g.e('v_lshlrev_b32 v%d, 6, v%d' % (vT0, vLane))
    g.e('v_add_u32 v%d, s%d, v%d' % (vT0, sT0, vT0))
    for kq in range(4):
        g.e('s_mov_b32 s%d, %d' % (sT3, QP_OFF + kq * 16384))
        for i in range(4):
            g.e('buffer_load_dwordx4 %s, v%d, %s, s%d offen offset:%d sc1' % (vr(R + 16 * kq + 4 * i, 4), vT0, srd('ws'), sT3, 16 * i), 'qg')
    g.e('s_waitcnt vmcnt(0)')
    for e in range(16):
        g.e('v_add_f32 v%d, v%d, v%d' % (R + e, R + e, R + 16 + e))
        g.e('v_add_f32 v%d, v%d, v%d' % (R + 32 + e, R + 32 + e, R + 48 + e))
    for e in range(16):
        g.e('v_add_f32 v%d, v%d, v%d' % (R + e, R + e, R + 32 + e))
    for e in range(8):
        g.e('v_cvt_pk_bf16_f32 v%d, v%d, v%d' % (R + 16 + e, R + 2 * e, R + 2 * e + 1))
    g.e('v_lshlrev_b32 v%d, 5, v%d' % (vT0, vLane))
    g.e('ds_write_b128 v%d, %s offset:%d' % (vT0, vr(R + 16, 4), L_QL))
    g.e('ds_write_b128 v%d, %s offset:%d' % (vT0, vr(R + 20, 4), L_QL + 16))
    g.wait_lgkm(0)
    g.e('s_barrier')
    for T in range(8): load_k5(g, T)
    for T in range(NVPF): load_v5(g, T)
    g.label(ljoin)
    if EARLYGU == 3:
        la = g.newlabel('arr2')
        g.e('s_cmp_lg_u32 s%d, 3' % sW)
        g.e('s_cbranch_scc1 %s' % la)
        g.e('s_lshl_b32 s%d, s%d, 6' % (sT0, sKV))
        g.e('v_mov_b32 v%d, s%d' % (vT4, sT0))
        g.e('v_mov_b32 v%d, 1' % vT3)
        g.e('s_mov_b64 exec, 1')
        saved = list(g.vm)
        g.e('buffer_atomic_add v%d, v%d, %s, 0 offen offset:4 sc1' % (vT3, vT4, srd('dbg')), 'st')
        g.vm = saved
        g.e('s_mov_b64 exec, -1')
        g.label(la)
    g.c('Q frags')
    g.e('v_lshrrev_b32 v%d, 2, v%d' % (vT0, vL15))
    g.e('v_bfe_u32 v%d, v%d, 1, 1' % (vT1, vL15))
    g.e('v_lshl_add_u32 v%d, v%d, 2, v%d' % (vT0, vT1, vT0))
    g.e('v_lshlrev_b32 v%d, 8, v%d' % (vT1, vT0))
    g.e('v_lshl_add_u32 v%d, v%d, 4, v%d' % (vT1, vG, vT1))
    g.e('v_and_b32 v%d, 1, v%d' % (vT0, vLane))
    g.e('v_lshl_add_u32 v%d, v%d, 6, v%d' % (vT1, vT0, vT1))
    for j in range(2):
        g.e('ds_read_b128 %s, v%d offset:%d' % (vr(vQ + 4 * j, 4), vT1, L_QL + 128 * j))
    g.c('waves 1,2: final reduce of gate / up partials and publish')
    lsk = g.newlabel('nored')
    g.e('s_sub_u32 s%d, s%d, 1' % (sT2, sW))
    g.e('s_cmp_ge_u32 s%d, 2' % sT2)
    g.e('s_cbranch_scc1 %s' % lsk)
    R = 32
    g.e('v_lshlrev_b32 v%d, 11, v%d' % (vT0, vG))
    g.e('v_lshl_add_u32 v%d, v%d, 4, v%d' % (vT0, vL15, vT0))
    g.e('s_lshl_b32 s%d, s%d, 13' % (sT0, sT2))
    g.e('s_add_u32 s%d, s%d, %d' % (sT0, sT0, L_HP6))
    g.e('v_add_u32 v%d, s%d, v%d' % (vT0, sT0, vT0))
    for k in range(8):
        g.e('ds_read_b128 %s, v%d offset:%d' % (vr(R + 4 * k, 4), vT0, k * 256))
    gu_dest(g, 1)
    g.wait_lgkm(0)
    for k in range(1, 8):
        for e in range(4):
            g.e('v_add_f32 v%d, v%d, v%d' % (R + e, R + e, R + 4 * k + e))
    allreduce_rows(g, 'v_add_f32', [R + e for e in range(4)], vT1)
    for e in range(4):
        g.e('v_min_u32 v%d, -2, v%d' % (R + e, R + e))
    g.e('v_lshlrev_b32 v%d, 4, v%d' % (vT2, vLane))
    g.e('s_mov_b64 exec, 0xffff')
    saved = list(g.vm)
    g.e('buffer_store_dwordx4 %s, v%d, %s, s%d offen sc1' % (vr(R, 4), vT2, srd('ws'), sT3), 'st')
    g.vm = saved
    g.e('s_mov_b64 exec, -1')
    g.label(lsk)
    groups = [('V', T) for T in range(NVPF, 8)] + ([] if LATEW else [('wd', 0), ('wo', 0)])
    gi = [0]
    def issue_next():
        if gi[0] >= len(groups): return
        k, T = groups[gi[0]]; gi[0] += 1
        if k == 'V': load_v5(g, T)
        elif k == 'wo': wo_loads5(g)
        else: wd_loads5(g)
    for _ in range(max(0, 2 - NVPF)): issue_next()
    g.wait_lgkm(0)
    def can_issue(done_qk):
        if gi[0] >= len(groups): return False
        k, T = groups[gi[0]]
        if k == 'V' and T >= 3: return done_qk > T - 3
        if k == 'wo': return done_qk > 5
        if k == 'wd': return done_qk > 6
        return True
    for T in range(8):
        g.wait_vm('K%d' % T)
        qk5(g, T)
        if can_issue(T + 1): issue_next()
        if T > 0: score5(g, T - 1)
    score5(g, 7)
    while gi[0] < len(groups): issue_next()
    softmax_all(g)
    for T in range(8):
        g.wait_vm('V%d' % T)
        pv_tile(g, T)
    stamp(g, 5)
    h_gather7(g)
    if LATEW == 1 and POLLW:
        l1 = g.newlabel('pw')
        g.e('s_cmp_lg_u32 s%d, %d' % (sW, POLLW))
        g.e('s_cbranch_scc1 %s' % l1)
        saved = list(g.vm)
        wd_loads5(g)
        wo_loads5(g)
        g.vm = saved
        g.label(l1)
    attn_combine5(g)
    if LATEW == 1:
        l2 = g.newlabel('pw')
        if POLLW:
            g.e('s_cmp_eq_u32 s%d, %d' % (sW, POLLW))
            g.e('s_cbranch_scc1 %s' % l2)
        wd_loads5(g)
        wo_loads5(g)
        g.label(l2)
    if LATEW != 2:
        ffn_mfma(g)
        hop1_gather(g)
    else:
        hop1_v2(g)
    tail1_compute5(g)
    tail2_fused(g)

def main():
    out = HEADER
    out += '; @launch grid=(256,1,1) block=(512,1,1) lds=%d\n' % LDS6
    out += '.amdgcn_target "amdgcn-amd-amdhsa--gfx950"\n.text\n'
    t, kd = kernel(NAME + '_kernel', fused7, ['x', 'K', 'V', 'wq', 'wo', 'wg', 'wu', 'wd', 'out', 'dbg', 'ws'], 0)
    out += t
    out += '.section .rodata,"a"\n.p2align 6\n' + kd
    path = sys.argv[1] if len(sys.argv) > 1 else 'cdna_kernels/%s.s' % NAME
    open(path, 'w').write(out)
    print('wrote', path, len(out))

if __name__ == '__main__':
    main()
```

```python
import sys
sys.path.insert(0, 'gen')
from asmgen import Gen

NAME = 'parallel_sum__gqa_block_cached__geglu_ffn__decode'

Q_OFF = 0
H_OFF = 8192
ML_OFF = 16384
O_OFF = 32768
P2_OFF = 0x110000
WS_BYTES = 268435456

L2E = 0x3fb8aa3b
SCALE = 0x3db504f3

sW, sX8, sJ, sKV, sU, sH, sB = 3, 4, 5, 6, 7, 8, 9
sT0, sT1, sT2, sT3 = 10, 11, 12, 13
SRD = dict(x=40, K=44, V=48, wq=52, wo=56, wg=60, wu=64, wd=68, out=72, dbg=76, ws=80)
PTR = dict(x=16, K=18, V=20, wq=22, wo=24, bx=26, wg=28, wu=30, wd=32, out=34, dbg=36, ws=38)
SIZE = dict(x=2048, K=67108864, V=67108864, wq=8388608, wo=8388608, wg=7340032, wu=7340032,
            wd=7340032, out=2048, dbg=256, ws=WS_BYTES)
sL2E, sSCALE, sHI = 84, 85, 86
sEX = 88
sM0 = 90

def srd(n): return 's[%d:%d]' % (SRD[n], SRD[n] + 3)
def vr(a, n): return 'v[%d:%d]' % (a, a + n - 1)

vLane, vL15, vG, vMask0, vMask1 = 1, 2, 3, 4, 5
vA0, vA1, vA2, vA3 = 6, 7, 8, 9
vT0, vT1, vT2, vT3, vT4, vT5 = 10, 11, 12, 13, 14, 15

def prologue(g, used):
    g.e('s_cmp_ge_u32 s2, 256')
    g.e('s_cbranch_scc1 %s' % g.endlabel)
    g.e('s_load_dwordx16 s[16:31], s[0:1], 0')
    g.e('s_load_dwordx8 s[32:39], s[0:1], 64')
    g.e('s_and_b32 s%d, s2, 7' % sX8)
    g.e('s_lshr_b32 s%d, s2, 3' % sJ)
    g.e('s_lshr_b32 s%d, s%d, 3' % (sKV, sJ))
    g.e('s_and_b32 s%d, s%d, 7' % (sB, sJ))
    g.e('s_lshl_b32 s%d, s%d, 3' % (sU, sX8))
    g.e('s_add_u32 s%d, s%d, s%d' % (sU, sU, sB))
    g.e('s_lshl_b32 s%d, s%d, 3' % (sH, sKV))
    g.e('s_add_u32 s%d, s%d, s%d' % (sH, sH, sX8))
    g.e('v_lshrrev_b32 v%d, 6, v0' % vT0)
    g.e('v_and_b32 v%d, 63, v0' % vLane)
    g.e('v_readfirstlane_b32 s%d, v%d' % (sW, vT0))
    g.e('v_and_b32 v%d, 15, v0' % vL15)
    g.e('v_lshrrev_b32 v%d, 4, v%d' % (vG, vLane))
    g.e('s_mov_b32 s%d, 0x%x' % (sL2E, L2E))
    g.e('s_mov_b32 s%d, 0x%x' % (sSCALE, SCALE))
    g.e('s_mov_b32 s%d, 0xffff0000' % sHI)
    for n in used:
        b = SRD[n]
        g.e('s_mov_b32 s%d, 0x%x' % (b + 2, SIZE[n]))
        g.e('s_mov_b32 s%d, 0x20000' % (b + 3))
    g.e('s_waitcnt lgkmcnt(0)')
    first = getattr(g, 'first_srds', None) or used
    build_srds(g, [n for n in used if n in first])
    g.late_srds = [n for n in used if n not in first]

def build_srds(g, names):
    for n in names:
        b = SRD[n]; p = PTR[n]
        g.e('s_mov_b32 s%d, s%d' % (b, p))
        g.e('s_and_b32 s%d, s%d, 0xffff' % (b + 1, p + 1))

STAMP = int(__import__('os').environ.get('STAMP', '0'))
STAMP_OFF = 0x200000
DBGT = int(__import__('os').environ.get('DBGT', '0'))
def stamp(g, idx):
    if not STAMP: return
    g.e('s_memrealtime s[92:93]')
    g.e('s_waitcnt lgkmcnt(0)')
    g.e('s_mov_b32 s%d, s92' % (94 + idx))
def stamp_store(g, kidx):
    if not STAMP: return
    stamp(g, 7)
    for i in range(8):
        g.e('v_mov_b32 v%d, s%d' % (16 + i, 94 + i))
    g.e('s_lshl_b32 s92, s2, 3')
    g.e('s_add_u32 s92, s92, s%d' % sW)
    g.e('s_lshl_b32 s92, s92, 5')
    g.e('s_add_u32 s92, s92, 0x%x' % (STAMP_OFF + kidx * 65536))
    g.e('v_mov_b32 v24, 0')
    g.e('s_mov_b64 exec, 1')
    g.e('buffer_store_dwordx4 v[16:19], v24, %s, s92 offen' % srd('ws'))
    g.e('buffer_store_dwordx4 v[20:23], v24, %s, s92 offen offset:16' % srd('ws'))

def make_masks(g):
    g.e('v_and_b32 v%d, 3, v%d' % (vT0, vLane))
    g.e('v_and_b32 v%d, 1, v%d' % (vT1, vLane))
    g.e('v_lshlrev_b32 v%d, 4, v%d' % (vT1, vT1))
    g.e('v_mov_b32 v%d, 0xffff' % vT2)
    g.e('v_lshlrev_b32 v%d, v%d, v%d' % (vT2, vT1, vT2))
    g.e('v_cmp_gt_u32 vcc, 2, v%d' % vT0)
    g.e('v_cndmask_b32 v%d, 0, v%d, vcc' % (vMask0, vT2))
    g.e('v_cndmask_b32 v%d, v%d, 0, vcc' % (vMask1, vT2))

def allreduce_rows(g, op, regs, tmp):
    for r in regs:
        g.e('v_mov_b32 v%d, v%d' % (tmp, r))
        g.e('v_permlane16_swap_b32 v%d, v%d' % (r, tmp))
        g.e('%s v%d, v%d, v%d' % (op, r, r, tmp))
        g.e('v_mov_b32 v%d, v%d' % (tmp, r))
        g.e('v_permlane32_swap_b32 v%d, v%d' % (r, tmp))
        g.e('%s v%d, v%d, v%d' % (op, r, r, tmp))

def allreduce_inrow(g, op, regs, rors):
    for ro in rors:
        for r in regs:
            g.e('%s_dpp v%d, v%d, v%d row_ror:%d row_mask:0xf bank_mask:0xf' % (op, r, r, r, ro))

def round_bf16(g, dst, src, tmp=None):
    g.e('v_cvt_pk_bf16_f32 v%d, v%d, v%d' % (dst, src, src))
    g.e('v_and_b32 v%d, s%d, v%d' % (dst, sHI, dst))

XN_LDS = 0
HP_LDS = 4096
def head(g):
    vX = 224
    vXF = 232
    vWQ = 16
    vWG = 192
    vWU = 208
    vACC = 32
    vXN = 56
    g.c('x loads')
    g.e('v_lshlrev_b32 v%d, 5, v%d' % (vA0, vLane))
    g.e('buffer_load_dwordx4 %s, v%d, %s, 0 offen' % (vr(vX, 4), vA0, srd('x')), 'x')
    g.e('buffer_load_dwordx4 %s, v%d, %s, 0 offen offset:16' % (vr(vX + 4, 4), vA0, srd('x')), 'x')
    g.c('wq loads: voff = (128w+4rho)*8192 + kv*2048 + u*32 + c*16')
    g.e('v_lshrrev_b32 v%d, 1, v%d' % (vT0, vLane))
    g.e('v_and_b32 v%d, 1, v%d' % (vT1, vLane))
    g.e('v_lshlrev_b32 v%d, 2, v%d' % (vT0, vT0))
    g.e('s_lshl_b32 s%d, s%d, 7' % (sT0, sW))
    g.e('v_add_u32 v%d, s%d, v%d' % (vT0, sT0, vT0))
    g.e('v_lshlrev_b32 v%d, 4, v%d' % (vT1, vT1))
    g.e('s_lshl_b32 s%d, s%d, 11' % (sT1, sKV))
    g.e('s_lshl_b32 s%d, s%d, 5' % (sT2, sU))
    g.e('s_add_u32 s%d, s%d, s%d' % (sT1, sT1, sT2))
    g.e('v_lshlrev_b32 v%d, 13, v%d' % (vA1, vT0))
    g.e('v_add3_u32 v%d, v%d, v%d, s%d' % (vA1, vA1, vT1, sT1))
    for i in range(4):
        g.e('s_mov_b32 s%d, %d' % (sT3, i * 8192))
        g.e('buffer_load_dwordx4 %s, v%d, %s, s%d offen' % (vr(vWQ + 4 * i, 4), vA1, srd('wq'), sT3), 'wq')
    g.c('gate/up loads: voff = row0*7168 + tau*32 + c*16 ; tau = 28*x8 + j (j<28) else OOB')
    g.e('s_mul_i32 s%d, s%d, 28' % (sT1, sX8))
    g.e('s_add_u32 s%d, s%d, s%d' % (sT1, sT1, sJ))
    g.e('s_lshl_b32 s%d, s%d, 5' % (sT1, sT1))
    g.e('s_cmp_ge_u32 s%d, 28' % sJ)
    g.e('s_cselect_b32 s%d, 0x40000000, s%d' % (sT1, sT1))
    g.e('s_mov_b32 s%d, 7168' % sT2)
    g.e('v_mul_lo_u32 v%d, v%d, s%d' % (vA2, vT0, sT2))
    g.e('v_add3_u32 v%d, v%d, v%d, s%d' % (vA2, vA2, vT1, sT1))
    for i in range(4):
        g.e('s_mov_b32 s%d, %d' % (sT3, i * 7168))
        g.e('buffer_load_dwordx4 %s, v%d, %s, s%d offen' % (vr(vWG + 4 * i, 4), vA2, srd('wg'), sT3), 'wg')
        g.e('buffer_load_dwordx4 %s, v%d, %s, s%d offen' % (vr(vWU + 4 * i, 4), vA2, srd('wu'), sT3), 'wu')
    g.e('s_mov_b32 s%d, s%d' % (14, sT1))
    g.c('xn read address')
    g.e('v_lshlrev_b32 v%d, 2, v%d' % (vA3, vT0))
    stamp(g, 1)
    g.c('---- layernorm')
    g.wait_vm('x')
    stamp(g, 2)
    for k in range(8):
        g.e('v_lshlrev_b32 v%d, 16, v%d' % (vXF + 2 * k, vX + k))
        g.e('v_and_b32 v%d, s%d, v%d' % (vXF + 2 * k + 1, sHI, vX + k))
    g.e('v_add_f32 v%d, v%d, v%d' % (vT2, vXF, vXF + 1))
    for k in range(2, 16):
        g.e('v_add_f32 v%d, v%d, v%d' % (vT2, vT2, vXF + k))
    allreduce_inrow(g, 'v_add_f32', [vT2], [8, 4, 2, 1])
    allreduce_rows(g, 'v_add_f32', [vT2], vT3)
    g.e('v_mul_f32 v%d, 0x3a800000, v%d' % (vT2, vT2))
    g.e('v_sub_f32 v%d, v%d, v%d' % (vT3, vXF, vT2))
    g.e('v_mul_f32 v%d, v%d, v%d' % (vT4, vT3, vT3))
    for k in range(1, 16):
        g.e('v_sub_f32 v%d, v%d, v%d' % (vT3, vXF + k, vT2))
        g.e('v_fmac_f32 v%d, v%d, v%d' % (vT4, vT3, vT3))
    allreduce_inrow(g, 'v_add_f32', [vT4], [8, 4, 2, 1])
    allreduce_rows(g, 'v_add_f32', [vT4], vT3)
    g.e('v_mul_f32 v%d, 0x3a800000, v%d' % (vT4, vT4))
    round_bf16(g, vT2, vT2)
    round_bf16(g, vT4, vT4)
    g.e('v_add_f32 v%d, 0x3727c5ac, v%d' % (vT4, vT4))
    round_bf16(g, vT4, vT4)
    g.e('v_sqrt_f32 v%d, v%d' % (vT4, vT4))
    round_bf16(g, vT4, vT4)
    g.e('v_rcp_f32 v%d, v%d' % (vT5, vT4))
    for k in range(0, 16, 2):
        a, b = vXF + k, vXF + k + 1
        g.e('v_sub_f32 v%d, v%d, v%d' % (a, a, vT2))
        g.e('v_sub_f32 v%d, v%d, v%d' % (b, b, vT2))
        g.e('v_cvt_pk_bf16_f32 v%d, v%d, v%d' % (vT3, a, b))
        g.e('v_lshlrev_b32 v%d, 16, v%d' % (a, vT3))
        g.e('v_and_b32 v%d, s%d, v%d' % (b, sHI, vT3))
        for r in (a, b):
            g.e('v_mul_f32 v%d, v%d, v%d' % (vT0, r, vT5))
            g.e('v_fma_f32 v%d, -v%d, v%d, v%d' % (vT1, vT0, vT4, r))
            g.e('v_fma_f32 v%d, v%d, v%d, v%d' % (r, vT1, vT5, vT0))
        g.e('v_cvt_pk_bf16_f32 v%d, v%d, v%d' % (vT3, a, b))
        g.e('v_lshlrev_b32 v%d, 16, v%d' % (a, vT3))
        g.e('v_and_b32 v%d, s%d, v%d' % (b, sHI, vT3))
    g.e('v_lshlrev_b32 v%d, 6, v%d' % (vT0, vLane))
    for k in range(4):
        g.e('ds_write_b128 v%d, %s offset:%d' % (vT0, vr(vXF + 4 * k, 4), XN_LDS + 16 * k))
    g.wait_lgkm(0)
    g.e('ds_read_b128 %s, v%d offset:%d' % (vr(vXN, 4), vA3, XN_LDS))
    g.wait_lgkm(0)
    stamp(g, 3)
    g.c('---- gemv FMAs')
    for s_i, (vW, tag) in enumerate(((vWQ, 'wq'), (vWG, 'wg'), (vWU, 'wu'))):
        if tag != 'wu':
            g.wait_vm('wq' if tag == 'wq' else 'wu')
        acc = vACC + 8 * s_i
        for i in range(4):
            for k in range(4):
                w = vW + 4 * i + k
                g.e('v_lshlrev_b32 v%d, 16, v%d' % (vT0, w))
                g.e('v_and_b32 v%d, s%d, v%d' % (vT1, sHI, w))
                if i == 0:
                    g.e('v_mul_f32 v%d, v%d, v%d' % (acc + 2 * k, vT0, vXN + i))
                    g.e('v_mul_f32 v%d, v%d, v%d' % (acc + 2 * k + 1, vT1, vXN + i))
                else:
                    g.e('v_fmac_f32 v%d, v%d, v%d' % (acc + 2 * k, vT0, vXN + i))
                    g.e('v_fmac_f32 v%d, v%d, v%d' % (acc + 2 * k + 1, vT1, vXN + i))
    stamp(g, 4)
    allreduce_inrow(g, 'v_add_f32', list(range(vACC, vACC + 24)), [8, 4, 2])
    g.c('write partials: addr = ((set*32 + 4w + row)*16 + 8c)*4')
    g.e('s_lshl_b32 s%d, s%d, 2' % (sT0, sW))
    g.e('v_add_u32 v%d, s%d, v%d' % (vT0, sT0, vG))
    g.e('v_lshlrev_b32 v%d, 6, v%d' % (vT0, vT0))
    g.e('v_and_b32 v%d, 1, v%d' % (vT1, vLane))
    g.e('v_lshl_add_u32 v%d, v%d, 5, v%d' % (vT0, vT1, vT0))
    g.e('v_cmp_gt_u32 vcc, 2, v%d' % vL15)
    g.e('s_and_saveexec_b64 s[%d:%d], vcc' % (sEX, sEX + 1))
    for s_i in range(3):
        for hf in range(2):
            g.e('ds_write_b128 v%d, %s offset:%d' % (vT0, vr(vACC + 8 * s_i + 4 * hf, 4), HP_LDS + s_i * 2048 + hf * 16))
    g.e('s_mov_b64 exec, s[%d:%d]' % (sEX, sEX + 1))
    g.wait_lgkm(0)
    stamp(g, 5)
    g.e('s_barrier')
    stamp(g, 6)
    g.e('s_cmp_lg_u32 s%d, 0' % sW)
    g.e('s_cbranch_scc1 %s' % g.endlabel2)
    g.c('---- wave 0: final reduce: lane(col=l&15, pg=l>>4)')
    g.e('v_lshlrev_b32 v%d, 9, v%d' % (vT0, vG))
    g.e('v_lshl_add_u32 v%d, v%d, 2, v%d' % (vT0, vL15, vT0))
    R = 64
    for s_i in range(3):
        for k in range(8):
            g.e('ds_read_b32 v%d, v%d offset:%d' % (R + s_i * 8 + k, vT0, HP_LDS + s_i * 2048 + k * 64))
    g.wait_lgkm(0)
    for s_i in range(3):
        b = R + s_i * 8
        for k in range(1, 8):
            g.e('v_add_f32 v%d, v%d, v%d' % (b, b, b + k))
    allreduce_rows(g, 'v_add_f32', [R, R + 8, R + 16], vT1)
    vq, vg_, vu = R, R + 8, R + 16
    g.e('v_cvt_pk_bf16_f32 v%d, v%d, v%d' % (vq, vq, vq))
    round_bf16(g, vg_, vg_)
    round_bf16(g, vu, vu)
    g.c('gelu(g) = g / (1 + exp(-2*beta*(g + kappa g^3)))')
    g.e('v_mul_f32 v%d, v%d, v%d' % (vT1, vg_, vg_))
    g.e('v_mul_f32 v%d, v%d, v%d' % (vT1, vT1, vg_))
    g.e('v_mul_f32 v%d, 0x3d372713, v%d' % (vT1, vT1))
    g.e('v_add_f32 v%d, v%d, v%d' % (vT1, vT1, vg_))
    g.e('v_mul_f32 v%d, 0x3f4c422a, v%d' % (vT1, vT1))
    g.e('v_mul_f32 v%d, 0xc038aa3b, v%d' % (vT1, vT1))
    g.e('v_exp_f32 v%d, v%d' % (vT1, vT1))
    g.e('v_add_f32 v%d, 1.0, v%d' % (vT1, vT1))
    g.e('v_rcp_f32 v%d, v%d' % (vT1, vT1))
    g.e('v_mul_f32 v%d, v%d, v%d' % (vT1, vT1, vg_))
    round_bf16(g, vT1, vT1)
    g.e('v_mul_f32 v%d, v%d, v%d' % (vT1, vT1, vu))
    g.e('v_cvt_pk_bf16_f32 v%d, v%d, v%d' % (vT1, vT1, vT1))
    g.c('stores (lanes 0..15)')
    g.e('s_lshl_b32 s%d, s%d, 11' % (sT1, sKV))
    g.e('s_lshl_b32 s%d, s%d, 5' % (sT2, sU))
    g.e('s_add_u32 s%d, s%d, s%d' % (sT1, sT1, sT2))
    g.e('v_lshlrev_b32 v%d, 1, v%d' % (vT2, vLane))
    g.e('v_add_u32 v%d, s%d, v%d' % (vT3, sT1, vT2))
    g.e('v_add_u32 v%d, s14, v%d' % (vT4, vT2))
    g.e('v_cmp_gt_u32 vcc, 16, v%d' % vLane)
    g.e('s_and_saveexec_b64 s[%d:%d], vcc' % (sEX, sEX + 1))
    g.e('buffer_store_short v%d, v%d, %s, 0 offen offset:%d' % (vq, vT3, srd('ws'), Q_OFF), 'st')
    g.e('s_mov_b32 s%d, %d' % (sT3, H_OFF))
    g.e('buffer_store_short v%d, v%d, %s, s%d offen' % (vT1, vT4, srd('ws'), sT3), 'st')
    g.e('s_mov_b64 exec, s[%d:%d]' % (sEX, sEX + 1))

OP_LDS = 0
HS = 576
WSTR = 8 * HS
ML_LDS = 8 * WSTR
vQ = 16
vS = 32
vK = 64
vV = 192
vB = 240
vM, vLs, vML = 248, 249, 250

import os
PAT = int(os.environ.get('PAT', '1'))
TSTRIDE = 4096 if PAT == 1 else 4096 * 512
def vtile_reg(T):
    return vV + 16 * T if T < 3 else vK + 16 * (T - 3)

def attn_addrs(g):
    g.c('K addr: kv<<24 + (1024u+128w+l15)*256 + g*16')
    g.e('s_lshl_b32 s%d, s%d, 24' % (sT0, sKV))
    g.e('s_lshl_b32 s%d, s%d, %d' % (sT1, sU, 18 if PAT == 1 else 15))
    g.e('s_add_u32 s%d, s%d, s%d' % (sT0, sT0, sT1))
    g.e('s_lshl_b32 s%d, s%d, %d' % (sT1, sW, 15 if PAT == 1 else 12))
    g.e('s_add_u32 s%d, s%d, s%d' % (sT0, sT0, sT1))
    g.e('v_lshlrev_b32 v%d, 8, v%d' % (vT0, vL15))
    g.e('v_lshl_add_u32 v%d, v%d, 4, v%d' % (vT0, vG, vT0))
    g.e('v_add_u32 v%d, s%d, v%d' % (vA0, sT0, vT0))
    g.e('v_lshlrev_b32 v%d, 10, v%d' % (vT0, vG))
    g.e('v_lshl_add_u32 v%d, v%d, 4, v%d' % (vT0, vL15, vT0))
    g.e('v_add_u32 v%d, s%d, v%d' % (vA1, sT0, vT0))

def load_ktile(g, T, nt=''):
    g.e('s_mov_b32 s%d, %d' % (sT3, T * TSTRIDE))
    for j in range(4):
        g.e('buffer_load_dwordx4 %s, v%d, %s, s%d offen offset:%d%s' % (vr(vK + 16 * T + 4 * j, 4), vA0, srd('K'), sT3, 64 * j, nt), 'K%d' % T)

def load_vtile(g, T, nt=''):
    g.e('s_mov_b32 s%d, %d' % (sT3, T * TSTRIDE))
    b = vtile_reg(T)
    for r in range(4):
        g.e('buffer_load_dwordx4 %s, v%d, %s, s%d offen offset:%d%s' % (vr(b + 4 * r, 4), vA1, srd('V'), sT3, 256 * r, nt), 'V%d' % T)

def load_q(g, flags=''):
    g.c('Q frag: Q_OFF + (kv*1024 + eta(n)*128 + 8g)*2 + 64j ; eta(n) = (n>>2) + 4*((n>>1)&1)')
    g.e('v_lshrrev_b32 v%d, 2, v%d' % (vT0, vL15))
    g.e('v_bfe_u32 v%d, v%d, 1, 1' % (vT1, vL15))
    g.e('v_lshl_add_u32 v%d, v%d, 2, v%d' % (vT0, vT1, vT0))
    g.e('v_lshlrev_b32 v%d, 8, v%d' % (vT1, vT0))
    g.e('v_lshl_add_u32 v%d, v%d, 4, v%d' % (vT1, vG, vT1))
    g.e('s_lshl_b32 s%d, s%d, 11' % (sT1, sKV))
    g.e('v_add_u32 v%d, s%d, v%d' % (vA2, sT1, vT1))
    for j in range(4):
        g.e('buffer_load_dwordx4 %s, v%d, %s, 0 offen offset:%d%s' % (vr(vQ + 4 * j, 4), vA2, srd('ws'), Q_OFF + 64 * j, flags), 'Q')

def qk_tile(g, T):
    s = vS + 4 * T
    for j in range(4):
        g.e('v_mfma_f32_16x16x32_bf16 %s, %s, %s, %s' % (vr(s, 4), vr(vK + 16 * T + 4 * j, 4), vr(vQ + 4 * j, 4), '0' if j == 0 else vr(s, 4)))

def score_tile(g, T):
    s = vS + 4 * T
    g.e('v_cvt_pk_bf16_f32 v%d, v%d, v%d' % (vT0, s, s + 1))
    g.e('v_cvt_pk_bf16_f32 v%d, v%d, v%d' % (vT1, s + 2, s + 3))
    g.e('v_lshlrev_b32 v%d, 16, v%d' % (s, vT0))
    g.e('v_and_b32 v%d, s%d, v%d' % (s + 1, sHI, vT0))
    g.e('v_lshlrev_b32 v%d, 16, v%d' % (s + 2, vT1))
    g.e('v_and_b32 v%d, s%d, v%d' % (s + 3, sHI, vT1))
    for k in range(4):
        g.e('v_mul_f32 v%d, s%d, v%d' % (s + k, sSCALE, s + k))
    g.e('v_cvt_pk_bf16_f32 v%d, v%d, v%d' % (vT0, s, s + 1))
    g.e('v_cvt_pk_bf16_f32 v%d, v%d, v%d' % (vT1, s + 2, s + 3))
    g.e('v_lshlrev_b32 v%d, 16, v%d' % (s, vT0))
    g.e('v_and_b32 v%d, s%d, v%d' % (s + 1, sHI, vT0))
    g.e('v_lshlrev_b32 v%d, 16, v%d' % (s + 2, vT1))
    g.e('v_and_b32 v%d, s%d, v%d' % (s + 3, sHI, vT1))
    if T == 0:
        g.e('v_max_f32 v%d, v%d, v%d' % (vM, s, s + 1))
    else:
        g.e('v_max3_f32 v%d, v%d, v%d, v%d' % (vM, vM, s, s + 1))
    g.e('v_max3_f32 v%d, v%d, v%d, v%d' % (vM, vM, s + 2, s + 3))

def softmax_all(g):
    allreduce_rows(g, 'v_max_f32', [vM], vT0)
    g.e('v_mul_f32 v%d, s%d, v%d' % (vML, sL2E, vM))
    for i in range(32):
        s = vS + i
        g.e('v_fma_f32 v%d, v%d, s%d, -v%d' % (s, s, sL2E, vML))
    for i in range(32):
        s = vS + i
        g.e('v_exp_f32 v%d, v%d' % (s, s))
    g.e('v_add_f32 v%d, v%d, v%d' % (vLs, vS, vS + 1))
    for i in range(2, 32):
        g.e('v_add_f32 v%d, v%d, v%d' % (vLs, vLs, vS + i))
    for i in range(32):
        s = vS + i
        g.e('v_cvt_pk_bf16_f32 v%d, v%d, v%d' % (s, s, s))
    allreduce_rows(g, 'v_add_f32', [vLs], vT0)

def pv_tile(g, T):
    vb = vtile_reg(T)
    for r in range(4):
        p = vS + 4 * T + r
        bb = vB + 4 * (r & 1)
        for u in range(2):
            q = 2 * u
            g.e('v_and_b32_dpp v%d, v%d, v%d quad_perm:[%d,%d,%d,%d] row_mask:0xf bank_mask:0xf' % (bb + 2 * u, p, vMask0, q, q, q, q))
            g.e('v_and_b32_dpp v%d, v%d, v%d quad_perm:[%d,%d,%d,%d] row_mask:0xf bank_mask:0xf' % (bb + 2 * u + 1, p, vMask1, q, q, q, q))
        for u in range(2):
            for a in range(2):
                acc = vQ + 4 * (2 * u + a)
                first = (T == 0 and r == 0)
                g.e('v_mfma_f32_16x16x16_bf16 %s, %s, %s, %s' % (vr(acc, 4), vr(vb + 4 * r + 2 * a, 2), vr(bb + 2 * u, 2), '0' if first else vr(acc, 4)))

def attn_combine(g, stflags=''):
    g.c('write O partials to LDS: w*WSTR + (4u+hq)*HS + ((2g+a)*4+e0)*16')
    g.e('v_lshrrev_b32 v%d, 2, v%d' % (vT0, vL15))
    g.e('v_and_b32 v%d, 3, v%d' % (vT1, vLane))
    g.e('s_mul_i32 s%d, s%d, %d' % (sT0, sW, WSTR))
    g.e('v_mul_u32_u24 v%d, %d, v%d' % (vT0, HS, vT0))
    g.e('v_lshlrev_b32 v%d, 7, v%d' % (vT2, vG))
    g.e('v_lshl_add_u32 v%d, v%d, 4, v%d' % (vT2, vT1, vT2))
    g.e('v_add3_u32 v%d, v%d, v%d, s%d' % (vT0, vT0, vT2, sT0))
    for u in range(2):
        for a in range(2):
            g.e('ds_write_b128 v%d, %s offset:%d' % (vT0, vr(vQ + 4 * (2 * u + a), 4), OP_LDS + u * 4 * HS + a * 64))
    g.c('m,l: lanes g==0 and (n&1)==0 -> ML_LDS + (w*8+eta)*8')
    g.e('v_lshrrev_b32 v%d, 2, v%d' % (vT0, vL15))
    g.e('v_bfe_u32 v%d, v%d, 1, 1' % (vT1, vL15))
    g.e('v_lshl_add_u32 v%d, v%d, 2, v%d' % (vT0, vT1, vT0))
    g.e('s_lshl_b32 s%d, s%d, 6' % (sT0, sW))
    g.e('v_lshlrev_b32 v%d, 3, v%d' % (vT0, vT0))
    g.e('v_add_u32 v%d, s%d, v%d' % (vT0, sT0, vT0))
    g.e('v_and_b32 v%d, 0x31, v%d' % (vT1, vLane))
    g.e('v_cmp_eq_u32 vcc, 0, v%d' % vT1)
    g.e('s_and_saveexec_b64 s[%d:%d], vcc' % (sEX, sEX + 1))
    g.e('ds_write_b64 v%d, %s offset:%d' % (vT0, vr(vM, 2), ML_LDS))
    g.e('s_mov_b64 exec, s[%d:%d]' % (sEX, sEX + 1))
    g.wait_lgkm(0)
    g.e('s_barrier')
    g.c('wave w combines head w')
    R = 64
    RM = 80
    g.e('s_mul_i32 s%d, s%d, %d' % (sT0, sW, HS))
    g.e('v_lshlrev_b32 v%d, 3, v%d' % (vT0, vLane))
    g.e('v_add_u32 v%d, s%d, v%d' % (vT0, sT0, vT0))
    g.e('s_lshl_b32 s%d, s%d, 3' % (sT1, sW))
    g.e('v_mov_b32 v%d, s%d' % (vT1, sT1))
    for w in range(8):
        g.e('ds_read_b64 %s, v%d offset:%d' % (vr(RM + 2 * w, 2), vT1, ML_LDS + w * 64))
    for w in range(8):
        g.e('ds_read_b64 %s, v%d offset:%d' % (vr(R + 2 * w, 2), vT0, OP_LDS + w * WSTR))
    g.wait_lgkm(8)
    g.e('v_max3_f32 v%d, v%d, v%d, v%d' % (vM, RM, RM + 2, RM + 4))
    g.e('v_max3_f32 v%d, v%d, v%d, v%d' % (vM, vM, RM + 6, RM + 8))
    g.e('v_max3_f32 v%d, v%d, v%d, v%d' % (vM, vM, RM + 10, RM + 12))
    g.e('v_max_f32 v%d, v%d, v%d' % (vM, vM, RM + 14))
    for w in range(8):
        g.e('v_sub_f32 v%d, v%d, v%d' % (RM + 2 * w, RM + 2 * w, vM))
    for w in range(8):
        g.e('v_mul_f32 v%d, s%d, v%d' % (RM + 2 * w, sL2E, RM + 2 * w))
    for w in range(8):
        g.e('v_exp_f32 v%d, v%d' % (RM + 2 * w, RM + 2 * w))
    g.e('v_mul_f32 v%d, v%d, v%d' % (vLs, RM, RM + 1))
    for w in range(1, 8):
        g.e('v_fmac_f32 v%d, v%d, v%d' % (vLs, RM + 2 * w, RM + 2 * w + 1))
    g.wait_lgkm(0)
    g.e('v_mul_f32 v%d, v%d, v%d' % (vT2, RM, R))
    g.e('v_mul_f32 v%d, v%d, v%d' % (vT3, RM, R + 1))
    for w in range(1, 8):
        g.e('v_fmac_f32 v%d, v%d, v%d' % (vT2, RM + 2 * w, R + 2 * w))
        g.e('v_fmac_f32 v%d, v%d, v%d' % (vT3, RM + 2 * w, R + 2 * w + 1))
    g.c('store: O_OFF + ((8kv+w)*64+u)*512 + 8l ; ML_OFF + ((8kv+w)*64+u)*8')
    g.e('s_lshl_b32 s%d, s%d, 3' % (sT0, sKV))
    g.e('s_add_u32 s%d, s%d, s%d' % (sT0, sT0, sW))
    g.e('s_lshl_b32 s%d, s%d, 6' % (sT0, sT0))
    g.e('s_add_u32 s%d, s%d, s%d' % (sT0, sT0, sU))
    g.e('s_lshl_b32 s%d, s%d, 9' % (sT1, sT0))
    g.e('s_add_u32 s%d, s%d, %d' % (sT1, sT1, O_OFF))
    g.e('s_lshl_b32 s%d, s%d, 3' % (sT2, sT0))
    g.e('s_add_u32 s%d, s%d, %d' % (sT2, sT2, ML_OFF))
    g.e('v_lshlrev_b32 v%d, 3, v%d' % (vT0, vLane))
    g.e('buffer_store_dwordx2 %s, v%d, %s, s%d offen%s' % (vr(vT2, 2), vT0, srd('ws'), sT1, stflags), 'st')
    g.e('v_cmp_eq_u32 vcc, 0, v%d' % vLane)
    g.e('s_and_saveexec_b64 s[%d:%d], vcc' % (sEX, sEX + 1))
    g.e('buffer_store_dwordx2 %s, v%d, %s, s%d offen%s' % (vr(vM, 2), vT0, srd('ws'), sT2, stflags), 'st')
    g.e('s_mov_b64 exec, s[%d:%d]' % (sEX, sEX + 1))

import os
NT = os.environ.get('NT', '')
def attn(g, nt=None):
    nt = NT
    make_masks(g)
    attn_addrs(g)
    load_q(g)
    for T in range(8): load_ktile(g, T, nt)
    for T in range(3): load_vtile(g, T, nt)
    stamp(g, 1)
    g.wait_vm('Q')
    stamp(g, 2)
    for T in range(8):
        g.wait_vm('K%d' % T)
        if T == 0: stamp(g, 3)
        qk_tile(g, T)
        if T > 0: score_tile(g, T - 1)
        if T < 5:
            load_vtile(g, T + 3, nt)
    stamp(g, 4)
    score_tile(g, 7)
    softmax_all(g)
    stamp(g, 5)
    for T in range(8):
        g.wait_vm('V%d' % T)
        pv_tile(g, T)
    stamp(g, 6)
    attn_combine(g)

RED_LDS = 0
OD_LDS = 4096
RED2_LDS = 8192
vWO = 144
vWD = 160
vHD = 176
vPO = 180
vPM = 196
vOD = 200
vAC = 208

def tail_wloads(g, nt=''):
    g.c('wo: row = 128h+16w+4jj+g ; voff = row*2048 + b*256 + c*16')
    g.e('s_lshl_b32 s%d, s%d, 7' % (sT0, sH))
    g.e('s_lshl_b32 s%d, s%d, 4' % (sT1, sW))
    g.e('s_add_u32 s%d, s%d, s%d' % (sT0, sT0, sT1))
    g.e('s_lshl_b32 s%d, s%d, 11' % (sT0, sT0))
    g.e('s_lshl_b32 s%d, s%d, 8' % (sT2, sB))
    g.e('s_add_u32 s%d, s%d, s%d' % (sT0, sT0, sT2))
    g.e('v_lshlrev_b32 v%d, 11, v%d' % (vT0, vG))
    g.e('v_lshl_add_u32 v%d, v%d, 4, v%d' % (vT0, vL15, vT0))
    g.e('v_add_u32 v%d, s%d, v%d' % (vA2, sT0, vT0))
    for jj in range(4):
        g.e('s_mov_b32 s%d, %d' % (sT3, jj * 8192))
        g.e('buffer_load_dwordx4 %s, v%d, %s, s%d offen%s' % (vr(vWO + 4 * jj, 4), vA2, srd('wo'), sT3, nt), 'wo')
    g.c('wd: row = 112h+16w+4jj+g (w<7)')
    g.e('s_mul_i32 s%d, s%d, 112' % (sT0, sH))
    g.e('s_add_u32 s%d, s%d, s%d' % (sT0, sT0, sT1))
    g.e('s_mov_b32 s15, s%d' % sT0)
    g.e('s_lshl_b32 s%d, s%d, 11' % (sT0, sT0))
    g.e('s_add_u32 s%d, s%d, s%d' % (sT0, sT0, sT2))
    g.e('s_cmp_eq_u32 s%d, 7' % sW)
    g.e('s_cselect_b32 s%d, 0x40000000, s%d' % (sT0, sT0))
    g.e('v_add_u32 v%d, s%d, v%d' % (vA3, sT0, vT0))
    for jj in range(4):
        g.e('s_mov_b32 s%d, %d' % (sT3, jj * 8192))
        g.e('buffer_load_dwordx4 %s, v%d, %s, s%d offen%s' % (vr(vWD + 4 * jj, 4), vA3, srd('wd'), sT3, nt), 'wd')

def tail_hload(g, flags=''):
    g.c('h gather: H_OFF + (112h+16w+g)*2 + 8jj')
    g.e('s_lshl_b32 s%d, s15, 1' % sT0)
    g.e('s_add_u32 s%d, s%d, %d' % (sT0, sT0, H_OFF))
    g.e('s_cmp_eq_u32 s%d, 7' % sW)
    g.e('s_cselect_b32 s%d, 0x40000000, s%d' % (sT0, sT0))
    g.e('v_lshlrev_b32 v%d, 1, v%d' % (vT0, vG))
    g.e('v_add_u32 v%d, s%d, v%d' % (vT0, sT0, vT0))
    for jj in range(4):
        g.e('buffer_load_ushort v%d, v%d, %s, 0 offen offset:%d%s' % (vHD + jj, vT0, srd('ws'), 8 * jj, flags), 'h')

def tail_pload(g, flags=''):
    g.c('ml: ML_OFF + (h*64+lane)*8 ; O: O_OFF + (h*64+8w+(l>>5))*512 + (l&31)*16 + i*1024')
    g.e('s_lshl_b32 s%d, s%d, 9' % (sT0, sH))
    g.e('s_add_u32 s%d, s%d, %d' % (sT0, sT0, ML_OFF))
    g.e('v_lshlrev_b32 v%d, 3, v%d' % (vT0, vLane))
    g.e('buffer_load_dwordx2 %s, v%d, %s, s%d offen%s' % (vr(vPM, 2), vT0, srd('ws'), sT0, flags), 'pm')
    g.e('s_lshl_b32 s%d, s%d, 15' % (sT0, sH))
    g.e('s_lshl_b32 s%d, s%d, 12' % (sT1, sW))
    g.e('s_add_u32 s%d, s%d, s%d' % (sT0, sT0, sT1))
    g.e('s_add_u32 s%d, s%d, %d' % (sT0, sT0, O_OFF))
    g.e('v_lshlrev_b32 v%d, 4, v%d' % (vT1, vLane))
    for i in range(4):
        g.e('buffer_load_dwordx4 %s, v%d, %s, s%d offen offset:%d%s' % (vr(vPO + 4 * i, 4), vT1, srd('ws'), sT0, 1024 * i, flags), 'po')

def tail1_compute(g, stflags=''):
    vWt = vT4; vLsum = vT5
    g.e('v_mov_b32 v%d, v%d' % (vT2, vPM))
    allreduce_inrow(g, 'v_max_f32', [vT2], [8, 4, 2, 1])
    allreduce_rows(g, 'v_max_f32', [vT2], vT3)
    g.e('v_sub_f32 v%d, v%d, v%d' % (vWt, vPM, vT2))
    g.e('v_mul_f32 v%d, s%d, v%d' % (vWt, sL2E, vWt))
    g.e('v_exp_f32 v%d, v%d' % (vWt, vWt))
    g.e('v_mul_f32 v%d, v%d, v%d' % (vLsum, vWt, vPM + 1))
    allreduce_inrow(g, 'v_add_f32', [vLsum], [8, 4, 2, 1])
    allreduce_rows(g, 'v_add_f32', [vLsum], vT3)
    g.c('weights for my splits: idx = (8w + 2i + (l>>5))*4')
    g.e('v_lshrrev_b32 v%d, 5, v%d' % (vT0, vLane))
    g.e('s_lshl_b32 s%d, s%d, 3' % (sT0, sW))
    g.e('v_add_lshl_u32 v%d, v%d, s%d, 2' % (vT0, vT0, sT0))
    W4 = vOD
    for i in range(4):
        if i: g.e('v_add_u32 v%d, 8, v%d' % (vT0, vT0))
        g.e('ds_bpermute_b32 v%d, v%d, v%d' % (W4 + i, vT0, vWt))
    g.wait_lgkm(0)
    g.wait_vm('po')
    stamp(g, 3)
    A = vAC
    for k in range(4):
        g.e('v_mul_f32 v%d, v%d, v%d' % (A + k, W4, vPO + k))
    for i in range(1, 4):
        for k in range(4):
            g.e('v_fmac_f32 v%d, v%d, v%d' % (A + k, W4 + i, vPO + 4 * i + k))
    for k in range(4):
        g.e('v_mov_b32 v%d, v%d' % (vT0, A + k))
        g.e('v_permlane32_swap_b32 v%d, v%d' % (A + k, vT0))
        g.e('v_add_f32 v%d, v%d, v%d' % (A + k, A + k, vT0))
    g.e('s_lshl_b32 s%d, s%d, 9' % (sT0, sW))
    g.e('v_lshlrev_b32 v%d, 4, v%d' % (vT0, vLane))
    g.e('v_add_u32 v%d, s%d, v%d' % (vT0, sT0, vT0))
    g.e('v_cmp_gt_u32 vcc, 32, v%d' % vLane)
    g.e('s_and_saveexec_b64 s[%d:%d], vcc' % (sEX, sEX + 1))
    g.e('ds_write_b128 v%d, %s offset:%d' % (vT0, vr(A, 4), RED_LDS))
    g.e('s_mov_b64 exec, s[%d:%d]' % (sEX, sEX + 1))
    g.wait_lgkm(0)
    g.e('s_barrier')
    lab = g.newlabel('t1skip')
    g.e('s_cmp_ge_u32 s%d, 2' % sW)
    g.e('s_cbranch_scc1 %s' % lab)
    g.c('threads 0..127: p = tid')
    g.e('v_lshlrev_b32 v%d, 2, v0' % vT0)
    for w in range(8):
        g.e('ds_read_b32 v%d, v%d offset:%d' % (A + w, vT0, RED_LDS + 512 * w))
    g.e('v_rcp_f32 v%d, v%d' % (vT1, vLsum))
    g.c('d = 32(p>>5) + 8(p&3) + 4((p>>4)&1) + ((p>>2)&3); pos = 16(d>>4) + 4(d&3) + ((d>>2)&3)')
    g.e('v_and_b32 v%d, 0x6c, v0' % vT2)
    g.e('v_bfe_u32 v%d, v0, 1, 1' % vT3)
    g.e('v_lshl_or_b32 v%d, v%d, 4, v%d' % (vT2, vT3, vT2))
    g.e('v_and_b32 v%d, 1, v0' % vT3)
    g.e('v_lshl_or_b32 v%d, v%d, 1, v%d' % (vT2, vT3, vT2))
    g.e('v_bfe_u32 v%d, v0, 4, 1' % vT3)
    g.e('v_or_b32 v%d, v%d, v%d' % (vT2, vT2, vT3))
    g.e('v_lshlrev_b32 v%d, 2, v%d' % (vT2, vT2))
    g.wait_lgkm(0)
    for w in range(1, 8):
        g.e('v_add_f32 v%d, v%d, v%d' % (A, A, A + w))
    g.e('v_mul_f32 v%d, v%d, v%d' % (vT0, A, vT1))
    g.e('v_fma_f32 v%d, -v%d, v%d, v%d' % (vT3, vT0, vLsum, A))
    g.e('v_fma_f32 v%d, v%d, v%d, v%d' % (vT0, vT3, vT1, vT0))
    g.e('v_cvt_pk_bf16_f32 v%d, v%d, v%d' % (vT0, vT0, vT0))
    g.e('ds_write_b32 v%d, v%d offset:%d' % (vT2, vT0, OD_LDS))
    g.wait_lgkm(0)
    g.label(lab)
    g.e('s_barrier')
    g.e('s_lshl_b32 s%d, s%d, 6' % (sT0, sW))
    g.e('v_lshlrev_b32 v%d, 4, v%d' % (vT0, vG))
    g.e('v_add_u32 v%d, s%d, v%d' % (vT0, sT0, vT0))
    g.e('ds_read_b128 %s, v%d offset:%d' % (vr(vOD, 4), vT0, OD_LDS))
    g.wait_vm('h')
    for jj in range(4):
        g.e('v_lshl_or_b32 v%d, v%d, 16, v%d' % (vHD + jj, vHD + jj, vHD + jj))
    g.wait_vm('wd')
    g.wait_lgkm(0)
    stamp(g, 4)
    for ab, (vec, W) in enumerate(((vOD, vWO), (vHD, vWD))):
        for jj in range(4):
            bb = vB + 2 * (jj & 1)
            g.e('v_and_b32 v%d, v%d, v%d' % (bb, vec + jj, vMask0))
            g.e('v_and_b32 v%d, v%d, v%d' % (bb + 1, vec + jj, vMask1))
            for a in range(2):
                acc = vAC + 8 * ab + 4 * a
                g.e('v_mfma_f32_16x16x16_bf16 %s, %s, %s, %s' % (vr(acc, 4), vr(W + 4 * jj + 2 * a, 2), vr(bb, 2), '0' if jj == 0 else vr(acc, 4)))
    g.c('write red2: (w*2+ab)*512 + ((2g+a)*4+e0)*16, lanes n<4')
    g.e('s_lshl_b32 s%d, s%d, 10' % (sT0, sW))
    g.e('v_lshlrev_b32 v%d, 7, v%d' % (vT0, vG))
    g.e('v_lshl_add_u32 v%d, v%d, 4, v%d' % (vT0, vL15, vT0))
    g.e('v_add_u32 v%d, s%d, v%d' % (vT0, sT0, vT0))
    g.e('v_cmp_gt_u32 vcc, 4, v%d' % vL15)
    g.e('s_and_saveexec_b64 s[%d:%d], vcc' % (sEX, sEX + 1))
    for ab in range(2):
        for a in range(2):
            g.e('ds_write_b128 v%d, %s offset:%d' % (vT0, vr(vAC + 8 * ab + 4 * a, 4), RED2_LDS + ab * 512 + a * 64))
    g.e('s_mov_b64 exec, s[%d:%d]' % (sEX, sEX + 1))
    g.wait_lgkm(0)
    g.e('s_barrier')
    lab2 = g.newlabel('t1skip2')
    g.e('s_cmp_ge_u32 s%d, 4' % sW)
    g.e('s_cbranch_scc1 %s' % lab2)
    g.c('threads 0..255: ab = t>>7, p = t&127')
    g.e('v_lshlrev_b32 v%d, 2, v0' % vT0)
    for w in range(8):
        g.e('ds_read_b32 v%d, v%d offset:%d' % (vPO + w, vT0, RED2_LDS + 1024 * w))
    g.e('v_and_b32 v%d, 0xe0, v0' % vT2)
    g.e('v_and_b32 v%d, 3, v0' % vT3)
    g.e('v_lshl_or_b32 v%d, v%d, 3, v%d' % (vT2, vT3, vT2))
    g.e('v_bfe_u32 v%d, v0, 4, 1' % vT3)
    g.e('v_lshl_or_b32 v%d, v%d, 2, v%d' % (vT2, vT3, vT2))
    g.e('v_bfe_u32 v%d, v0, 2, 2' % vT3)
    g.e('v_or_b32 v%d, v%d, v%d' % (vT2, vT2, vT3))
    g.e('v_lshlrev_b32 v%d, 2, v%d' % (vT2, vT2))
    g.e('s_lshl_b32 s%d, s%d, 5' % (sT0, sB))
    g.e('s_add_u32 s%d, s%d, s%d' % (sT0, sT0, sH))
    g.e('s_lshl_b32 s%d, s%d, 10' % (sT0, sT0))
    g.e('s_add_u32 s%d, s%d, 0x%x' % (sT0, sT0, P2_OFF))
    g.wait_lgkm(0)
    for w in range(1, 8):
        g.e('v_add_f32 v%d, v%d, v%d' % (vPO, vPO, vPO + w))
    g.e('buffer_store_dword v%d, v%d, %s, s%d offen%s' % (vPO, vT2, srd('ws'), sT0, stflags), 'st')
    g.label(lab2)

def tail1(g):
    make_masks(g)
    tail_pload(g)
    tail_wloads(g, NT)
    tail_hload(g)
    stamp(g, 1)
    g.wait_vm('pm')
    stamp(g, 2)
    tail1_compute(g)

def tail2_load(g, flags=''):
    g.c('lane(h2=l&31, ab=l>>5): P2_OFF + (((b*32+h2)*2+ab)*128 + 4h)*4')
    g.e('v_and_b32 v%d, 31, v%d' % (vT0, vLane))
    g.e('v_lshrrev_b32 v%d, 5, v%d' % (vT1, vLane))
    g.e('v_lshlrev_b32 v%d, 10, v%d' % (vT0, vT0))
    g.e('v_lshl_add_u32 v%d, v%d, 9, v%d' % (vA0, vT1, vT0))
    g.e('s_lshl_b32 s%d, s%d, 15' % (sT0, sB))
    g.e('s_lshl_b32 s%d, s%d, 4' % (sT1, sH))
    g.e('s_add_u32 s%d, s%d, s%d' % (sT0, sT0, sT1))
    g.e('s_add_u32 s%d, s%d, 0x%x' % (sT0, sT0, P2_OFF))
    g.e('buffer_load_dwordx4 %s, v%d, %s, s%d offen%s' % (vr(64, 4), vA0, srd('ws'), sT0, flags), 'p2')

def tail2_xload(g):
    g.e('s_lshl_b32 s%d, s%d, 8' % (sT1, sB))
    g.e('s_lshl_b32 s%d, s%d, 3' % (sT2, sH))
    g.e('s_add_u32 s%d, s%d, s%d' % (sT1, sT1, sT2))
    g.e('v_mov_b32 v%d, s%d' % (vA1, sT1))
    g.e('buffer_load_dwordx2 %s, v%d, %s, 0 offen' % (vr(72, 2), vA1, srd('x')), 'x2')

def tail2_compute(g):
    R = 64
    regs = [R, R + 1, R + 2, R + 3]
    allreduce_inrow(g, 'v_add_f32', regs, [8, 4, 2, 1])
    for r in regs:
        g.e('v_mov_b32 v%d, v%d' % (vT0, r))
        g.e('v_permlane16_swap_b32 v%d, v%d' % (r, vT0))
        g.e('v_add_f32 v%d, v%d, v%d' % (r, r, vT0))
    for k, r in enumerate(regs):
        g.e('v_mov_b32 v%d, v%d' % (R + 4 + k, r))
        g.e('v_permlane32_swap_b32 v%d, v%d' % (r, R + 4 + k))
    g.wait_vm('x2')
    X = 76
    g.e('v_lshlrev_b32 v%d, 16, v72' % X)
    g.e('v_and_b32 v%d, s%d, v72' % (X + 1, sHI))
    g.e('v_lshlrev_b32 v%d, 16, v73' % (X + 2))
    g.e('v_and_b32 v%d, s%d, v73' % (X + 3, sHI))
    for k in range(4):
        round_bf16(g, R + k, R + k)
        round_bf16(g, R + 4 + k, R + 4 + k)
        g.e('v_add_f32 v%d, v%d, v%d' % (R + k, R + k, X + k))
        round_bf16(g, R + k, R + k)
        g.e('v_add_f32 v%d, v%d, v%d' % (R + k, R + k, R + 4 + k))
    g.e('v_cvt_pk_bf16_f32 v%d, v%d, v%d' % (X, R, R + 1))
    g.e('v_cvt_pk_bf16_f32 v%d, v%d, v%d' % (X + 1, R + 2, R + 3))
    g.e('v_cmp_eq_u32 vcc, 0, v%d' % vLane)
    g.e('s_and_saveexec_b64 s[%d:%d], vcc' % (sEX, sEX + 1))
    g.e('buffer_store_dwordx2 %s, v%d, %s, 0 offen' % (vr(X, 2), vA1, srd('out')), 'st')
    g.e('s_mov_b64 exec, s[%d:%d]' % (sEX, sEX + 1))

def tail2(g):
    tail2_load(g)
    tail2_xload(g)
    stamp(g, 1)
    g.wait_vm('p2')
    stamp(g, 2)
    tail2_compute(g)

_lab = [0]
def kernel(name, body, used, kidx=0, nvgpr=256, first_srds=None):
    g = Gen()
    g.endlabel = 'L_end_' + name
    g.endlabel2 = 'L_end2_' + name
    def newlabel(p):
        _lab[0] += 1
        return 'L_%s_%d' % (p, _lab[0])
    g.newlabel = newlabel
    g.first_srds = first_srds
    g.raw('.globl %s' % name)
    g.raw('.p2align 8')
    g.raw('.type %s,@function' % name)
    g.raw('%s:' % name)
    if STAMP or DBGT:
        for i in range(8): g.e('s_mov_b32 s%d, 0' % (94 + i))
        g.e('s_memrealtime s[92:93]')
    prologue(g, used)
    if STAMP or DBGT: g.e('s_mov_b32 s94, s92')
    body(g)
    g.label(g.endlabel2)
    if DBGT:
        g.e('s_cmp_lg_u32 s%d, 0' % sW)
        g.e('s_cbranch_scc1 %s' % g.endlabel)
        g.e('s_memrealtime s[92:93]')
        g.e('s_waitcnt lgkmcnt(0)')
        g.e('v_mov_b32 v16, s92')
        g.e('s_sub_u32 s94, 0, s94')
        g.e('v_mov_b32 v17, s94')
        g.e('v_mov_b32 v18, 16')
        g.e('s_mov_b64 exec, 1')
        g.e('buffer_atomic_umax v16, v18, %s, 0 offen sc1' % srd('dbg'))
        g.e('buffer_atomic_umax v17, v18, %s, 0 offen offset:4 sc1' % srd('dbg'))
    stamp_store(g, kidx)
    g.label(g.endlabel)
    g.e('s_endpgm')
    kd = '''.amdhsa_kernel %s
  .amdhsa_next_free_vgpr %d
  .amdhsa_next_free_sgpr 102
  .amdhsa_accum_offset %d
  .amdhsa_group_segment_fixed_size 0
  .amdhsa_kernarg_size 96
  .amdhsa_user_sgpr_count 2
  .amdhsa_user_sgpr_kernarg_segment_ptr 1
  .amdhsa_system_sgpr_workgroup_id_x 1
  .amdhsa_float_denorm_mode_32 3
  .amdhsa_float_denorm_mode_16_64 3
.end_amdhsa_kernel
''' % (name, nvgpr, nvgpr)
    return g.text(), kd

HEADER = open('cdna_kernels/%s.s.ref' % NAME).read().split('; Override launch')[0]

def main():
    ks = [
        ('head_kernel', head, ['x', 'wq', 'wg', 'wu', 'ws'], 512, 12288),
        ('attn_kernel', attn, ['K', 'V', 'ws'], 512, 40960),
        ('tail1_kernel', tail1, ['wo', 'wd', 'ws'], 512, 20480),
        ('tail2_kernel', tail2, ['x', 'out', 'ws'], 64, 0),
    ]
    out = HEADER
    for n, _, _, blk, lds in ks:
        out += '; @launch kernel=%s grid=(256,1,1) block=(%d,1,1) lds=%d\n' % (n, blk, lds)
    out += '.amdgcn_target "amdgcn-amd-amdhsa--gfx950"\n.text\n'
    kds = ''
    for kidx, (n, body, used, blk, lds) in enumerate(ks):
        t, kd = kernel(n, body, used, kidx)
        out += t
        kds += '.p2align 6\n' + kd
    out += '.section .rodata,"a"\n' + kds
    path = sys.argv[1] if len(sys.argv) > 1 else 'cdna_kernels/%s.s' % NAME
    open(path, 'w').write(out)
    print('wrote', path, len(out))

if __name__ == '__main__':
    main()
```

```python
import sys, os
sys.path.insert(0, 'gen')
import gen1, gen2, gen5, gen6
from gen1 import *
from gen2 import *
from gen5 import *
from gen6 import gu_dest, gemv_fma, row0_calc, part_addr, L_HP6, LDS6
from gen4 import ln_part
EARLYGU = int(os.environ.get('EARLYGU', '0'))
HOLD = 0
if EARLYGU == 5:
    EARLYGU = 4; HOLD = 1
NPF = int(os.environ.get('NPF', '8'))
LATEW = int(os.environ.get('LATEW', '0'))
POLLW = int(os.environ.get('POLLW', '0'))
KEARLY = int(os.environ.get('KEARLY', '0'))
NVPF = int(os.environ.get('NVPF', '0'))
HGW = 1
L_HQ = 0

def clears7(g):
    gen6.CLR = ' sc1'
    gen6.clears6(g)
    if EARLYGU == 4:
        g.c('q partial slot clear (wave 6, lanes 0..15)')
        g.e('s_lshl_b32 s%d, s%d, 4' % (sT0, sKV))
        g.e('s_add_u32 s%d, s%d, s%d' % (sT0, sT0, sCBL))
        g.e('s_lshl_b32 s%d, s%d, 8' % (sT1, sT0))
        g.e('s_lshl_b32 s%d, s%d, 14' % (sT2, sKQ))
        g.e('s_add_u32 s%d, s%d, s%d' % (sT2, sT2, sT1))
        g.e('s_cmp_lg_u32 s%d, 6' % sW)
        g.e('s_cselect_b32 s%d, 0x40000000, s%d' % (sT2, sT2))
        g.e('s_mov_b64 exec, 0xffff')
        g.e('buffer_store_dwordx4 %s, v%d, %s, s%d offen sc1' % (vr(vT2, 4), vT0, srd('ws'), sT2), 'st')
        g.e('s_mov_b64 exec, -1')

def h_gather7(g):
    Hh = 64
    lsk = g.newlabel('nohg'); lloop = g.newlabel('hgloop'); lok = g.newlabel('hgok')
    g.e('s_cmp_lg_u32 s%d, %d' % (sW, HGW))
    g.e('s_cbranch_scc1 %s' % lsk)
    if EARLYGU == 3:
        lp = g.newlabel('cb'); lq = g.newlabel('cbok')
        g.e('v_and_b32 v%d, 3, v%d' % (vT1, vLane))
        g.e('v_lshlrev_b32 v%d, 6, v%d' % (vT1, vT1))
        g.e('s_mov_b32 s%d, 0' % sCNT)
        sv = list(g.vm)
        g.label(lp)
        g.e('buffer_load_dword v%d, v%d, %s, 0 offen offset:4 sc1' % (vT5, vT1, srd('dbg')), 'poll')
        g.e('s_waitcnt vmcnt(0)')
        g.e('v_cmp_gt_u32 vcc, 64, v%d' % vT5)
        g.e('s_cmp_eq_u64 vcc, 0')
        g.e('s_cbranch_scc1 %s' % lq)
        g.e('s_sleep 1')
        spin_tail(g, lp, lq)
        g.label(lq)
        g.vm = sv
    g.e('s_mul_i32 s%d, s%d, 448' % (sT0, sH))
    g.e('v_min_u32 v%d, 55, v%d' % (vT1, vLane))
    g.e('v_lshlrev_b32 v%d, 3, v%d' % (vT1, vT1))
    g.e('v_add_u32 v%d, s%d, v%d' % (vT1, sT0, vT1))
    g.e('s_mov_b32 s%d, 0' % sCNT)
    saved = list(g.vm)
    g.label(lloop)
    for kq in range(4):
        g.e('s_mov_b32 s%d, %d' % (sT3, GP_OFF + kq * 3584 * 4))
        g.e('buffer_load_dwordx2 %s, v%d, %s, s%d offen sc1' % (vr(Hh + 2 * kq, 2), vT1, srd('ws'), sT3), 'hg')
        g.e('s_mov_b32 s%d, %d' % (sT3, UP_OFF + kq * 3584 * 4))
        g.e('buffer_load_dwordx2 %s, v%d, %s, s%d offen sc1' % (vr(Hh + 8 + 2 * kq, 2), vT1, srd('ws'), sT3), 'hg')
    g.e('s_waitcnt vmcnt(0)')
    g.e('v_max_u32 v%d, v%d, v%d' % (vT0, Hh, Hh + 1))
    for i in range(1, 8):
        g.e('v_max3_u32 v%d, v%d, v%d, v%d' % (vT0, vT0, Hh + 2 * i, Hh + 2 * i + 1))
    g.e('v_cmp_eq_u32 vcc, -1, v%d' % vT0)
    g.e('s_cmp_eq_u64 vcc, 0')
    g.e('s_cbranch_scc1 %s' % lok)
    g.e('s_sleep 1')
    spin_tail(g, lloop, lok)
    g.label(lok)
    g.vm = saved
    for e in range(2):
        gg = Hh + e; uu = Hh + 8 + e
        g.e('v_add_f32 v%d, v%d, v%d' % (gg, gg, gg + 2))
        g.e('v_add_f32 v%d, v%d, v%d' % (gg + 4, gg + 4, gg + 6))
        g.e('v_add_f32 v%d, v%d, v%d' % (gg, gg, gg + 4))
        g.e('v_add_f32 v%d, v%d, v%d' % (uu, uu, uu + 2))
        g.e('v_add_f32 v%d, v%d, v%d' % (uu + 4, uu + 4, uu + 6))
        g.e('v_add_f32 v%d, v%d, v%d' % (uu, uu, uu + 4))
        round_bf16(g, gg, gg)
        round_bf16(g, uu, uu)
        g.e('v_mul_f32 v%d, v%d, v%d' % (vT2, gg, gg))
        g.e('v_mul_f32 v%d, v%d, v%d' % (vT2, vT2, gg))
        g.e('v_mul_f32 v%d, 0x3d372713, v%d' % (vT2, vT2))
        g.e('v_add_f32 v%d, v%d, v%d' % (vT2, vT2, gg))
        g.e('v_mul_f32 v%d, 0x3f4c422a, v%d' % (vT2, vT2))
        g.e('v_mul_f32 v%d, 0xc038aa3b, v%d' % (vT2, vT2))
        g.e('v_exp_f32 v%d, v%d' % (vT2, vT2))
        g.e('v_add_f32 v%d, 1.0, v%d' % (vT2, vT2))
        g.e('v_rcp_f32 v%d, v%d' % (vT2, vT2))
        g.e('v_mul_f32 v%d, v%d, v%d' % (vT2, vT2, gg))
        round_bf16(g, vT2, vT2)
        g.e('v_mul_f32 v%d, v%d, v%d' % (vT2, vT2, uu))
        g.e('v_cvt_pk_bf16_f32 v%d, v%d, v%d' % (gg, vT2, vT2))
    for e in range(2):
        g.e('v_lshlrev_b32 v%d, 1, v%d' % (vT2, vLane))
        if e: g.e('v_or_b32 v%d, 1, v%d' % (vT2, vT2))
        g.e('v_and_b32 v%d, 0x70, v%d' % (vT3, vT2))
        g.e('v_and_b32 v%d, 3, v%d' % (vT4, vT2))
        g.e('v_lshl_or_b32 v%d, v%d, 2, v%d' % (vT3, vT4, vT3))
        g.e('v_bfe_u32 v%d, v%d, 2, 2' % (vT4, vT2))
        g.e('v_or_b32 v%d, v%d, v%d' % (vT3, vT3, vT4))
        g.e('v_lshlrev_b32 v%d, 2, v%d' % (vT3, vT3))
        g.e('ds_write_b32 v%d, v%d offset:%d' % (vT3, Hh + e, L_HD))
    g.label(lsk)

def hop1_v2(g):
    wd_loads5(g)
    g.e('s_lshl_b32 s%d, s%d, 9' % (sT0, sH))
    g.e('s_add_u32 s%d, s%d, 0x%x' % (sT0, sT0, ML_OFF2))
    g.e('s_mov_b32 s%d, s%d' % (sKQ, sT0))
    g.e('v_lshlrev_b32 v%d, 3, v%d' % (vA0, vLane))
    lsk = g.newlabel('h1skip'); lloop = g.newlabel('h1loop')
    g.e('s_cmp_lg_u32 s%d, 7' % sW)
    g.e('s_cbranch_scc1 %s' % lsk)
    g.e('s_mov_b32 s%d, 0' % sCNT)
    g.label(lloop)
    g.e('buffer_load_dwordx2 %s, v%d, %s, s%d offen sc1' % (vr(vPM, 2), vA0, srd('ws'), sKQ), 'pp')
    g.e('s_waitcnt vmcnt(0)')
    g.e('v_max_u32 v%d, v%d, v%d' % (vT0, vPM, vPM + 1))
    g.e('v_cmp_eq_u32 vcc, -1, v%d' % vT0)
    g.e('s_cmp_eq_u64 vcc, 0')
    g.e('s_cbranch_scc1 %s' % lsk)
    g.e('s_sleep 1')
    spin_tail(g, lloop, lsk)
    g.label(lsk)
    g.vm.pop()
    g.e('s_lshl_b32 s%d, s%d, 15' % (sT1, sH))
    g.e('s_lshl_b32 s%d, s%d, 12' % (sT2, sW))
    g.e('s_add_u32 s%d, s%d, s%d' % (sT1, sT1, sT2))
    g.e('s_add_u32 s%d, s%d, 0x%x' % (sCBL, sT1, O_OFF2))
    g.e('v_lshlrev_b32 v%d, 4, v%d' % (vA1, vLane))
    g.e('s_barrier')
    stamp(g, 6)
    def gl():
        g.e('buffer_load_dwordx2 %s, v%d, %s, s%d offen sc1' % (vr(vPM, 2), vA0, srd('ws'), sKQ), 'pm')
        for i in range(4):
            g.e('buffer_load_dwordx4 %s, v%d, %s, s%d offen offset:%d sc1' % (vr(vPO + 4 * i, 4), vA1, srd('ws'), sCBL, 1024 * i), 'po')
    def chk(lok):
        g.e('v_max_u32 v%d, v%d, v%d' % (vT0, vPM, vPM + 1))
        for i in range(8):
            g.e('v_max3_u32 v%d, v%d, v%d, v%d' % (vT0, vT0, vPO + 2 * i, vPO + 2 * i + 1))
        g.e('v_cmp_eq_u32 vcc, -1, v%d' % vT0)
        g.e('s_cmp_eq_u64 vcc, 0')
        g.e('s_cbranch_scc1 %s' % lok)
    gl()
    wo_loads5(g)
    ffn_mfma(g)
    g.wait_vm('po')
    lloop = g.newlabel('h1loop2'); lok = g.newlabel('h1ok')
    chk(lok)
    g.e('s_mov_b32 s%d, 0' % sCNT)
    saved = list(g.vm)
    g.label(lloop)
    g.e('s_sleep 1')
    gl()
    g.e('s_waitcnt vmcnt(0)')
    chk(lok)
    spin_tail(g, lloop, lok)
    g.label(lok)
    g.vm = saved

def fused7(g):
    vX = 224; vXF = 232; vWQ = 16; vWG = 192; vWU = 208; vACC = 32; vXN = 56
    vGU = 60
    g.e('s_lshr_b32 s%d, s%d, 2' % (sCBL, sU))
    g.e('s_and_b32 s%d, s%d, 3' % (sKQ, sU))
    if EARLYGU == 2: clears7(g)
    g.e('v_lshlrev_b32 v%d, 5, v%d' % (vA0, vLane))
    g.e('buffer_load_dwordx4 %s, v%d, %s, 0 offen' % (vr(vX, 4), vA0, srd('x')), 'x')
    g.e('buffer_load_dwordx4 %s, v%d, %s, 0 offen offset:16' % (vr(vX + 4, 4), vA0, srd('x')), 'x')
    row0_calc(g)
    g.e('v_lshlrev_b32 v%d, 13, v%d' % (vA1, vT0))
    g.e('v_add3_u32 v%d, v%d, v%d, s%d' % (vA1, vA1, vT1, sT1))
    for i in range(4):
        g.e('s_mov_b32 s%d, %d' % (sT3, i * 8192))
        g.e('buffer_load_dwordx4 %s, v%d, %s, s%d offen%s' % (vr(vWQ + 4 * i, 4), vA1, srd('wq'), sT3, NT), 'wq')
    build_srds(g, g.late_srds)
    g.e('s_cmp_ge_u32 s%d, %d' % (sT1, 56 * 128))
    g.e('s_cselect_b32 s%d, 0x40000000, s%d' % (sT1, sT1))
    g.e('s_mov_b32 s%d, 7168' % sT2)
    g.e('v_mul_lo_u32 v%d, v%d, s%d' % (vGU, vT0, sT2))
    g.e('v_add3_u32 v%d, v%d, v%d, s%d' % (vGU, vGU, vT1, sT1))
    g.e('v_lshlrev_b32 v%d, 2, v%d' % (vA3, vT0))
    g.e('v_add_u32 v%d, %d, v%d' % (vA3, L_XN, vA3))
    def gu_loads():
        for i in range(4):
            g.e('s_mov_b32 s%d, %d' % (sT3, i * 7168))
            g.e('buffer_load_dwordx4 %s, v%d, %s, s%d offen%s' % (vr(vWG + 4 * i, 4), vGU, srd('wg'), sT3, NT), 'wg')
            g.e('buffer_load_dwordx4 %s, v%d, %s, s%d offen%s' % (vr(vWU + 4 * i, 4), vGU, srd('wu'), sT3, NT), 'wu')
    if EARLYGU in (2, 3): gu_loads()
    else: clears7(g)
    g.wait_vm('x')
    ln_part(g, vX, vXF)
    g.e('v_lshlrev_b32 v%d, 6, v%d' % (vT0, vLane))
    for k in range(4):
        g.e('ds_write_b128 v%d, %s offset:%d' % (vT0, vr(vXF + 4 * k, 4), L_XN + 16 * k))
    g.wait_lgkm(0)
    g.e('ds_read_b128 %s, v%d' % (vr(vXN, 4), vA3))
    attn_addrs5(g)
    make_masks(g)
    g.wait_lgkm(0)
    g.wait_vm('wq')
    gemv_fma(g, vWQ, vACC, vXN)
    allreduce_inrow(g, 'v_add_f32', list(range(vACC, vACC + 8)), [8])
    part_addr(g)
    g.e('v_mov_b32 v%d, v%d' % (vA3, vT0))
    g.e('v_cmp_gt_u32 vcc, 8, v%d' % vL15)
    g.e('s_and_saveexec_b64 s[%d:%d], vcc' % (sEX, sEX + 1))
    for hf in range(2):
        g.e('ds_write_b128 v%d, %s offset:%d' % (vT0, vr(vACC + 4 * hf, 4), L_HQ + hf * 16))
    g.e('s_mov_b64 exec, s[%d:%d]' % (sEX, sEX + 1))
    if EARLYGU not in (2, 3): g.e('s_waitcnt vmcnt(0)')
    def gu_fma():
        gemv_fma(g, vWG, vACC, vXN)
        gemv_fma(g, vWU, vACC + 8, vXN)
        allreduce_inrow(g, 'v_add_f32', list(range(vACC, vACC + 16)), [8])
        g.e('v_add_u32 v%d, %d, v%d' % (vT0, L_HP6, vA3))
        g.e('v_cmp_gt_u32 vcc, 8, v%d' % vL15)
        g.e('s_and_saveexec_b64 s[%d:%d], vcc' % (sEX, sEX + 1))
        for s_i in range(2):
            for hf in range(2):
                g.e('ds_write_b128 v%d, %s offset:%d' % (vT0, vr(vACC + 8 * s_i + 4 * hf, 4), s_i * 8192 + hf * 16))
        g.e('s_mov_b64 exec, s[%d:%d]' % (sEX, sEX + 1))
    lw0 = g.newlabel('w0path'); ljoin = g.newlabel('join')
    g.e('s_cmp_eq_u32 s%d, 0' % sW)
    g.e('s_cbranch_scc1 %s' % lw0)
    g.c('==== waves 1..7')
    if EARLYGU in (1, 4): gu_loads()
    if EARLYGU == 4:
        for T in range(KEARLY): load_k5(g, T)
    g.wait_lgkm(0)
    g.e('s_barrier')
    stamp(g, 1)
    if EARLYGU == 4:
        if HOLD: g.e('s_barrier')
        for T in range(KEARLY, max(PRE, KEARLY)): load_k5(g, T)
        g.wait_vm('wu')
        gu_fma()
        for T in range(max(PRE, KEARLY), NPF): load_k5(g, T)
    elif EARLYGU in (2, 3):
        for T in range(KEARLY): load_k5(g, T)
        g.wait_vm('wu')
        gu_fma()
        g.e('s_barrier')
        if EARLYGU == 3: clears7(g)
        for T in range(KEARLY, NPF): load_k5(g, T)
        if EARLYGU == 3: g.wait_vm('st')
    else:
        for T in range(KEARLY): load_k5(g, T)
        g.e('s_barrier')
        if not EARLYGU: gu_loads()
        for T in range(KEARLY, PRE): load_k5(g, T)
        g.wait_vm('wu')
        gu_fma()
        for T in range(PRE, NPF): load_k5(g, T)
    for T in range(NVPF): load_v5(g, T)
    g.wait_lgkm(0)
    g.e('s_barrier')
    assert NPF == 8 or NVPF == 0
    for T in range(NPF, 8): load_k5(g, T)
    g.e('s_branch %s' % ljoin)
    g.label(lw0)
    g.c('==== wave 0')
    g.e('v_lshlrev_b32 v%d, 11, v%d' % (vT0, vG))
    g.e('v_lshl_add_u32 v%d, v%d, 4, v%d' % (vT0, vL15, vT0))
    g.e('s_lshl_b32 s%d, s%d, 4' % (sT0, sKV))
    g.e('s_add_u32 s%d, s%d, s%d' % (sT0, sT0, sCBL))
    g.e('s_lshl_b32 s%d, s%d, 8' % (sT1, sT0))
    g.e('s_lshl_b32 s%d, s%d, 14' % (sT2, sKQ))
    g.e('s_add_u32 s%d, s%d, s%d' % (sT2, sT2, sT1))
    g.e('v_lshlrev_b32 v%d, 4, v%d' % (vT2, vLane))
    if EARLYGU == 4: gu_loads()
    g.e('s_lshl_b32 s%d, s%d, 6' % (sT0, sKV))
    g.e('v_mov_b32 v%d, s%d' % (vT4, sT0))
    g.e('v_mov_b32 v%d, 1' % vT3)
    g.wait_lgkm(0)
    g.e('s_barrier')
    stamp(g, 1)
    R = 64
    for k in range(8):
        g.e('ds_read_b128 %s, v%d offset:%d' % (vr(R + 4 * k, 4), vT0, L_HQ + k * 256))
    if EARLYGU == 4:
        g.e('s_mov_b64 exec, 1')
        g.e('buffer_atomic_add v%d, v%d, %s, 0 offen sc1' % (vT3, vT4, srd('dbg')), 'st')
        g.e('s_mov_b64 exec, -1')
    g.e('v_and_b32 v%d, 3, v%d' % (vA2, vLane))
    g.e('v_lshlrev_b32 v%d, 6, v%d' % (vA2, vA2))
    g.wait_lgkm(0)
    for k in range(1, 8):
        for e in range(4):
            g.e('v_add_f32 v%d, v%d, v%d' % (R + e, R + e, R + 4 * k + e))
    allreduce_rows(g, 'v_add_f32', [R + e for e in range(4)], vT1)
    if EARLYGU == 4:
        for e in range(4): g.e('v_min_u32 v%d, -2, v%d' % (R + e, R + e))
    g.e('s_mov_b64 exec, 0xffff')
    g.e('buffer_store_dwordx4 %s, v%d, %s, s%d offen sc1' % (vr(R, 4), vT2, srd('ws'), sT2), 'st')
    if EARLYGU == 4:
        g.e('s_mov_b64 exec, -1')
        stamp(g, 2)
        if HOLD: g.e('s_barrier')
        g.wait_vm('wu')
    else:
        g.e('s_waitcnt vmcnt(0)')
        g.e('s_mov_b64 exec, 1')
        g.e('buffer_atomic_add v%d, v%d, %s, 0 offen sc1' % (vT3, vT4, srd('dbg')), 'st')
        g.e('s_mov_b64 exec, -1')
        stamp(g, 2)
        g.e('s_barrier')
    if EARLYGU not in (2, 3, 4):
        gu_loads()
        g.e('s_waitcnt vmcnt(0)')
    gu_fma()
    if EARLYGU == 3: clears7(g)
    lok = g.newlabel('pollok'); lloop = g.newlabel('pollloop')
    g.e('s_mov_b32 s%d, 0' % sCNT)
    g.label(lloop)
    g.e('buffer_load_dword v%d, v%d, %s, 0 offen sc1' % (vT5, vA2, srd('dbg')), 'poll')
    g.e('s_waitcnt vmcnt(0)')
    g.e('v_cmp_gt_u32 vcc, 64, v%d' % vT5)
    g.e('s_cmp_eq_u64 vcc, 0')
    g.e('s_cbranch_scc1 %s' % lok)
    g.e('s_sleep 1')
    spin_tail(g, lloop, lok)
    g.label(lok)
    stamp(g, 3)
    g.e('s_lshl_b32 s%d, s%d, 12' % (sT0, sKV))
    g.e('v_lshlrev_b32 v%d, 6, v%d' % (vT0, vLane))
    g.e('v_add_u32 v%d, s%d, v%d' % (vT0, sT0, vT0))
    if EARLYGU == 4:
        lq1 = g.newlabel('qloop'); lq2 = g.newlabel('qok')
        g.e('s_mov_b32 s%d, 0' % sCNT)
        g.label(lq1)
    for kq in range(4):
        g.e('s_mov_b32 s%d, %d' % (sT3, QP_OFF + kq * 16384))
        for i in range(4):
            g.e('buffer_load_dwordx4 %s, v%d, %s, s%d offen offset:%d sc1' % (vr(R + 16 * kq + 4 * i, 4), vT0, srd('ws'), sT3, 16 * i), 'qg')
    g.e('s_waitcnt vmcnt(0)')
    if EARLYGU == 4:
        g.e('v_max_u32 v%d, v%d, v%d' % (vT1, R, R + 1))
        for i in range(1, 32):
            g.e('v_max3_u32 v%d, v%d, v%d, v%d' % (vT1, vT1, R + 2 * i, R + 2 * i + 1))
        g.e('v_cmp_eq_u32 vcc, -1, v%d' % vT1)
        g.e('s_cmp_eq_u64 vcc, 0')
        g.e('s_cbranch_scc1 %s' % lq2)
        g.e('s_sleep 1')
        spin_tail(g, lq1, lq2)
        g.label(lq2)
        stamp(g, 4) if os.environ.get('ST4Q') else None
    for e in range(16):
        g.e('v_add_f32 v%d, v%d, v%d' % (R + e, R + e, R + 16 + e))
        g.e('v_add_f32 v%d, v%d, v%d' % (R + 32 + e, R + 32 + e, R + 48 + e))
    for e in range(16):
        g.e('v_add_f32 v%d, v%d, v%d' % (R + e, R + e, R + 32 + e))
    for e in range(8):
        g.e('v_cvt_pk_bf16_f32 v%d, v%d, v%d' % (R + 16 + e, R + 2 * e, R + 2 * e + 1))
    g.e('v_lshlrev_b32 v%d, 5, v%d' % (vT0, vLane))
    g.e('ds_write_b128 v%d, %s offset:%d' % (vT0, vr(R + 16, 4), L_QL))
    g.e('ds_write_b128 v%d, %s offset:%d' % (vT0, vr(R + 20, 4), L_QL + 16))
    g.wait_lgkm(0)
    g.e('s_barrier')
    for T in range(8): load_k5(g, T)
    for T in range(NVPF): load_v5(g, T)
    g.label(ljoin)
    if EARLYGU == 3:
        la = g.newlabel('arr2')
        g.e('s_cmp_lg_u32 s%d, 3' % sW)
        g.e('s_cbranch_scc1 %s' % la)
        g.e('s_lshl_b32 s%d, s%d, 6' % (sT0, sKV))
        g.e('v_mov_b32 v%d, s%d' % (vT4, sT0))
        g.e('v_mov_b32 v%d, 1' % vT3)
        g.e('s_mov_b64 exec, 1')
        saved = list(g.vm)
        g.e('buffer_atomic_add v%d, v%d, %s, 0 offen offset:4 sc1' % (vT3, vT4, srd('dbg')), 'st')
        g.vm = saved
        g.e('s_mov_b64 exec, -1')
        g.label(la)
    g.c('Q frags')
    g.e('v_lshrrev_b32 v%d, 2, v%d' % (vT0, vL15))
    g.e('v_bfe_u32 v%d, v%d, 1, 1' % (vT1, vL15))
    g.e('v_lshl_add_u32 v%d, v%d, 2, v%d' % (vT0, vT1, vT0))
    g.e('v_lshlrev_b32 v%d, 8, v%d' % (vT1, vT0))
    g.e('v_lshl_add_u32 v%d, v%d, 4, v%d' % (vT1, vG, vT1))
    g.e('v_and_b32 v%d, 1, v%d' % (vT0, vLane))
    g.e('v_lshl_add_u32 v%d, v%d, 6, v%d' % (vT1, vT0, vT1))
    for j in range(2):
        g.e('ds_read_b128 %s, v%d offset:%d' % (vr(vQ + 4 * j, 4), vT1, L_QL + 128 * j))
    g.c('waves 1,2: final reduce of gate / up partials and publish')
    lsk = g.newlabel('nored')
    g.e('s_sub_u32 s%d, s%d, 1' % (sT2, sW))
    g.e('s_cmp_ge_u32 s%d, 2' % sT2)
    g.e('s_cbranch_scc1 %s' % lsk)
    R = 32
    g.e('v_lshlrev_b32 v%d, 11, v%d' % (vT0, vG))
    g.e('v_lshl_add_u32 v%d, v%d, 4, v%d' % (vT0, vL15, vT0))
    g.e('s_lshl_b32 s%d, s%d, 13' % (sT0, sT2))
    g.e('s_add_u32 s%d, s%d, %d' % (sT0, sT0, L_HP6))
    g.e('v_add_u32 v%d, s%d, v%d' % (vT0, sT0, vT0))
    for k in range(8):
        g.e('ds_read_b128 %s, v%d offset:%d' % (vr(R + 4 * k, 4), vT0, k * 256))
    gu_dest(g, 1)
    g.wait_lgkm(0)
    for k in range(1, 8):
        for e in range(4):
            g.e('v_add_f32 v%d, v%d, v%d' % (R + e, R + e, R + 4 * k + e))
    allreduce_rows(g, 'v_add_f32', [R + e for e in range(4)], vT1)
    for e in range(4):
        g.e('v_min_u32 v%d, -2, v%d' % (R + e, R + e))
    g.e('v_lshlrev_b32 v%d, 4, v%d' % (vT2, vLane))
    g.e('s_mov_b64 exec, 0xffff')
    saved = list(g.vm)
    g.e('buffer_store_dwordx4 %s, v%d, %s, s%d offen sc1' % (vr(R, 4), vT2, srd('ws'), sT3), 'st')
    g.vm = saved
    g.e('s_mov_b64 exec, -1')
    g.label(lsk)
    groups = [('V', T) for T in range(NVPF, 8)] + ([] if LATEW else [('wd', 0), ('wo', 0)])
    gi = [0]
    def issue_next():
        if gi[0] >= len(groups): return
        k, T = groups[gi[0]]; gi[0] += 1
        if k == 'V': load_v5(g, T)
        elif k == 'wo': wo_loads5(g)
        else: wd_loads5(g)
    for _ in range(max(0, 2 - NVPF)): issue_next()
    g.wait_lgkm(0)
    def can_issue(done_qk):
        if gi[0] >= len(groups): return False
        k, T = groups[gi[0]]
        if k == 'V' and T >= 3: return done_qk > T - 3
        if k == 'wo': return done_qk > 5
        if k == 'wd': return done_qk > 6
        return True
    for T in range(8):
        g.wait_vm('K%d' % T)
        qk5(g, T)
        if can_issue(T + 1): issue_next()
        if T > 0: score5(g, T - 1)
    score5(g, 7)
    while gi[0] < len(groups): issue_next()
    softmax_all(g)
    for T in range(8):
        g.wait_vm('V%d' % T)
        pv_tile(g, T)
    stamp(g, 5)
    h_gather7(g)
    if LATEW == 1 and POLLW:
        l1 = g.newlabel('pw')
        g.e('s_cmp_lg_u32 s%d, %d' % (sW, POLLW))
        g.e('s_cbranch_scc1 %s' % l1)
        saved = list(g.vm)
        wd_loads5(g)
        wo_loads5(g)
        g.vm = saved
        g.label(l1)
    attn_combine5(g)
    if LATEW == 1:
        l2 = g.newlabel('pw')
        if POLLW:
            g.e('s_cmp_eq_u32 s%d, %d' % (sW, POLLW))
            g.e('s_cbranch_scc1 %s' % l2)
        wd_loads5(g)
        wo_loads5(g)
        g.label(l2)
    if LATEW != 2:
        ffn_mfma(g)
        hop1_gather(g)
    else:
        hop1_v2(g)
    tail1_compute5(g)
    tail2_fused(g)

def main():
    out = HEADER
    out += '; @launch grid=(256,1,1) block=(512,1,1) lds=%d\n' % LDS6
    out += '.amdgcn_target "amdgcn-amd-amdhsa--gfx950"\n.text\n'
    t, kd = kernel(NAME + '_kernel', fused7, ['x', 'K', 'V', 'wq', 'wo', 'wg', 'wu', 'wd', 'out', 'dbg', 'ws'], 0, 256, ['x', 'wq'] if EARLYGU != 2 else None)
    out += t
    out += '.section .rodata,"a"\n.p2align 6\n' + kd
    path = sys.argv[1] if len(sys.argv) > 1 else 'cdna_kernels/%s.s' % NAME
    open(path, 'w').write(out)
    print('wrote', path, len(out))

if __name__ == '__main__':
    main()
```

```python
import sys, os
sys.path.insert(0, 'gen')
import gen1, gen2, gen5, gen6
from gen1 import *
from gen2 import *
from gen5 import *
from gen6 import gu_dest, gemv_fma, row0_calc, part_addr, L_HP6, LDS6
from gen4 import ln_part
EARLYGU = int(os.environ.get('EARLYGU', '0'))
HOLD = 0
if EARLYGU == 5:
    EARLYGU = 4; HOLD = 1
NPF = int(os.environ.get('NPF', '8'))
LATEW = int(os.environ.get('LATEW', '0'))
EARLYW = [(x, 0) for x in os.environ.get('EARLYW', '').split(',') if x]
POLLW = int(os.environ.get('POLLW', '0'))
KEARLY = int(os.environ.get('KEARLY', '0'))
NVPF = int(os.environ.get('NVPF', '0'))
HGW = 1
L_HQ = 0

def clears7(g):
    gen6.CLR = ' sc1'
    gen6.clears6(g)
    if EARLYGU == 4:
        g.c('q partial slot clear (wave 6, lanes 0..15)')
        g.e('s_lshl_b32 s%d, s%d, 4' % (sT0, sKV))
        g.e('s_add_u32 s%d, s%d, s%d' % (sT0, sT0, sCBL))
        g.e('s_lshl_b32 s%d, s%d, 8' % (sT1, sT0))
        g.e('s_lshl_b32 s%d, s%d, 14' % (sT2, sKQ))
        g.e('s_add_u32 s%d, s%d, s%d' % (sT2, sT2, sT1))
        g.e('s_cmp_lg_u32 s%d, 6' % sW)
        g.e('s_cselect_b32 s%d, 0x40000000, s%d' % (sT2, sT2))
        g.e('s_mov_b64 exec, 0xffff')
        g.e('buffer_store_dwordx4 %s, v%d, %s, s%d offen sc1' % (vr(vT2, 4), vT0, srd('ws'), sT2), 'st')
        g.e('s_mov_b64 exec, -1')

def h_gather7(g):
    Hh = 64
    lsk = g.newlabel('nohg'); lloop = g.newlabel('hgloop'); lok = g.newlabel('hgok')
    g.e('s_cmp_lg_u32 s%d, %d' % (sW, HGW))
    g.e('s_cbranch_scc1 %s' % lsk)
    if EARLYGU == 3:
        lp = g.newlabel('cb'); lq = g.newlabel('cbok')
        g.e('v_and_b32 v%d, 3, v%d' % (vT1, vLane))
        g.e('v_lshlrev_b32 v%d, 6, v%d' % (vT1, vT1))
        g.e('s_mov_b32 s%d, 0' % sCNT)
        sv = list(g.vm)
        g.label(lp)
        g.e('buffer_load_dword v%d, v%d, %s, 0 offen offset:4 sc1' % (vT5, vT1, srd('dbg')), 'poll')
        g.e('s_waitcnt vmcnt(0)')
        g.e('v_cmp_gt_u32 vcc, 64, v%d' % vT5)
        g.e('s_cmp_eq_u64 vcc, 0')
        g.e('s_cbranch_scc1 %s' % lq)
        g.e('s_sleep 1')
        spin_tail(g, lp, lq)
        g.label(lq)
        g.vm = sv
    g.e('s_mul_i32 s%d, s%d, 448' % (sT0, sH))
    g.e('v_min_u32 v%d, 55, v%d' % (vT1, vLane))
    g.e('v_lshlrev_b32 v%d, 3, v%d' % (vT1, vT1))
    g.e('v_add_u32 v%d, s%d, v%d' % (vT1, sT0, vT1))
    g.e('s_mov_b32 s%d, 0' % sCNT)
    saved = list(g.vm)
    g.label(lloop)
    for kq in range(4):
        g.e('s_mov_b32 s%d, %d' % (sT3, GP_OFF + kq * 3584 * 4))
        g.e('buffer_load_dwordx2 %s, v%d, %s, s%d offen sc1' % (vr(Hh + 2 * kq, 2), vT1, srd('ws'), sT3), 'hg')
        g.e('s_mov_b32 s%d, %d' % (sT3, UP_OFF + kq * 3584 * 4))
        g.e('buffer_load_dwordx2 %s, v%d, %s, s%d offen sc1' % (vr(Hh + 8 + 2 * kq, 2), vT1, srd('ws'), sT3), 'hg')
    g.e('s_waitcnt vmcnt(0)')
    g.e('v_max_u32 v%d, v%d, v%d' % (vT0, Hh, Hh + 1))
    for i in range(1, 8):
        g.e('v_max3_u32 v%d, v%d, v%d, v%d' % (vT0, vT0, Hh + 2 * i, Hh + 2 * i + 1))
    g.e('v_cmp_eq_u32 vcc, -1, v%d' % vT0)
    g.e('s_cmp_eq_u64 vcc, 0')
    g.e('s_cbranch_scc1 %s' % lok)
    g.e('s_sleep 1')
    spin_tail(g, lloop, lok)
    g.label(lok)
    g.vm = saved
    for e in range(2):
        gg = Hh + e; uu = Hh + 8 + e
        g.e('v_add_f32 v%d, v%d, v%d' % (gg, gg, gg + 2))
        g.e('v_add_f32 v%d, v%d, v%d' % (gg + 4, gg + 4, gg + 6))
        g.e('v_add_f32 v%d, v%d, v%d' % (gg, gg, gg + 4))
        g.e('v_add_f32 v%d, v%d, v%d' % (uu, uu, uu + 2))
        g.e('v_add_f32 v%d, v%d, v%d' % (uu + 4, uu + 4, uu + 6))
        g.e('v_add_f32 v%d, v%d, v%d' % (uu, uu, uu + 4))
        round_bf16(g, gg, gg)
        round_bf16(g, uu, uu)
        g.e('v_mul_f32 v%d, v%d, v%d' % (vT2, gg, gg))
        g.e('v_mul_f32 v%d, v%d, v%d' % (vT2, vT2, gg))
        g.e('v_mul_f32 v%d, 0x3d372713, v%d' % (vT2, vT2))
        g.e('v_add_f32 v%d, v%d, v%d' % (vT2, vT2, gg))
        g.e('v_mul_f32 v%d, 0x3f4c422a, v%d' % (vT2, vT2))
        g.e('v_mul_f32 v%d, 0xc038aa3b, v%d' % (vT2, vT2))
        g.e('v_exp_f32 v%d, v%d' % (vT2, vT2))
        g.e('v_add_f32 v%d, 1.0, v%d' % (vT2, vT2))
        g.e('v_rcp_f32 v%d, v%d' % (vT2, vT2))
        g.e('v_mul_f32 v%d, v%d, v%d' % (vT2, vT2, gg))
        round_bf16(g, vT2, vT2)
        g.e('v_mul_f32 v%d, v%d, v%d' % (vT2, vT2, uu))
        g.e('v_cvt_pk_bf16_f32 v%d, v%d, v%d' % (gg, vT2, vT2))
    for e in range(2):
        g.e('v_lshlrev_b32 v%d, 1, v%d' % (vT2, vLane))
        if e: g.e('v_or_b32 v%d, 1, v%d' % (vT2, vT2))
        g.e('v_and_b32 v%d, 0x70, v%d' % (vT3, vT2))
        g.e('v_and_b32 v%d, 3, v%d' % (vT4, vT2))
        g.e('v_lshl_or_b32 v%d, v%d, 2, v%d' % (vT3, vT4, vT3))
        g.e('v_bfe_u32 v%d, v%d, 2, 2' % (vT4, vT2))
        g.e('v_or_b32 v%d, v%d, v%d' % (vT3, vT3, vT4))
        g.e('v_lshlrev_b32 v%d, 2, v%d' % (vT3, vT3))
        g.e('ds_write_b32 v%d, v%d offset:%d' % (vT3, Hh + e, L_HD))
    g.label(lsk)

def hop1_v2(g):
    if ('wd', 0) not in EARLYW: wd_loads5(g)
    elif ('wo', 0) not in EARLYW: wo_loads5(g)
    g.e('s_lshl_b32 s%d, s%d, 9' % (sT0, sH))
    g.e('s_add_u32 s%d, s%d, 0x%x' % (sT0, sT0, ML_OFF2))
    g.e('s_mov_b32 s%d, s%d' % (sKQ, sT0))
    g.e('v_lshlrev_b32 v%d, 3, v%d' % (vA0, vLane))
    lsk = g.newlabel('h1skip'); lloop = g.newlabel('h1loop')
    g.e('s_cmp_lg_u32 s%d, 7' % sW)
    g.e('s_cbranch_scc1 %s' % lsk)
    g.e('s_mov_b32 s%d, 0' % sCNT)
    g.label(lloop)
    g.e('buffer_load_dwordx2 %s, v%d, %s, s%d offen sc1' % (vr(vPM, 2), vA0, srd('ws'), sKQ), 'pp')
    g.e('s_waitcnt vmcnt(0)')
    g.e('v_max_u32 v%d, v%d, v%d' % (vT0, vPM, vPM + 1))
    g.e('v_cmp_eq_u32 vcc, -1, v%d' % vT0)
    g.e('s_cmp_eq_u64 vcc, 0')
    g.e('s_cbranch_scc1 %s' % lsk)
    g.e('s_sleep 1')
    spin_tail(g, lloop, lsk)
    g.label(lsk)
    g.vm.pop()
    g.e('s_lshl_b32 s%d, s%d, 15' % (sT1, sH))
    g.e('s_lshl_b32 s%d, s%d, 12' % (sT2, sW))
    g.e('s_add_u32 s%d, s%d, s%d' % (sT1, sT1, sT2))
    g.e('s_add_u32 s%d, s%d, 0x%x' % (sCBL, sT1, O_OFF2))
    g.e('v_lshlrev_b32 v%d, 4, v%d' % (vA1, vLane))
    g.e('s_barrier')
    stamp(g, 6)
    def gl():
        g.e('buffer_load_dwordx2 %s, v%d, %s, s%d offen sc1' % (vr(vPM, 2), vA0, srd('ws'), sKQ), 'pm')
        for i in range(4):
            g.e('buffer_load_dwordx4 %s, v%d, %s, s%d offen offset:%d sc1' % (vr(vPO + 4 * i, 4), vA1, srd('ws'), sCBL, 1024 * i), 'po')
    def chk(lok):
        g.e('v_max_u32 v%d, v%d, v%d' % (vT0, vPM, vPM + 1))
        for i in range(8):
            g.e('v_max3_u32 v%d, v%d, v%d, v%d' % (vT0, vT0, vPO + 2 * i, vPO + 2 * i + 1))
        g.e('v_cmp_eq_u32 vcc, -1, v%d' % vT0)
        g.e('s_cmp_eq_u64 vcc, 0')
        g.e('s_cbranch_scc1 %s' % lok)
    gl()
    if not EARLYW: wo_loads5(g)
    ffn_mfma(g)
    g.wait_vm('po')
    lloop = g.newlabel('h1loop2'); lok = g.newlabel('h1ok')
    chk(lok)
    g.e('s_mov_b32 s%d, 0' % sCNT)
    saved = list(g.vm)
    g.label(lloop)
    g.e('s_sleep 1')
    gl()
    g.e('s_waitcnt vmcnt(0)')
    chk(lok)
    spin_tail(g, lloop, lok)
    g.label(lok)
    g.vm = saved

def fused7(g):
    vX = 224; vXF = 232; vWQ = 16; vWG = 192; vWU = 208; vACC = 32; vXN = 56
    vGU = 60
    g.e('s_lshr_b32 s%d, s%d, 2' % (sCBL, sU))
    g.e('s_and_b32 s%d, s%d, 3' % (sKQ, sU))
    if EARLYGU == 2: clears7(g)
    g.e('v_lshlrev_b32 v%d, 5, v%d' % (vA0, vLane))
    g.e('buffer_load_dwordx4 %s, v%d, %s, 0 offen' % (vr(vX, 4), vA0, srd('x')), 'x')
    g.e('buffer_load_dwordx4 %s, v%d, %s, 0 offen offset:16' % (vr(vX + 4, 4), vA0, srd('x')), 'x')
    row0_calc(g)
    g.e('v_lshlrev_b32 v%d, 13, v%d' % (vA1, vT0))
    g.e('v_add3_u32 v%d, v%d, v%d, s%d' % (vA1, vA1, vT1, sT1))
    for i in range(4):
        g.e('s_mov_b32 s%d, %d' % (sT3, i * 8192))
        g.e('buffer_load_dwordx4 %s, v%d, %s, s%d offen%s' % (vr(vWQ + 4 * i, 4), vA1, srd('wq'), sT3, NT), 'wq')
    build_srds(g, g.late_srds)
    g.e('s_cmp_ge_u32 s%d, %d' % (sT1, 56 * 128))
    g.e('s_cselect_b32 s%d, 0x40000000, s%d' % (sT1, sT1))
    g.e('s_mov_b32 s%d, 7168' % sT2)
    g.e('v_mul_lo_u32 v%d, v%d, s%d' % (vGU, vT0, sT2))
    g.e('v_add3_u32 v%d, v%d, v%d, s%d' % (vGU, vGU, vT1, sT1))
    g.e('v_lshlrev_b32 v%d, 2, v%d' % (vA3, vT0))
    g.e('v_add_u32 v%d, %d, v%d' % (vA3, L_XN, vA3))
    def gu_loads():
        for i in range(4):
            g.e('s_mov_b32 s%d, %d' % (sT3, i * 7168))
            g.e('buffer_load_dwordx4 %s, v%d, %s, s%d offen%s' % (vr(vWG + 4 * i, 4), vGU, srd('wg'), sT3, NT), 'wg')
            g.e('buffer_load_dwordx4 %s, v%d, %s, s%d offen%s' % (vr(vWU + 4 * i, 4), vGU, srd('wu'), sT3, NT), 'wu')
    if EARLYGU in (2, 3): gu_loads()
    else: clears7(g)
    g.wait_vm('x')
    ln_part(g, vX, vXF)
    g.e('v_lshlrev_b32 v%d, 6, v%d' % (vT0, vLane))
    for k in range(4):
        g.e('ds_write_b128 v%d, %s offset:%d' % (vT0, vr(vXF + 4 * k, 4), L_XN + 16 * k))
    g.wait_lgkm(0)
    g.e('ds_read_b128 %s, v%d' % (vr(vXN, 4), vA3))
    attn_addrs5(g)
    make_masks(g)
    g.wait_lgkm(0)
    g.wait_vm('wq')
    gemv_fma(g, vWQ, vACC, vXN)
    allreduce_inrow(g, 'v_add_f32', list(range(vACC, vACC + 8)), [8])
    part_addr(g)
    g.e('v_mov_b32 v%d, v%d' % (vA3, vT0))
    g.e('v_cmp_gt_u32 vcc, 8, v%d' % vL15)
    g.e('s_and_saveexec_b64 s[%d:%d], vcc' % (sEX, sEX + 1))
    for hf in range(2):
        g.e('ds_write_b128 v%d, %s offset:%d' % (vT0, vr(vACC + 4 * hf, 4), L_HQ + hf * 16))
    g.e('s_mov_b64 exec, s[%d:%d]' % (sEX, sEX + 1))
    if EARLYGU not in (2, 3): g.e('s_waitcnt vmcnt(0)')
    def gu_fma():
        gemv_fma(g, vWG, vACC, vXN)
        gemv_fma(g, vWU, vACC + 8, vXN)
        allreduce_inrow(g, 'v_add_f32', list(range(vACC, vACC + 16)), [8])
        g.e('v_add_u32 v%d, %d, v%d' % (vT0, L_HP6, vA3))
        g.e('v_cmp_gt_u32 vcc, 8, v%d' % vL15)
        g.e('s_and_saveexec_b64 s[%d:%d], vcc' % (sEX, sEX + 1))
        for s_i in range(2):
            for hf in range(2):
                g.e('ds_write_b128 v%d, %s offset:%d' % (vT0, vr(vACC + 8 * s_i + 4 * hf, 4), s_i * 8192 + hf * 16))
        g.e('s_mov_b64 exec, s[%d:%d]' % (sEX, sEX + 1))
    lw0 = g.newlabel('w0path'); ljoin = g.newlabel('join')
    g.e('s_cmp_eq_u32 s%d, 0' % sW)
    g.e('s_cbranch_scc1 %s' % lw0)
    g.c('==== waves 1..7')
    if EARLYGU in (1, 4): gu_loads()
    if EARLYGU == 4:
        for T in range(KEARLY): load_k5(g, T)
    g.wait_lgkm(0)
    g.e('s_barrier')
    stamp(g, 1)
    if EARLYGU == 4:
        if HOLD: g.e('s_barrier')
        for T in range(KEARLY, max(PRE, KEARLY)): load_k5(g, T)
        g.wait_vm('wu')
        gu_fma()
        for T in range(max(PRE, KEARLY), NPF): load_k5(g, T)
    elif EARLYGU in (2, 3):
        for T in range(KEARLY): load_k5(g, T)
        g.wait_vm('wu')
        gu_fma()
        g.e('s_barrier')
        if EARLYGU == 3: clears7(g)
        for T in range(KEARLY, NPF): load_k5(g, T)
        if EARLYGU == 3: g.wait_vm('st')
    else:
        for T in range(KEARLY): load_k5(g, T)
        g.e('s_barrier')
        if not EARLYGU: gu_loads()
        for T in range(KEARLY, PRE): load_k5(g, T)
        g.wait_vm('wu')
        gu_fma()
        for T in range(PRE, NPF): load_k5(g, T)
    for T in range(NVPF): load_v5(g, T)
    g.wait_lgkm(0)
    g.e('s_barrier')
    assert NPF == 8 or NVPF == 0
    for T in range(NPF, 8): load_k5(g, T)
    g.e('s_branch %s' % ljoin)
    g.label(lw0)
    g.c('==== wave 0')
    g.e('v_lshlrev_b32 v%d, 11, v%d' % (vT0, vG))
    g.e('v_lshl_add_u32 v%d, v%d, 4, v%d' % (vT0, vL15, vT0))
    g.e('s_lshl_b32 s%d, s%d, 4' % (sT0, sKV))
    g.e('s_add_u32 s%d, s%d, s%d' % (sT0, sT0, sCBL))
    g.e('s_lshl_b32 s%d, s%d, 8' % (sT1, sT0))
    g.e('s_lshl_b32 s%d, s%d, 14' % (sT2, sKQ))
    g.e('s_add_u32 s%d, s%d, s%d' % (sT2, sT2, sT1))
    g.e('v_lshlrev_b32 v%d, 4, v%d' % (vT2, vLane))
    if EARLYGU == 4: gu_loads()
    g.e('s_lshl_b32 s%d, s%d, 6' % (sT0, sKV))
    g.e('v_mov_b32 v%d, s%d' % (vT4, sT0))
    g.e('v_mov_b32 v%d, 1' % vT3)
    g.wait_lgkm(0)
    g.e('s_barrier')
    stamp(g, 1)
    R = 64
    for k in range(8):
        g.e('ds_read_b128 %s, v%d offset:%d' % (vr(R + 4 * k, 4), vT0, L_HQ + k * 256))
    if EARLYGU == 4:
        g.e('s_mov_b64 exec, 1')
        g.e('buffer_atomic_add v%d, v%d, %s, 0 offen sc1' % (vT3, vT4, srd('dbg')), 'st')
        g.e('s_mov_b64 exec, -1')
    g.e('v_and_b32 v%d, 3, v%d' % (vA2, vLane))
    g.e('v_lshlrev_b32 v%d, 6, v%d' % (vA2, vA2))
    g.wait_lgkm(0)
    for k in range(1, 8):
        for e in range(4):
            g.e('v_add_f32 v%d, v%d, v%d' % (R + e, R + e, R + 4 * k + e))
    allreduce_rows(g, 'v_add_f32', [R + e for e in range(4)], vT1)
    if EARLYGU == 4:
        for e in range(4): g.e('v_min_u32 v%d, -2, v%d' % (R + e, R + e))
    g.e('s_mov_b64 exec, 0xffff')
    g.e('buffer_store_dwordx4 %s, v%d, %s, s%d offen sc1' % (vr(R, 4), vT2, srd('ws'), sT2), 'st')
    if EARLYGU == 4:
        g.e('s_mov_b64 exec, -1')
        stamp(g, 2)
        if HOLD: g.e('s_barrier')
        g.wait_vm('wu')
    else:
        g.e('s_waitcnt vmcnt(0)')
        g.e('s_mov_b64 exec, 1')
        g.e('buffer_atomic_add v%d, v%d, %s, 0 offen sc1' % (vT3, vT4, srd('dbg')), 'st')
        g.e('s_mov_b64 exec, -1')
        stamp(g, 2)
        g.e('s_barrier')
    if EARLYGU not in (2, 3, 4):
        gu_loads()
        g.e('s_waitcnt vmcnt(0)')
    gu_fma()
    if EARLYGU == 3: clears7(g)
    lok = g.newlabel('pollok'); lloop = g.newlabel('pollloop')
    g.e('s_mov_b32 s%d, 0' % sCNT)
    g.label(lloop)
    g.e('buffer_load_dword v%d, v%d, %s, 0 offen sc1' % (vT5, vA2, srd('dbg')), 'poll')
    g.e('s_waitcnt vmcnt(0)')
    g.e('v_cmp_gt_u32 vcc, 64, v%d' % vT5)
    g.e('s_cmp_eq_u64 vcc, 0')
    g.e('s_cbranch_scc1 %s' % lok)
    g.e('s_sleep 1')
    spin_tail(g, lloop, lok)
    g.label(lok)
    stamp(g, 3)
    g.e('s_lshl_b32 s%d, s%d, 12' % (sT0, sKV))
    g.e('v_lshlrev_b32 v%d, 6, v%d' % (vT0, vLane))
    g.e('v_add_u32 v%d, s%d, v%d' % (vT0, sT0, vT0))
    if EARLYGU == 4:
        lq1 = g.newlabel('qloop'); lq2 = g.newlabel('qok')
        g.e('s_mov_b32 s%d, 0' % sCNT)
        g.label(lq1)
    for kq in range(4):
        g.e('s_mov_b32 s%d, %d' % (sT3, QP_OFF + kq * 16384))
        for i in range(4):
            g.e('buffer_load_dwordx4 %s, v%d, %s, s%d offen offset:%d sc1' % (vr(R + 16 * kq + 4 * i, 4), vT0, srd('ws'), sT3, 16 * i), 'qg')
    g.e('s_waitcnt vmcnt(0)')
    if EARLYGU == 4:
        g.e('v_max_u32 v%d, v%d, v%d' % (vT1, R, R + 1))
        for i in range(1, 32):
            g.e('v_max3_u32 v%d, v%d, v%d, v%d' % (vT1, vT1, R + 2 * i, R + 2 * i + 1))
        g.e('v_cmp_eq_u32 vcc, -1, v%d' % vT1)
        g.e('s_cmp_eq_u64 vcc, 0')
        g.e('s_cbranch_scc1 %s' % lq2)
        g.e('s_sleep 1')
        spin_tail(g, lq1, lq2)
        g.label(lq2)
        stamp(g, 4) if os.environ.get('ST4Q') else None
    for e in range(16):
        g.e('v_add_f32 v%d, v%d, v%d' % (R + e, R + e, R + 16 + e))
        g.e('v_add_f32 v%d, v%d, v%d' % (R + 32 + e, R + 32 + e, R + 48 + e))
    for e in range(16):
        g.e('v_add_f32 v%d, v%d, v%d' % (R + e, R + e, R + 32 + e))
    for e in range(8):
        g.e('v_cvt_pk_bf16_f32 v%d, v%d, v%d' % (R + 16 + e, R + 2 * e, R + 2 * e + 1))
    g.e('v_lshlrev_b32 v%d, 5, v%d' % (vT0, vLane))
    g.e('ds_write_b128 v%d, %s offset:%d' % (vT0, vr(R + 16, 4), L_QL))
    g.e('ds_write_b128 v%d, %s offset:%d' % (vT0, vr(R + 20, 4), L_QL + 16))
    g.wait_lgkm(0)
    g.e('s_barrier')
    for T in range(8): load_k5(g, T)
    for T in range(NVPF): load_v5(g, T)
    g.label(ljoin)
    if EARLYGU == 3:
        la = g.newlabel('arr2')
        g.e('s_cmp_lg_u32 s%d, 3' % sW)
        g.e('s_cbranch_scc1 %s' % la)
        g.e('s_lshl_b32 s%d, s%d, 6' % (sT0, sKV))
        g.e('v_mov_b32 v%d, s%d' % (vT4, sT0))
        g.e('v_mov_b32 v%d, 1' % vT3)
        g.e('s_mov_b64 exec, 1')
        saved = list(g.vm)
        g.e('buffer_atomic_add v%d, v%d, %s, 0 offen offset:4 sc1' % (vT3, vT4, srd('dbg')), 'st')
        g.vm = saved
        g.e('s_mov_b64 exec, -1')
        g.label(la)
    g.c('Q frags')
    g.e('v_lshrrev_b32 v%d, 2, v%d' % (vT0, vL15))
    g.e('v_bfe_u32 v%d, v%d, 1, 1' % (vT1, vL15))
    g.e('v_lshl_add_u32 v%d, v%d, 2, v%d' % (vT0, vT1, vT0))
    g.e('v_lshlrev_b32 v%d, 8, v%d' % (vT1, vT0))
    g.e('v_lshl_add_u32 v%d, v%d, 4, v%d' % (vT1, vG, vT1))
    g.e('v_and_b32 v%d, 1, v%d' % (vT0, vLane))
    g.e('v_lshl_add_u32 v%d, v%d, 6, v%d' % (vT1, vT0, vT1))
    for j in range(2):
        g.e('ds_read_b128 %s, v%d offset:%d' % (vr(vQ + 4 * j, 4), vT1, L_QL + 128 * j))
    g.c('waves 1,2: final reduce of gate / up partials and publish')
    lsk = g.newlabel('nored')
    g.e('s_sub_u32 s%d, s%d, 1' % (sT2, sW))
    g.e('s_cmp_ge_u32 s%d, 2' % sT2)
    g.e('s_cbranch_scc1 %s' % lsk)
    R = 32
    g.e('v_lshlrev_b32 v%d, 11, v%d' % (vT0, vG))
    g.e('v_lshl_add_u32 v%d, v%d, 4, v%d' % (vT0, vL15, vT0))
    g.e('s_lshl_b32 s%d, s%d, 13' % (sT0, sT2))
    g.e('s_add_u32 s%d, s%d, %d' % (sT0, sT0, L_HP6))
    g.e('v_add_u32 v%d, s%d, v%d' % (vT0, sT0, vT0))
    for k in range(8):
        g.e('ds_read_b128 %s, v%d offset:%d' % (vr(R + 4 * k, 4), vT0, k * 256))
    gu_dest(g, 1)
    g.wait_lgkm(0)
    for k in range(1, 8):
        for e in range(4):
            g.e('v_add_f32 v%d, v%d, v%d' % (R + e, R + e, R + 4 * k + e))
    allreduce_rows(g, 'v_add_f32', [R + e for e in range(4)], vT1)
    for e in range(4):
        g.e('v_min_u32 v%d, -2, v%d' % (R + e, R + e))
    g.e('v_lshlrev_b32 v%d, 4, v%d' % (vT2, vLane))
    g.e('s_mov_b64 exec, 0xffff')
    saved = list(g.vm)
    g.e('buffer_store_dwordx4 %s, v%d, %s, s%d offen sc1' % (vr(R, 4), vT2, srd('ws'), sT3), 'st')
    g.vm = saved
    g.e('s_mov_b64 exec, -1')
    g.label(lsk)
    groups = [('V', T) for T in range(NVPF, 8)] + ([] if LATEW else [('wd', 0), ('wo', 0)]) + EARLYW
    gi = [0]
    def issue_next():
        if gi[0] >= len(groups): return
        k, T = groups[gi[0]]; gi[0] += 1
        if k == 'V': load_v5(g, T)
        elif k == 'wo': wo_loads5(g)
        else: wd_loads5(g)
    for _ in range(max(0, 2 - NVPF)): issue_next()
    g.wait_lgkm(0)
    def can_issue(done_qk):
        if gi[0] >= len(groups): return False
        k, T = groups[gi[0]]
        if k == 'V' and T >= 3: return done_qk > T - 3
        if k == 'wo': return done_qk > 5
        if k == 'wd': return done_qk > 6
        return True
    for T in range(8):
        g.wait_vm('K%d' % T)
        qk5(g, T)
        if can_issue(T + 1): issue_next()
        if T > 0: score5(g, T - 1)
    score5(g, 7)
    while gi[0] < len(groups): issue_next()
    softmax_all(g)
    for T in range(8):
        g.wait_vm('V%d' % T)
        pv_tile(g, T)
    stamp(g, 5)
    h_gather7(g)
    if LATEW == 1 and POLLW:
        l1 = g.newlabel('pw')
        g.e('s_cmp_lg_u32 s%d, %d' % (sW, POLLW))
        g.e('s_cbranch_scc1 %s' % l1)
        saved = list(g.vm)
        wd_loads5(g)
        wo_loads5(g)
        g.vm = saved
        g.label(l1)
    attn_combine5(g)
    if LATEW == 1:
        l2 = g.newlabel('pw')
        if POLLW:
            g.e('s_cmp_eq_u32 s%d, %d' % (sW, POLLW))
            g.e('s_cbranch_scc1 %s' % l2)
        wd_loads5(g)
        wo_loads5(g)
        g.label(l2)
    if LATEW != 2:
        ffn_mfma(g)
        hop1_gather(g)
    else:
        hop1_v2(g)
    tail1_compute5(g)
    tail2_fused(g)

def main():
    out = HEADER
    out += '; @launch grid=(256,1,1) block=(512,1,1) lds=%d\n' % LDS6
    out += '.amdgcn_target "amdgcn-amd-amdhsa--gfx950"\n.text\n'
    t, kd = kernel(NAME + '_kernel', fused7, ['x', 'K', 'V', 'wq', 'wo', 'wg', 'wu', 'wd', 'out', 'dbg', 'ws'], 0, 256, ['x', 'wq'] if EARLYGU != 2 else None)
    out += t
    out += '.section .rodata,"a"\n.p2align 6\n' + kd
    path = sys.argv[1] if len(sys.argv) > 1 else 'cdna_kernels/%s.s' % NAME
    open(path, 'w').write(out)
    print('wrote', path, len(out))

if __name__ == '__main__':
    main()
```
